```python
import torch

def _softmax(x, axis=-1):
    return torch.softmax(x, dim=axis)
def _gelu(x):
    return torch.nn.functional.gelu(x, approximate="tanh")
def _silu(x):
    return torch.nn.functional.silu(x)
def _sigmoid(x):
    return torch.sigmoid(x)
def _layernorm(x, axis=-1, eps=1e-5):
    m = x.mean(dim=axis, keepdim=True)
    v = x.var(dim=axis, keepdim=True, unbiased=False)
    return (x - m) / torch.sqrt(v + eps)
def _scatter_add(tgt, idx, src, axis=0):
    return tgt.clone().index_add_(axis, idx, src)
def _segment_sum(src, seg, n):
    out = torch.zeros((n,) + src.shape[1:], dtype=src.dtype)
    return out.index_add_(0, seg, src)
def _pad(x, pw):
    flat = tuple(v for pair in reversed(pw) for v in pair)
    return torch.nn.functional.pad(x, flat)

kernel_name = 'gated_mix__spectral_gfnet__dense_activation_gelu__prompt'

def setup_inputs():

    _w = (lambda a: (lambda t: t.to(torch.bfloat16) if t.is_floating_point() else t)(torch.as_tensor(a)))
    def _A_setup():
        B, S, D = 1, 2048, 1024
        Df = D // 2 + 1
        return {
            "x": _w((lambda *s: torch.randn(*s, dtype=torch.bfloat16) * 0.05)(B, S, D)),
            "w_r": _w((lambda *s: torch.randn(*s, dtype=torch.bfloat16) * 3.2)(S, Df) * 0.02),
            "w_i": _w((lambda *s: torch.randn(*s, dtype=torch.bfloat16) * 3.2)(S, Df) * 0.02),
        }
    _A_in = _A_setup()

    def _B_setup():
        B, S, D, F = 1, 2048, 1024, 3584
        return {
            "x": _w((lambda *s: torch.randn(*s, dtype=torch.bfloat16) * 0.05)(B, S, D)),
            "w1": _w((lambda *s: torch.randn(*s, dtype=torch.bfloat16) * 3.2)(D, F) * (D ** -0.5)),
            "b1": _w((lambda *s: torch.randn(*s, dtype=torch.bfloat16) * 3.2)(F) * 0.01),
            "w2": _w((lambda *s: torch.randn(*s, dtype=torch.bfloat16) * 0.2)(F, D) * (F ** -0.5)),
            "b2": _w((lambda *s: torch.randn(*s, dtype=torch.bfloat16) * 0.4)(D) * 0.01),
        }
    _B_in = _B_setup()

    return {
        "A_x": _A_in["x"],
        "A_w_r": _A_in["w_r"],
        "A_w_i": _A_in["w_i"],
        "B_x": _B_in["x"],
        "B_w1": _B_in["w1"],
        "B_b1": _B_in["b1"],
        "B_w2": _B_in["w2"],
        "B_b2": _B_in["b2"],
        "gate_w": _w((lambda *s: torch.randn(*s, dtype=torch.bfloat16) * 0.05)(1024) * 16.0),
    }

def reference(A_x, A_w_r, A_w_i, B_x, B_w1, B_b1, B_w2, B_b2, gate_w):
    def _A_ref(x, w_r, w_i):
        B, S, D = x.shape
        X = (lambda x, axes=(-2,-1): torch.fft.rfft2(x.float(), dim=axes))(x, axes=(-2, -1))
        W = w_r + 1j * w_i
        X = X * W
        y = (lambda x, s, axes=(-2,-1): torch.fft.irfft2(x, s=s, dim=axes).to(torch.bfloat16))(X, (S, D), axes=(-2, -1))
        return y

    def _B_ref(x, w1, b1, w2, b2):
        h = torch.einsum("bsd,df->bsf", x, w1) + b1
        h = _gelu(h)
        return torch.einsum("bsf,fd->bsd", h, w2) + b2

    x = A_x
    g = _sigmoid((x * gate_w).sum(-1, keepdims=True))
    a = _A_ref(x, A_w_r, A_w_i)
    b = _B_ref(x, B_w1, B_b1, B_w2, B_b2)
    return g * a + (1 - g) * b
```

```python
class Asm:
    def __init__(self):
        self.lines = []
        self.launches = []
        self.kds = []
        self.nlabel = 0
    def e(self, s):
        for l in s.strip("\n").split("\n"):
            self.lines.append("    " + l.strip())
    def mark(self, m):
        self.lines.append(';@' + m)
    def label(self, name):
        self.lines.append(name + ":")
    def newlabel(self, p="L"):
        self.nlabel += 1
        return f"{p}_{self.nlabel}"
    def begin_kernel(self, name):
        self.lines.append(f".globl {name}")
        self.lines.append(".p2align 8")
        self.lines.append(f".type {name},@function")
        self.lines.append(f"{name}:")
    def end_kernel(self, name, vgpr, sgpr=102, accum=None):
        if accum is None:
            accum = (vgpr + 3) // 4 * 4
        self.kds.append(f""".p2align 6
.amdhsa_kernel {name}
  .amdhsa_next_free_vgpr {vgpr}
  .amdhsa_next_free_sgpr {sgpr}
  .amdhsa_accum_offset {accum}
  .amdhsa_group_segment_fixed_size 0
  .amdhsa_kernarg_size 96
  .amdhsa_user_sgpr_count 2
  .amdhsa_user_sgpr_kernarg_segment_ptr 1
  .amdhsa_system_sgpr_workgroup_id_x 1
  .amdhsa_float_denorm_mode_32 3
.end_amdhsa_kernel""")
    def launch(self, name, grid, block, lds):
        self.launches.append(f"; @launch kernel={name} grid=({grid},1,1) block=({block},1,1) lds={lds}")
    def text(self, header=""):
        out = []
        out.append(header.rstrip("\n")) if header else None
        out += self.launches
        out.append('.amdgcn_target "amdgcn-amd-amdhsa--gfx950"')
        out.append(".text")
        import hazard
        out += hazard.fix(self.lines)
        out.append('.section .rodata,"a"')
        out += self.kds
        return "\n".join(out) + "\n"

STAMP_OFF = 200 << 20
NSTAMP = 8
def stamp(a, i, on=True):
    if not on: return
    a.e(f"s_memrealtime s[{84+2*i}:{85+2*i}]")
def stamp_init(a, on=True):
    if not on: return
    for i in range(NSTAMP):
        a.e(f"s_mov_b64 s[{84+2*i}:{85+2*i}], 0")
def stamp_flush(a, ws_s, on=True):
    if not on: return
    a.e("s_waitcnt lgkmcnt(0) vmcnt(0)")
    a.e(f"s_add_u32 s4, s{ws_s}, {STAMP_OFF}")
    a.e(f"s_addc_u32 s5, s{ws_s+1}, 0")
    a.e("v_lshrrev_b32 v250, 6, v0")
    a.e("s_lshl_b32 s6, s2, 3")
    a.e("v_add_u32 v250, s6, v250")
    a.e("v_lshlrev_b32 v250, 6, v250")
    a.e("v_and_b32 v251, 63, v0")
    a.e("v_cmp_eq_u32 vcc, 0, v251")
    a.e("s_and_saveexec_b64 s[6:7], vcc")
    for i in range(NSTAMP):
        a.e(f"v_mov_b32 v252, 0")
        a.e(f"v_mov_b32 v253, s{84+2*i}")
        a.e(f"global_store_dwordx2 v250, v[252:253], s[4:5] offset:{8*i}")
        a.e("s_nop 1")
    a.e("s_mov_b64 exec, s[6:7]")

import struct
def f32(x): return "0x%08x" % struct.unpack("<I", struct.pack("<f", x))[0]
def srd(a, s, ptr_s, nbytes, off=0):
    if off:
        a.e(f"s_add_u32 s{s}, s{ptr_s}, {off}")
        a.e(f"s_addc_u32 s{s+1}, s{ptr_s+1}, 0")
    else:
        a.e(f"s_mov_b32 s{s}, s{ptr_s}")
        a.e(f"s_mov_b32 s{s+1}, s{ptr_s+1}")
    a.e(f"s_mov_b32 s{s+2}, {nbytes}")
    a.e(f"s_mov_b32 s{s+3}, 0x20000")
P_X, P_WR, P_WI, P_W1, P_B1, P_W2, P_B2, P_GATE, P_OUT, P_DBG, P_WS = 32, 34, 36, 40, 42, 44, 46, 48, 50, 52, 54
def load_ptrs(a):
    a.e("s_load_dwordx16 s[32:47], s[0:1], 0")
    a.e("s_load_dwordx8 s[48:55], s[0:1], 64")
H_OFF = 1 << 20
Z1_OFF = 16 << 20
WT_OFF = 20 << 20
G_OFF = 25 << 20
Z2_OFF = 26 << 20
P_OFF = 32 << 20
WS_USED = 48 << 20
S_WS = 56
S_R1 = 60
S_R2 = 64
```

```python
from asmlib import *
import math
SGN2 = "0x80008000"

class VA:
    def __init__(self, base, limit=256): self.n = base; self.limit = limit
    def get(self, k=1, align=None):
        al = align or (4 if k >= 4 else (2 if k >= 2 else 1))
        self.n = (self.n + al - 1) // al * al
        r = self.n; self.n += k
        assert self.n <= self.limit, self.n
        return r

def mfma(a, d, A, B, first):
    c = "0" if first else f"v[{d}:{d+3}]"
    a.e(f"v_mfma_f32_16x16x32_bf16 v[{d}:{d+3}], v[{A}:{A+3}], v[{B}:{B+3}], {c}")

def angles(a, step, base, consts, cs):
    for K, (c, s) in zip(consts, cs):
        if K == 0: a.e(f"v_mov_b32 v{s}, v{base}")
        else: a.e(f"v_fmamk_f32 v{s}, v{step}, {f32(K)}, v{base}")
    for K, (c, s) in zip(consts, cs):
        a.e(f"v_cos_f32 v{c}, v{s}")
        a.e(f"v_sin_f32 v{s}, v{s}")

def rot(c, s, q):
    q %= 4
    return [(f"v{c}", f"v{s}"), (f"-v{s}", f"v{c}"), (f"-v{c}", f"-v{s}"), (f"v{s}", f"-v{c}")][q]

def pk(a, d, lohi): a.e(f"v_cvt_pk_bf16_f32 v{d}, {lohi[0]}, {lohi[1]}")

def twiddle_pack(a, re, im, tw, dst, tmp):
    for j in range(4):
        c, s = tw + 2*j, tw + 2*j + 1
        a.e(f"v_mul_f32 v{tmp+2*j}, v{re+j}, v{c}")
        a.e(f"v_mul_f32 v{tmp+2*j+1}, v{im+j}, v{c}")
    for j in range(4):
        c, s = tw + 2*j, tw + 2*j + 1
        a.e(f"v_fmac_f32 v{tmp+2*j}, v{im+j}, v{s}")
        a.e(f"v_fma_f32 v{tmp+2*j+1}, -v{re+j}, v{s}, v{tmp+2*j+1}")
    for j in range(4):
        a.e(f"v_cvt_pk_bf16_f32 v{dst+j}, v{tmp+2*j}, v{tmp+2*j+1}")

def lane_consts(a, V):
    l15 = V.get(); g = V.get(); l15f = V.get(); g4f = V.get()
    a.e(f"v_and_b32 v{l15}, 15, v1")
    a.e(f"v_lshrrev_b32 v{g}, 4, v1")
    a.e(f"v_cvt_f32_u32 v{l15f}, v{l15}")
    a.e(f"v_lshlrev_b32 v{g4f}, 2, v{g}")
    a.e(f"v_cvt_f32_u32 v{g4f}, v{g4f}")
    return l15, g, l15f, g4f

def row_consts(a, V, L, inverse):
    l15, g, l15f, g4f = L
    K = {}
    K["F1re"] = V.get(4); K["F1im"] = V.get(4); K["TW"] = V.get(16)
    K["G"] = [[[V.get(4) for ro in range(2)] for bb in range(2)] for db in range(2)]
    mark = V.n
    st = V.get(); ba = V.get(); cs = [(V.get(), V.get()) for _ in range(4)]; msk = V.get()
    a.e(f"v_mul_f32 v{st}, {f32(1/16)}, v{l15f}")
    a.e(f"v_mul_f32 v{ba}, v{g4f}, v{st}")
    angles(a, st, ba, [0, 1, 2, 3], cs)
    for i, (c, s) in enumerate(cs):
        pk(a, K["F1re"] + i, rot(c, s, 0)); pk(a, K["F1im"] + i, rot(c, s, 1))
    if inverse:
        a.e(f"v_lshlrev_b32 v{msk}, 26, v1")
        a.e(f"v_and_b32 v{msk}, 0x80000000, v{msk}")
        for i in range(4):
            a.e(f"v_xor_b32 v{K['F1re']+i}, v{msk}, v{K['F1re']+i}")
            a.e(f"v_xor_b32 v{K['F1im']+i}, v{msk}, v{K['F1im']+i}")
    a.e(f"v_mul_f32 v{st}, {f32(1/512)}, v{l15f}")
    a.e(f"v_mul_f32 v{ba}, v{g4f}, v{st}")
    angles(a, st, ba, [16*bb + j for bb in range(2) for j in range(4)], [(K["TW"] + 2*i, K["TW"] + 2*i + 1) for i in range(8)])
    a.e(f"v_mul_f32 v{st}, {f32(1/32)}, v{l15f}")
    a.e(f"v_mul_f32 v{ba}, v{g4f}, v{st}")
    angles(a, st, ba, [0, 1, 2, 3], cs)
    a.e(f"v_and_b32 v{msk}, 1, v1")
    a.e(f"v_mul_u32_u24 v{msk}, 0x8000, v{msk}")
    a.e(f"v_lshl_or_b32 v{msk}, v{msk}, 16, v{msk}")
    for db in range(2):
        negim = inverse or db == 1
        for j, (c, s) in enumerate(cs):
            q = 2 * j * db
            pk(a, K["G"][db][0][0] + j, rot(c, s, q))
            pk(a, K["G"][db][0][1] + j, rot(c, s, q + 1 + (2 if negim else 0)))
        for ro in range(2):
            for j in range(4):
                a.e(f"v_xor_b32 v{K['G'][db][1][ro]+j}, v{msk}, v{K['G'][db][0][ro]+j}")
    V.n = mark
    return K

def row_fft(a, K, data, D1, P, D2, tmp):
    for bb in range(2):
        mfma(a, D1 + 8*bb, data + 4*bb, K["F1re"], True)
        mfma(a, D1 + 8*bb + 4, data + 4*bb, K["F1im"], True)
    for bb in range(2):
        twiddle_pack(a, D1 + 8*bb, D1 + 8*bb + 4, K["TW"] + 8*bb, P + 4*bb, tmp)
    for bb in range(2):
        for db in range(2):
            for ro in range(2):
                mfma(a, D2 + 8*db + 4*ro, P + 4*bb, K["G"][db][bb][ro], bb == 0)

def rf_body(a, V, sw, lds_base, SC="", bar=True):
    xd = V.get(16); gw = V.get(8)
    vo = V.get()
    srd(a, S_R1, P_X, 2048*1024*2)
    srd(a, S_R2, P_GATE, 2048)
    a.e(f"s_lshr_b32 s3, s2, 4")
    a.e(f"s_lshl_b32 s3, s3, 7")
    a.e(f"s_and_b32 s4, s2, 15")
    a.e(f"s_lshl_b32 s4, s4, 1")
    a.e(f"s_add_u32 s3, s3, s4")
    a.e(f"s_lshl_b32 s4, s{sw}, 5")
    a.e(f"s_add_u32 s20, s3, s4")
    a.e(f"s_lshl_b32 s3, s20, 11")
    a.e(f"s_add_u32 s4, s3, 2048")
    L = lane_consts(a, V)
    l15, g, l15f, g4f = L
    a.e(f"v_lshlrev_b32 v{vo}, 9, v{g}")
    a.e(f"v_lshl_add_u32 v{vo}, v{l15}, 2, v{vo}")
    for j in range(2):
        for bb in range(2):
            for i in range(4):
                a.e(f"buffer_load_dword v{xd+8*j+4*bb+i}, v{vo}, s[{S_R1}:{S_R1+3}], s{3+j} offen offset:{128*i+64*bb}")
    for bb in range(2):
        for i in range(4):
            a.e(f"buffer_load_dword v{gw+4*bb+i}, v{vo}, s[{S_R2}:{S_R2+3}], 0 offen offset:{128*i+64*bb}")
    srd(a, S_R1, P_WR, 2048*513*2)
    srd(a, S_R2, P_WI, 2048*513*2)
    wd = V.get(20); we = V.get(20); wo = V.get(4); wdl = V.get(); t0 = V.get(); t1 = V.get(); t2 = V.get()
    a.e(f"s_lshr_b32 s5, s2, 2")
    a.e(f"s_and_b32 s6, s2, 3")
    a.e(f"s_lshl_b32 s6, s6, 7")
    a.e(f"s_add_u32 s5, s5, s6")
    a.e(f"v_and_b32 v{t0}, 1, v1")
    a.e(f"v_lshlrev_b32 v{t0}, 10, v{t0}")
    a.e(f"v_add_u32 v{t0}, s5, v{t0}")
    a.e(f"v_and_b32 v{t1}, 2, v1")
    a.e(f"v_cmp_ne_u32 vcc, 0, v{t1}")
    a.e(f"v_lshrrev_b32 v{t1}, 2, v1")
    a.e(f"s_lshl_b32 s6, s{sw}, 6")
    a.e(f"v_add_u32 v{t1}, s6, v{t1}")
    a.e(f"v_sub_u32 v{t2}, 512, v{t1}")
    a.e(f"v_cndmask_b32 v{t1}, v{t1}, v{t2}, vcc")
    a.e(f"v_lshlrev_b32 v{t1}, 1, v{t1}")
    a.e(f"v_mov_b32 v{wdl}, 32")
    a.e(f"v_mov_b32 v{t2}, -32")
    a.e(f"v_cndmask_b32 v{wdl}, v{wdl}, v{t2}, vcc")
    rowb = V.get(4)
    for i in range(4):
        a.e(f"v_add_u32 v{t2}, {512*(i>>1) + 64*(i&1)}, v{t0}")
        a.e(f"v_sub_u32 v{wo+i}, 2048, v{t2}")
        a.e(f"v_and_b32 v{wo+i}, 2047, v{wo+i}")
        a.e(f"v_cndmask_b32 v{t2}, v{t2}, v{wo+i}, vcc")
        a.e(f"v_mul_u32_u24 v{rowb+i}, 1026, v{t2}")
        a.e(f"v_add_u32 v{wo+i}, v{rowb+i}, v{t1}")
    for n in range(4):
        for i in range(4):
            a.e(f"buffer_load_ushort v{wd+4*n+i}, v{wo+i}, s[{S_R1}:{S_R1+3}], 0 offen")
            a.e(f"buffer_load_ushort v{we+4*n+i}, v{wo+i}, s[{S_R2}:{S_R2+3}], 0 offen")
            if n < 3: a.e(f"v_add_u32 v{wo+i}, v{wdl}, v{wo+i}")
    a.e(f"v_bfe_u32 v{t1}, v1, 2, 1")
    a.e(f"v_lshlrev_b32 v{t1}, 8, v{t1}")
    a.e(f"v_add_u32 v{t1}, 256, v{t1}")
    a.e(f"v_sub_u32 v{t2}, 512, v{t1}")
    a.e(f"v_cndmask_b32 v{t1}, v{t1}, v{t2}, vcc")
    a.e(f"v_lshlrev_b32 v{t1}, 1, v{t1}")
    for i in range(4):
        a.e(f"v_add_u32 v{wo+i}, v{rowb+i}, v{t1}")
        a.e(f"buffer_load_ushort v{wd+16+i}, v{wo+i}, s[{S_R1}:{S_R1+3}], 0 offen")
        a.e(f"buffer_load_ushort v{we+16+i}, v{wo+i}, s[{S_R2}:{S_R2+3}], 0 offen")
    NW = 40
    K = row_consts(a, V, L, False)
    D1 = V.get(16); P = V.get(8); D2 = V.get(16); tmp = V.get(16); ob = V.get(16); la = V.get()
    gf = V.get(16); acc = V.get(2)
    a.e(f"v_lshlrev_b32 v{la}, 6, v{l15}")
    a.e(f"v_lshl_add_u32 v{la}, v{g}, 4, v{la}")
    a.e(f"s_lshl_b32 s6, s{sw}, 11")
    a.e(f"s_add_u32 s6, s6, {lds_base}")
    a.e(f"v_add_u32 v{la}, s6, v{la}")
    a.e(f"s_waitcnt vmcnt({NW + 8})")
    for j in range(2):
        row_fft(a, K, xd + 8*j, D1, P, D2, tmp)
        for db in range(2):
            for jj in range(4):
                a.e(f"v_cvt_pk_bf16_f32 v{ob+8*j+4*db+jj}, v{D2+8*db+jj}, v{D2+8*db+4+jj}")
            a.e(f"ds_write_b128 v{la}, v[{ob+8*j+4*db}:{ob+8*j+4*db+3}] offset:{j*8192 + db*1024}")
    a.e(f"s_waitcnt vmcnt({NW})")
    for i in range(8):
        a.e(f"v_lshlrev_b32 v{gf+2*i}, 16, v{gw+i}")
        a.e(f"v_and_b32 v{gf+2*i+1}, 0xffff0000, v{gw+i}")
    a.e(f"v_mov_b32 v{t0}, 0x3f803f80")
    for j in range(2):
        for i in range(8):
            a.e(f"v_lshlrev_b32 v{tmp+2*i}, 16, v{xd+8*j+i}")
            a.e(f"v_and_b32 v{tmp+2*i+1}, 0xffff0000, v{xd+8*j+i}")
        for i in range(8):
            a.e(f"v_pk_mul_f32 v[{tmp+2*i}:{tmp+2*i+1}], v[{tmp+2*i}:{tmp+2*i+1}], v[{gf+2*i}:{gf+2*i+1}]")
        for i in range(8):
            a.e(f"v_cvt_pk_bf16_f32 v{tmp+2*i}, v{tmp+2*i}, v{tmp+2*i+1}")
        a.e(f"v_mov_b32 v{acc+j}, 0")
        for i in range(8):
            a.e(f"v_dot2_f32_bf16 v{acc+j}, v{tmp+2*i}, v{t0}, v{acc+j}")
        a.e("s_nop 2")
    for ctl in ("row_shr:1 bound_ctrl:0", "row_shr:2 bound_ctrl:0", "row_shr:4 bound_ctrl:0", "row_shr:8 bound_ctrl:0",
                "row_bcast:15 row_mask:0xa", "row_bcast:31 row_mask:0xc"):
        for j in range(2):
            a.e(f"v_add_f32_dpp v{acc+j}, v{acc+j}, v{acc+j} {ctl}")
    a.e(f"v_cvt_pk_bf16_f32 v{t1}, v{acc}, v{acc+1}")
    a.e(f"v_lshlrev_b32 v{acc}, 16, v{t1}")
    a.e(f"v_and_b32 v{acc+1}, 0xffff0000, v{t1}")
    for j in range(2):
        a.e(f"v_mul_f32 v{acc+j}, {f32(-math.log2(math.e))}, v{acc+j}")
    for j in range(2): a.e(f"v_exp_f32 v{acc+j}, v{acc+j}")
    for j in range(2): a.e(f"v_add_f32 v{acc+j}, 1.0, v{acc+j}")
    for j in range(2): a.e(f"v_rcp_f32 v{acc+j}, v{acc+j}")
    a.e(f"v_cvt_pk_bf16_f32 v{t1}, v{acc}, v{acc+1}")
    a.e(f"v_lshlrev_b32 v{acc}, 16, v{t1}")
    a.e(f"v_and_b32 v{acc+1}, 0xffff0000, v{t1}")
    a.e(f"s_lshl_b32 s6, s20, 2")
    a.e(f"s_add_u32 s6, s6, {G_OFF}")
    a.e(f"v_mov_b32 v{t1}, 0")
    a.e(f"s_mov_b64 s[22:23], exec")
    a.e(f"s_lshl_b64 exec, 1, 63")
    a.e(f"buffer_store_dwordx2 v[{acc}:{acc+1}], v{t1}, s[{S_WS}:{S_WS+3}], s6 offen{SC}")
    a.e(f"s_mov_b64 exec, s[22:23]")
    a.e(f"s_lshr_b32 s5, s2, 6")
    a.e(f"s_lshl_b32 s5, s5, 12")
    a.e(f"s_and_b32 s6, s2, 3")
    a.e(f"s_lshl_b32 s6, s6, 10")
    a.e(f"s_add_u32 s5, s5, s6")
    a.e(f"s_bfe_u32 s6, s2, 0x40002")
    a.e(f"s_lshl_b32 s6, s6, 6")
    a.e(f"s_add_u32 s5, s5, s6")
    a.e(f"s_add_u32 s5, s5, {WT_OFF}")
    a.e(f"s_lshl_b32 s6, s{sw}, 20")
    a.e(f"s_add_u32 s6, s6, s5")
    so = V.get()
    a.e(f"v_lshrrev_b32 v{so}, 2, v1")
    a.e(f"v_lshlrev_b32 v{so}, 14, v{so}")
    a.e(f"v_and_b32 v{t1}, 3, v1")
    a.e(f"v_lshl_add_u32 v{so}, v{t1}, 4, v{so}")
    a.e(f"s_waitcnt vmcnt(1)")
    for i in range(20):
        a.e(f"v_lshl_or_b32 v{wd+i}, v{we+i}, 16, v{wd+i}")
    for n in range(4):
        a.e(f"buffer_store_dwordx4 v[{wd+4*n}:{wd+4*n+3}], v{so}, s[{S_WS}:{S_WS+3}], s6 offen{SC}")
        a.e(f"s_add_u32 s6, s6, {16*16384}")
    a.e(f"s_add_u32 s5, s5, {256*16384}")
    a.e(f"s_cmp_eq_u32 s{sw}, 0")
    a.e(f"s_cselect_b64 exec, 0xff, 0")
    Ls = a.newlabel("Lskip")
    a.e(f"s_cbranch_execz {Ls}")
    a.e(f"buffer_store_dwordx4 v[{wd+16}:{wd+19}], v{so}, s[{S_WS}:{S_WS+3}], s5 offen{SC}")
    a.label(Ls)
    a.e(f"s_mov_b64 exec, -1")
    a.e("s_waitcnt lgkmcnt(0)")
    if bar: a.e("s_barrier")
    a.e(f"v_lshrrev_b32 v{t0}, 2, v1")
    a.e(f"s_lshl_b32 s6, s{sw}, 6")
    a.e(f"v_add_u32 v{t0}, s6, v{t0}")
    a.e(f"v_sub_u32 v{t1}, 512, v{t0}")
    a.e(f"v_and_b32 v{t2}, 1, v1")
    a.e(f"v_cmp_ne_u32 vcc, 0, v{t2}")
    a.e(f"v_cndmask_b32 v{t0}, v{t0}, v{t1}, vcc")
    a.e(f"v_mov_b32 v{wdl}, 64")
    a.e(f"v_mov_b32 v{t1}, -64")
    a.e(f"v_cndmask_b32 v{wdl}, v{wdl}, v{t1}, vcc")
    a.e(f"v_lshlrev_b32 v{t0}, 2, v{t0}")
    a.e(f"v_and_b32 v{t2}, 2, v1")
    a.e(f"v_lshlrev_b32 v{t2}, 12, v{t2}")
    a.e(f"v_add_u32 v{t2}, {lds_base}, v{t2}")
    a.e(f"v_add_u32 v{wo+1}, v{t0}, v{t2}")
    a.e(f"v_mov_b32 v{t1}, 1024")
    a.e(f"v_cmp_eq_u32 vcc, 2048, v{t0}")
    a.e(f"v_cndmask_b32 v{t1}, v{t0}, v{t1}, vcc")
    a.e(f"v_add_u32 v{wo}, v{t1}, v{t2}")
    a.e(f"v_add_u32 v{wo+1}, v{wdl}, v{wo+1}")
    a.e(f"v_add_u32 v{wo+2}, v{wdl}, v{wo+1}")
    a.e(f"v_add_u32 v{wo+3}, v{wdl}, v{wo+2}")
    for n in range(4):
        a.e(f"ds_read2st64_b32 v[{ob+4*n}:{ob+4*n+1}], v{wo+n} offset0:0 offset1:8")
        a.e(f"ds_read2st64_b32 v[{ob+4*n+2}:{ob+4*n+3}], v{wo+n} offset0:16 offset1:24")
    a.e(f"s_lshr_b32 s5, s2, 4")
    a.e(f"s_lshl_b32 s5, s5, 10")
    a.e(f"s_and_b32 s6, s2, 15")
    a.e(f"s_lshl_b32 s6, s6, 6")
    a.e(f"s_add_u32 s5, s5, s6")
    a.e(f"s_add_u32 s5, s5, {Z1_OFF}")
    a.e(f"s_lshl_b32 s6, s{sw}, 20")
    a.e(f"s_add_u32 s6, s6, s5")
    for n in range(4):
        a.e(f"s_waitcnt lgkmcnt({6 - 2*n})")
        a.e(f"buffer_store_dwordx4 v[{ob+4*n}:{ob+4*n+3}], v{so}, s[{S_WS}:{S_WS+3}], s6 offen{SC}")
        a.e(f"s_add_u32 s6, s6, {16*16384}")


def cp_body(a, V, sw, lds_base, SCL="", SC="", bar=True, p_s=2):
    L = lane_consts(a, V)
    l15, g, l15f, g4f = L
    X = V.get(64)
    Wd = V.get(16)
    vo = V.get(); vw = V.get()
    a.e(f"v_lshlrev_b32 v{vo}, 10, v{g}")
    a.e(f"v_lshl_add_u32 v{vo}, v{l15}, 5, v{vo}")
    a.e(f"s_lshl_b32 s3, s{p_s}, 14")
    a.e(f"s_add_u32 s20, s3, {Z1_OFF}")
    for t in range(1, 4): a.e(f"s_add_u32 s{20+t}, s20, {4096*t}")
    def xr(sig, bb, t): return X + ((sig*2 + bb)*4 + t)*4
    for sig in range(2):
        for bb in range(2):
            for t in range(4):
                r = xr(sig, bb, t)
                a.e(f"buffer_load_dwordx4 v[{r}:{r+3}], v{vo}, s[{S_WS}:{S_WS+3}], s{20+t} offen offset:{512*bb+16*sig}{SCL}")
    a.e(f"v_lshlrev_b32 v{vw}, 6, v1")
    a.e(f"s_lshl_b32 s4, s{sw}, 12")
    a.e(f"s_add_u32 s4, s4, s3")
    a.e(f"s_add_u32 s4, s4, {WT_OFF}")
    for q in range(4):
        a.e(f"buffer_load_dwordx4 v[{Wd+4*q}:{Wd+4*q+3}], v{vw}, s[{S_WS}:{S_WS+3}], s4 offen offset:{16*q}{SCL}")
    K1 = [[V.get(4) for ro in range(2)] for t in range(4)]
    TW = V.get(16)
    K2 = [[V.get(4) for bb in range(2)] for blk in range(4)]
    D = V.get(32); P = V.get(16); tmp = V.get(16)
    st = V.get(); ba = V.get(); cf = V.get(); msk = V.get()
    cs = [(tmp + 2*i, tmp + 2*i + 1) for i in range(8)]
    a.e(f"s_lshl_b32 s5, s{sw}, 4")
    a.e(f"v_add_u32 v{cf}, s5, v{l15}")
    a.e(f"v_cvt_f32_u32 v{cf}, v{cf}")
    a.e(f"v_and_b32 v{msk}, 1, v1")
    a.e(f"v_mul_u32_u24 v{msk}, 0x8000, v{msk}")
    a.e(f"v_lshl_or_b32 v{msk}, v{msk}, 16, v{msk}")
    a.e(f"v_mul_f32 v{st}, {f32(1/64)}, v{cf}")
    a.e(f"v_mul_f32 v{ba}, v{g4f}, v{st}")
    angles(a, st, ba, [16*t + i for t in range(2) for i in range(4)], cs)
    for t in range(2):
        for i in range(4):
            c, s = cs[4*t + i]
            pk(a, K1[t][0] + i, rot(c, s, 0)); pk(a, K1[t][1] + i, rot(c, s, 1))
        for ro in range(2):
            for i in range(4):
                a.e(f"v_xor_b32 v{K1[t+2][ro]+i}, v{msk}, v{K1[t][ro]+i}")
    a.e(f"v_mul_f32 v{st}, {f32(1/2048)}, v{cf}")
    a.e(f"v_mul_f32 v{ba}, v{g4f}, v{st}")
    angles(a, st, ba, [16*bb + j for bb in range(2) for j in range(4)], [(TW + 2*i, TW + 2*i + 1) for i in range(8)])
    m2 = V.get()
    a.e(f"v_lshrrev_b32 v{st}, 1, v{l15}")
    a.e(f"v_cvt_f32_u32 v{st}, v{st}")
    a.e(f"v_mul_f32 v{st}, {f32(1/32)}, v{st}")
    a.e(f"v_and_b32 v{ba}, 1, v1")
    a.e(f"v_cvt_f32_u32 v{ba}, v{ba}")
    a.e(f"v_mul_f32 v{ba}, {f32(0.25)}, v{ba}")
    a.e(f"v_fmac_f32 v{ba}, v{g4f}, v{st}")
    angles(a, st, ba, [0, 1, 2, 3], cs[:4])
    a.e(f"v_bfe_u32 v{m2}, v1, 1, 1")
    a.e(f"v_mul_u32_u24 v{m2}, 0x8000, v{m2}")
    a.e(f"v_lshl_or_b32 v{m2}, v{m2}, 16, v{m2}")
    for blk in range(4):
        for j in range(4):
            c, s = cs[j]
            pk(a, K2[blk][0] + j, rot(c, s, j * blk))
        for j in range(4):
            a.e(f"v_xor_b32 v{K2[blk][1]+j}, v{m2}, v{K2[blk][0]+j}")
    def dr(sig, bb, ro): return D + ((sig*2 + bb)*2 + ro)*4
    for sig in range(2):
        a.e(f"s_waitcnt vmcnt({12 - 8*sig})")
        for bb in range(2):
            for t in range(4):
                for ro in range(2):
                    mfma(a, dr(sig, bb, ro), xr(sig, bb, t), K1[t][ro], t == 0)
    for sig in range(2):
        for bb in range(2):
            twiddle_pack(a, dr(sig, bb, 0), dr(sig, bb, 1), TW + 8*bb, P + (sig*2 + bb)*4, tmp)
    def fr(sig, blk): return D + (sig*4 + blk)*4
    for sig in range(2):
        for bb in range(2):
            for blk in range(4):
                mfma(a, fr(sig, blk), K2[blk][bb], P + (sig*2 + bb)*4, bb == 0)
    K3 = [[[X + ((bb*2 + u)*2 + ro)*4 for ro in range(2)] for u in range(2)] for bb in range(2)]
    a.e(f"v_mul_f32 v{st}, {f32(1/32)}, v{l15f}")
    a.e(f"v_mul_f32 v{ba}, 0.5, v{g4f}")
    a.e(f"v_mul_f32 v{ba}, v{ba}, v{st}")
    angles(a, st, ba, [0, 1, 8, 9], cs[:4])
    for bb in range(2):
        for sl in range(4):
            c, s = cs[sl]
            q = 2 * bb * (sl & 1)
            pk(a, K3[bb][0][0] + sl, rot(c, s, q)); pk(a, K3[bb][0][1] + sl, rot(c, s, q + 1))
        for ro in range(2):
            for sl in range(4):
                a.e(f"v_xor_b32 v{K3[bb][1][ro]+sl}, v{msk}, v{K3[bb][0][ro]+sl}")
    h = 0.5 / (2048 * 512)
    a.e(f"v_cvt_f32_u32 v{cf}, s5")
    a.e(f"v_add_f32 v{cf}, v{cf}, v{g4f}")
    for bb in range(2):
        a.e(f"v_add_f32 v{st}, {f32(16.0*bb)}, v{l15f}")
        a.e(f"v_mul_f32 v{st}, {f32(1/2048)}, v{st}")
        a.e(f"v_mul_f32 v{ba}, v{cf}, v{st}")
        angles(a, st, ba, [0, 1, 2, 3], [(TW + 8*bb + 2*i, TW + 8*bb + 2*i + 1) for i in range(4)])
    for i in range(16):
        a.e(f"v_mul_f32 v{TW+i}, {f32(h)}, v{TW+i}")
    Lsp = a.newlabel("Lspecial"); Ljoin = a.newlabel("Ljoin")
    sc = X + 32
    w = X + 36
    a.e(f"s_cmp_eq_u32 s{p_s}, 0")
    a.e(f"s_cbranch_scc1 {Lsp}")
    a.e(f"v_cvt_f32_u32 v{st}, s{p_s}")
    a.e(f"v_mul_f32 v{st}, {f32(1/1024)}, v{st}")
    a.e(f"v_sin_f32 v{sc}, v{st}")
    a.e(f"v_cos_f32 v{sc+2}, v{st}")
    a.e(f"v_sin_f32 v{sc+1}, v{st}")
    a.e(f"v_cos_f32 v{sc+3}, v{st}")
    a.e(f"s_waitcnt vmcnt(0)")
    def pr(x): return f"v[{x}:{x+1}]"
    for i8 in range(8):
        F = fr(0, i8 >> 1) + 2*(i8 & 1); G = fr(1, i8 >> 1) + 2*(i8 & 1)
        o = w + 14*(i8 & 1) if False else w
        wp, wq, S, Df, a1, a2, be, zp, rr = [w + 2*k for k in range(9)]
        a.e(f"v_lshlrev_b32 v{wp}, 16, v{Wd+i8}")
        a.e(f"v_and_b32 v{wp+1}, 0xffff0000, v{Wd+i8}")
        a.e(f"v_lshlrev_b32 v{wq}, 16, v{Wd+8+i8}")
        a.e(f"v_and_b32 v{wq+1}, 0xffff0000, v{Wd+8+i8}")
        a.e(f"v_pk_add_f32 {pr(S)}, {pr(wp)}, {pr(wq)} neg_hi:[0,1]")
        a.e(f"v_pk_add_f32 {pr(Df)}, {pr(wp)}, {pr(wq)} neg_lo:[0,1]")
        a.e(f"v_pk_fma_f32 {pr(a1)}, {pr(Df)}, {pr(sc)}, {pr(S)} neg_lo:[1,0,0] neg_hi:[1,0,0]")
        a.e(f"v_pk_fma_f32 {pr(a2)}, {pr(Df)}, {pr(sc)}, {pr(S)}")
        a.e(f"v_pk_mul_f32 {pr(be)}, {pr(Df)}, {pr(sc+2)}")
        a.e(f"v_pk_mul_f32 {pr(zp)}, {pr(a1)}, {pr(F)} op_sel:[0,0] op_sel_hi:[0,1]")
        a.e(f"v_pk_mul_f32 {pr(rr)}, {pr(a2)}, {pr(G)} op_sel:[0,0] op_sel_hi:[0,1]")
        a.e(f"v_pk_fma_f32 {pr(zp)}, {pr(a1)}, {pr(F)}, {pr(zp)} op_sel:[1,1,0] op_sel_hi:[1,0,1] neg_lo:[0,1,0]")
        a.e(f"v_pk_fma_f32 {pr(rr)}, {pr(a2)}, {pr(G)}, {pr(rr)} op_sel:[1,1,0] op_sel_hi:[1,0,1] neg_lo:[0,1,0]")
        a.e(f"v_pk_fma_f32 {pr(zp)}, {pr(be)}, {pr(G)}, {pr(zp)} op_sel:[0,1,0] op_sel_hi:[0,0,1] neg_lo:[0,1,0]")
        a.e(f"v_pk_fma_f32 {pr(rr)}, {pr(be)}, {pr(F)}, {pr(rr)} op_sel:[0,1,0] op_sel_hi:[0,0,1] neg_hi:[0,1,0]")
        a.e(f"v_pk_fma_f32 {pr(zp)}, {pr(be)}, {pr(G)}, {pr(zp)} op_sel:[1,0,0] op_sel_hi:[1,1,1] neg_lo:[0,1,0] neg_hi:[0,1,0]")
        a.e(f"v_pk_fma_f32 {pr(rr)}, {pr(be)}, {pr(F)}, {pr(rr)} op_sel:[1,0,0] op_sel_hi:[1,1,1]")
        a.e(f"v_cvt_pk_bf16_f32 v{P+i8}, v{zp}, -v{zp+1}")
        a.e(f"v_cvt_pk_bf16_f32 v{P+8+i8}, v{rr}, -v{rr+1}")
    a.e(f"s_branch {Ljoin}")
    a.label(Lsp)
    E1 = K2[0][0]
    E2 = E1 + 16
    a.e(f"s_add_u32 s4, s4, {256*16384}")
    for q in range(2):
        a.e(f"buffer_load_dwordx4 v[{E1+4*q}:{E1+4*q+3}], v{vw}, s[{S_WS}:{S_WS+3}], s4 offen offset:{16*q}{SCL}")
    a.e(f"s_add_u32 s4, s4, 16384")
    for q in range(4):
        a.e(f"buffer_load_dwordx4 v[{E2+4*q}:{E2+4*q+3}], v{vw}, s[{S_WS}:{S_WS+3}], s4 offen offset:{16*q}{SCL}")
    ka = w; kb = w + 1
    a.e(f"v_lshlrev_b32 v{ka}, 7, v{g}")
    a.e(f"v_add3_u32 v{ka}, v{ka}, v{l15}, s5")
    a.e(f"v_sub_u32 v{kb}, 2048, v{ka}")
    a.e(f"v_lshlrev_b32 v{ka}, 3, v{ka}")
    a.e(f"v_add_u32 v{ka}, {lds_base}, v{ka}")
    for i8 in range(8):
        F = fr(0, i8 >> 1) + 2*(i8 & 1)
        a.e(f"ds_write_b64 v{ka}, {pr(F)} offset:{(512*(i8>>1) + 64*(i8&1))*8}")
    a.e("s_waitcnt lgkmcnt(0)")
    a.e("s_barrier")
    Y = X + 48
    for i8 in range(8):
        a.e(f"v_subrev_u32 v{ka}, {512*(i8>>1) + 64*(i8&1)}, v{kb}")
        a.e(f"v_and_b32 v{ka}, 2047, v{ka}")
        a.e(f"v_lshlrev_b32 v{ka}, 3, v{ka}")
        a.e(f"ds_read_b64 {pr(Y+2*i8)}, v{ka} offset:{lds_base}")
    a.e("s_waitcnt vmcnt(0) lgkmcnt(0)")
    a.e("s_barrier")
    for i8 in range(8):
        F = fr(0, i8 >> 1) + 2*(i8 & 1); G = fr(1, i8 >> 1) + 2*(i8 & 1); Yr = Y + 2*i8
        u0, u1, S, Df, zp, rr = [w + 2*k for k in range(6)]
        def unp(d, s_):
            a.e(f"v_lshlrev_b32 v{d}, 16, v{s_}")
            a.e(f"v_and_b32 v{d+1}, 0xffff0000, v{s_}")
        unp(u0, Wd + i8); unp(u1, E2 + 8 + i8)
        a.e(f"v_pk_add_f32 {pr(S)}, {pr(u0)}, {pr(u1)} neg_hi:[0,1]")
        unp(u0, E2 + i8); unp(u1, Wd + 8 + i8)
        a.e(f"v_pk_add_f32 {pr(Df)}, {pr(u0)}, {pr(u1)} neg_hi:[0,1]")
        a.e(f"v_pk_add_f32 {pr(u0)}, {pr(S)}, {pr(Df)}")
        a.e(f"v_pk_add_f32 {pr(u1)}, {pr(S)}, {pr(Df)} neg_lo:[0,1] neg_hi:[0,1]")
        a.e(f"v_pk_mul_f32 {pr(zp)}, {pr(u0)}, {pr(F)} op_sel:[0,0] op_sel_hi:[0,1]")
        a.e(f"v_pk_fma_f32 {pr(zp)}, {pr(u0)}, {pr(F)}, {pr(zp)} op_sel:[1,1,0] op_sel_hi:[1,0,1] neg_lo:[0,1,0]")
        a.e(f"v_pk_fma_f32 {pr(zp)}, {pr(u1)}, {pr(Yr)}, {pr(zp)} op_sel:[0,1,0] op_sel_hi:[0,0,1]")
        a.e(f"v_pk_fma_f32 {pr(zp)}, {pr(u1)}, {pr(Yr)}, {pr(zp)} op_sel:[1,0,0] op_sel_hi:[1,1,1] neg_lo:[0,1,0]")
        a.e(f"v_mul_f32 v{zp}, 0.5, v{zp}")
        a.e(f"v_mul_f32 v{zp+1}, 0.5, v{zp+1}")
        unp(u0, E1 + i8)
        a.e(f"v_pk_mul_f32 {pr(rr)}, {pr(u0)}, {pr(G)} op_sel:[0,0] op_sel_hi:[0,1]")
        a.e(f"v_pk_fma_f32 {pr(rr)}, {pr(u0)}, {pr(G)}, {pr(rr)} op_sel:[1,1,0] op_sel_hi:[1,0,1] neg_lo:[0,1,0]")
        a.e(f"v_add_f32 v{rr}, v{rr}, v{rr}")
        a.e(f"v_add_f32 v{rr+1}, v{rr+1}, v{rr+1}")
        a.e(f"v_cvt_pk_bf16_f32 v{P+i8}, v{zp}, -v{zp+1}")
        a.e(f"v_cvt_pk_bf16_f32 v{P+8+i8}, v{rr}, -v{rr+1}")
    a.label(Ljoin)
    a.e("s_nop 1")
    for sig in range(2):
        for bb in range(2):
            for u in range(2):
                for ro in range(2):
                    mfma(a, dr(sig, bb, ro), P + sig*8 + 4*u, K3[bb][u][ro], u == 0)
    la = st
    a.e(f"s_lshl_b32 s6, s{sw}, 2")
    a.e(f"v_add_u32 v{la}, s6, v{g}")
    a.e(f"v_xor_b32 v{la}, v{la}, v{l15}")
    a.e(f"v_lshlrev_b32 v{la}, 4, v{la}")
    a.e(f"v_lshl_add_u32 v{la}, v{l15}, 8, v{la}")
    O = K2[0][0]
    for sig in range(2):
        for bb in range(2):
            o = O + (sig*2 + bb)*4
            twiddle_pack(a, dr(sig, bb, 0), dr(sig, bb, 1), TW + 8*bb, o, tmp)
            a.e(f"ds_write_b128 v{la}, v[{o}:{o+3}] offset:{lds_base + sig*8192 + bb*4096}")
    ra = [tmp + i for i in range(4)]
    a.e(f"v_xor_b32 v{ra[0]}, v{g}, v{l15}")
    a.e(f"v_lshlrev_b32 v{ra[0]}, 4, v{ra[0]}")
    a.e(f"v_lshl_add_u32 v{ra[0]}, v{l15}, 8, v{ra[0]}")
    for t in range(1, 4): a.e(f"v_xor_b32 v{ra[t]}, {64*t}, v{ra[0]}")
    a.e("s_waitcnt lgkmcnt(0)")
    a.e("s_barrier")
    for sig in range(2):
        for bb in range(2):
            for t in range(4):
                r = xr(sig, bb, t)
                a.e(f"ds_read_b128 v[{r}:{r+3}], v{ra[t]} offset:{lds_base + sig*8192 + bb*4096}")
    a.e(f"v_lshlrev_b32 v{vo}, 8, v{l15}")
    a.e(f"v_lshl_add_u32 v{vo}, v{g}, 4, v{vo}")
    a.e(f"s_lshl_b32 s4, s{sw}, 12")
    a.e(f"s_add_u32 s4, s4, s3")
    a.e(f"s_add_u32 s4, s4, {Z2_OFF}")
    for sig in range(2):
        for bb in range(2):
            a.e(f"s_waitcnt lgkmcnt({12 - 4*(sig*2+bb)})")
            for t in range(4):
                for ro in range(2):
                    mfma(a, dr(sig, bb, ro), xr(sig, bb, t), K1[t][ro], t == 0)
    for sig in range(2):
        for bb in range(2):
            o = O + (sig*2 + bb)*4
            for j in range(4):
                a.e(f"v_cvt_pk_bf16_f32 v{o+j}, v{dr(sig,bb,0)+j}, v{dr(sig,bb,1)+j}")
            a.e(f"buffer_store_dwordx4 v[{o}:{o+3}], v{vo}, s[{S_WS}:{S_WS+3}], s4 offen offset:{bb*128+sig*64}{SC}")

def fin_body(a, V, sw, lds_base, NSPLIT=4, SCL="", SC=""):
    L = lane_consts(a, V)
    l15, g, l15f, g4f = L
    zd = V.get(16); vo = V.get(); t0 = V.get(); t1 = V.get(); t2 = V.get(); wa = V.get(4); dl = V.get()
    a.e(f"v_lshrrev_b32 v{vo}, 2, v1")
    a.e(f"v_lshlrev_b32 v{vo}, 14, v{vo}")
    a.e(f"v_and_b32 v{t0}, 2, v1")
    a.e(f"v_lshl_add_u32 v{vo}, v{t0}, 5, v{vo}")
    a.e(f"v_and_b32 v{t0}, 1, v1")
    a.e(f"v_lshl_add_u32 v{vo}, v{t0}, 4, v{vo}")
    a.e(f"s_lshr_b32 s3, s2, 1")
    a.e(f"s_lshl_b32 s3, s3, 7")
    a.e(f"s_and_b32 s4, s2, 1")
    a.e(f"s_lshl_b32 s4, s4, 5")
    a.e(f"s_add_u32 s3, s3, s4")
    a.e(f"s_add_u32 s3, s3, {Z2_OFF}")
    a.e(f"s_lshl_b32 s4, s{sw}, 20")
    a.e(f"s_add_u32 s3, s3, s4")
    for n in range(4):
        a.e(f"buffer_load_dwordx4 v[{zd+4*n}:{zd+4*n+3}], v{vo}, s[{S_WS}:{S_WS+3}], s3 offen{SCL}")
        a.e(f"s_add_u32 s3, s3, {16*16384}")
    pd = V.get(16*NSPLIT); b2 = V.get(8); gv = V.get(2); po = V.get(); oo = V.get()
    a.e(f"v_lshlrev_b32 v{po}, 10, v{l15}")
    a.e(f"v_lshl_add_u32 v{po}, v{g}, 4, v{po}")
    a.e(f"s_lshl_b32 s20, s2, 3")
    a.e(f"s_lshl_b32 s4, s{sw}, 1")
    a.e(f"s_add_u32 s20, s20, s4")
    a.e(f"s_lshr_b32 s4, s20, 4")
    a.e(f"s_lshl_b32 s4, s4, 15")
    a.e(f"s_and_b32 s5, s20, 15")
    a.e(f"s_lshl_b32 s5, s5, 6")
    a.e(f"s_add_u32 s4, s4, s5")
    a.e(f"s_add_u32 s4, s4, {P_OFF}")
    def pdr(j, db, ks): return pd + ((j*2 + db)*NSPLIT + ks)*4
    for db in range(2):
        for ks in range(NSPLIT):
            a.e(f"s_add_u32 s5, s4, {db*16384 + ks*(4<<20)}")
            for j in range(2):
                r = pdr(j, db, ks)
                a.e(f"buffer_load_dwordx4 v[{r}:{r+3}], v{po}, s[{S_WS}:{S_WS+3}], s5 offen offset:{64*j}{SCL}")
    srd(a, S_R1, P_B2, 2048)
    srd(a, S_R2, P_OUT, 2048*1024*2)
    a.e(f"v_lshlrev_b32 v{oo}, 6, v{l15}")
    a.e(f"v_lshl_add_u32 v{oo}, v{g}, 4, v{oo}")
    for db in range(2):
        a.e(f"buffer_load_dwordx4 v[{b2+4*db}:{b2+4*db+3}], v{oo}, s[{S_R1}:{S_R1+3}], 0 offen offset:{1024*db}")
    a.e(f"s_lshl_b32 s5, s20, 2")
    a.e(f"s_add_u32 s5, s5, {G_OFF}")
    a.e(f"v_mov_b32 v{t0}, 0")
    a.e(f"buffer_load_dwordx2 v[{gv}:{gv+1}], v{t0}, s[{S_WS}:{S_WS+3}], s5 offen{SCL}")
    NL = 4*NSPLIT + 3
    a.e(f"v_lshrrev_b32 v{t0}, 2, v1")
    a.e(f"s_lshl_b32 s6, s{sw}, 6")
    a.e(f"v_add_u32 v{t0}, s6, v{t0}")
    a.e(f"v_sub_u32 v{t1}, 512, v{t0}")
    a.e(f"v_and_b32 v{t2}, 2, v1")
    a.e(f"v_cmp_ne_u32 vcc, 0, v{t2}")
    a.e(f"v_cndmask_b32 v{t0}, v{t0}, v{t1}, vcc")
    a.e(f"v_mov_b32 v{dl}, 64")
    a.e(f"v_mov_b32 v{t1}, -64")
    a.e(f"v_cndmask_b32 v{dl}, v{dl}, v{t1}, vcc")
    a.e(f"v_lshlrev_b32 v{t0}, 2, v{t0}")
    a.e(f"v_and_b32 v{t2}, 1, v1")
    a.e(f"v_lshlrev_b32 v{t2}, 13, v{t2}")
    a.e(f"v_add_u32 v{t2}, {lds_base}, v{t2}")
    a.e(f"v_add_u32 v{wa+1}, v{t0}, v{t2}")
    a.e(f"v_mov_b32 v{t1}, 1024")
    a.e(f"v_cmp_eq_u32 vcc, 2048, v{t0}")
    a.e(f"v_cndmask_b32 v{t1}, v{t0}, v{t1}, vcc")
    a.e(f"v_add_u32 v{wa}, v{t1}, v{t2}")
    a.e(f"v_add_u32 v{wa+1}, v{dl}, v{wa+1}")
    a.e(f"v_add_u32 v{wa+2}, v{dl}, v{wa+1}")
    a.e(f"v_add_u32 v{wa+3}, v{dl}, v{wa+2}")
    K = row_consts(a, V, L, True)
    xd = zd; D1 = V.get(16); P = V.get(8); D2 = V.get(16); tmp = V.get(16); b2f = V.get(16); ra = V.get()
    for n in range(4):
        a.e(f"s_waitcnt vmcnt({NL + 3 - n})")
        a.e(f"ds_write2st64_b32 v{wa+n}, v{zd+4*n}, v{zd+4*n+1} offset0:0 offset1:8")
        a.e(f"ds_write2st64_b32 v{wa+n}, v{zd+4*n+2}, v{zd+4*n+3} offset0:16 offset1:24")
    a.e(f"v_lshlrev_b32 v{ra}, 9, v{g}")
    a.e(f"v_lshl_add_u32 v{ra}, v{l15}, 2, v{ra}")
    a.e(f"s_lshl_b32 s6, s{sw}, 12")
    a.e(f"s_add_u32 s6, s6, {lds_base}")
    a.e(f"v_add_u32 v{ra}, s6, v{ra}")
    a.e(f"v_add_u32 v{t0}, 2048, v{ra}")
    a.e("s_waitcnt lgkmcnt(0)")
    a.e("s_barrier")
    for j in range(2):
        ad = ra if j == 0 else t0
        for bb in range(2):
            r = xd + 8*j + 4*bb
            a.e(f"ds_read2_b32 v[{r}:{r+1}], v{ad} offset0:{16*bb} offset1:{16*bb+32}")
            a.e(f"ds_read2_b32 v[{r+2}:{r+3}], v{ad} offset0:{16*bb+64} offset1:{16*bb+96}")
    a.e(f"s_waitcnt vmcnt(0)")
    for i in range(8):
        a.e(f"v_lshlrev_b32 v{b2f+2*i}, 16, v{b2+i}")
        a.e(f"v_and_b32 v{b2f+2*i+1}, 0xffff0000, v{b2+i}")
    og = V.get(2)
    a.e(f"v_sub_f32 v{og}, 1.0, v{gv}")
    a.e(f"v_sub_f32 v{og+1}, 1.0, v{gv+1}")
    a.e(f"v_cvt_pk_bf16_f32 v{t1}, v{og}, v{og+1}")
    a.e(f"v_lshlrev_b32 v{og}, 16, v{t1}")
    a.e(f"v_and_b32 v{og+1}, 0xffff0000, v{t1}")
    a.e(f"s_lshl_b32 s4, s20, 11")
    def pr(x): return f"v[{x}:{x+1}]"
    for j in range(2):
        a.e(f"s_waitcnt lgkmcnt({4 - 4*j})")
        row_fft(a, K, xd + 8*j, D1, P, D2, tmp)
        for db in range(2):
            for i in range(4):
                for ks in range(NSPLIT):
                    src = pdr(j, db, ks) + i
                    u = tmp + 8 + 2*(ks & 1)
                    a.e(f"v_lshlrev_b32 v{u}, 16, v{src}")
                    a.e(f"v_and_b32 v{u+1}, 0xffff0000, v{src}")
                    prev = b2f + 8*db + 2*i if ks == 0 else tmp + 2*i
                    a.e(f"v_pk_add_f32 {pr(tmp+2*i)}, {pr(u)}, {pr(prev)}")
            o = pdr(j, db, 0)
            for i in range(4):
                a.e(f"v_mul_f32 v{tmp+2*i}, v{og+j}, v{tmp+2*i}")
                a.e(f"v_mul_f32 v{tmp+2*i+1}, v{og+j}, v{tmp+2*i+1}")
                a.e(f"v_fmac_f32 v{tmp+2*i}, v{gv+j}, v{D2+8*db+i}")
                a.e(f"v_fmac_f32 v{tmp+2*i+1}, v{gv+j}, v{D2+8*db+4+i}")
                a.e(f"v_cvt_pk_bf16_f32 v{o+i}, v{tmp+2*i}, v{tmp+2*i+1}")
            a.e(f"buffer_store_dwordx4 v[{o}:{o+3}], v{oo}, s[{S_R2}:{S_R2+3}], s4 offen offset:{2048*j + 1024*db}{SC}")

def small_kernel(a, name, body, lds, nv=256, ST=False):
    a.begin_kernel(name)
    Lend = a.newlabel("Lend")
    a.e(f"s_cmp_ge_u32 s2, 256")
    a.e(f"s_cbranch_scc1 {Lend}")
    load_ptrs(a)
    a.e("v_lshrrev_b32 v2, 6, v0")
    a.e("v_and_b32 v1, 63, v0")
    a.e("v_readfirstlane_b32 s28, v2")
    a.e("s_waitcnt lgkmcnt(0)")
    stamp_init(a, ST); stamp(a, 0, ST)
    srd(a, S_WS, P_WS, WS_USED)
    V = VA(2, 248)
    body(a, V, 28)
    stamp(a, 1, ST)
    if ST: a.e("s_waitcnt vmcnt(0)")
    stamp(a, 2, ST)
    stamp_flush(a, P_WS, ST)
    a.label(Lend)
    a.e("s_endpgm")
    a.end_kernel(name, 256 if ST else max(V.n, 8))
    a.launch(name, 256, 256, lds)
    return V.n
```

```python
from asmlib import Asm

def bswz(RC, k):
    if RC % 16 == 12 or RC % 16 == 4:
        return ((k >> 3) & 1) << 1
    if RC % 16 == 0:
        return ((k & 3) << 1) | (((k >> 3) & 1) << 3)
    if RC % 16 == 8:
        return (((k >> 1) & 1) << 1) | (((k >> 3) & 1) << 2)
    raise ValueError(RC)

def check_b_conflicts(RC):
    for nb in range(RC // 2):
        for h in range(2):
            for half in range(2):
                banks = set()
                for l in range(32 * half, 32 * half + 32):
                    g, r, c = l >> 4, (l >> 2) & 3, l & 3
                    k = 8 * g + r + 4 * h
                    nc = 2 * nb + (c >> 1)
                    addr = k * RC * 16 + (nc ^ bswz(RC, k)) * 16 + (c & 1) * 8
                    for d in range(2):
                        b = (addr // 4 + d) % 64
                        assert b not in banks, (RC, nb, h, half)
                        banks.add(b)

class GemmCfg:
    def __init__(self, TM, TN, K, NSLOT, pitchA, pitchB):
        self.TM, self.TN, self.K, self.NSLOT = TM, TN, K, NSLOT
        self.pitchA, self.pitchB = pitchA, pitchB
        self.MB = TM // 32
        self.NB = TN // 32
        self.NK = K // 64
        self.RC = TN // 8
        self.A_BYTES = TM * 128
        self.B_BYTES = 64 * TN * 2
        self.SLOT = self.A_BYTES + self.B_BYTES
        self.NA = self.A_BYTES // 4096
        self.NBD = self.B_BYTES // 4096
        assert self.A_BYTES % 4096 == 0 and self.B_BYTES % 4096 == 0
        self.NDMA = self.NA + self.NBD
        check_b_conflicts(self.RC)
        self.flags = set()
        self.a_blocked = False
        self.a_off = 0
        self.stampf = lambda i: None

S_SRDA, S_SRDB = 8, 12
S_SOFFA, S_SOFFB = 16, 17
S_SLOT = 18
S_CNT = 19
S_TMP = 20
S_WAVE = 28
S_M0, S_N0 = 29, 30
S_K0 = 31

def loader_setup(a, c, vbase):
    vA = [vbase + j for j in range(c.NA)]
    vB = [vbase + c.NA + j for j in range(c.NBD)]
    t0, t1, t2 = vbase + c.NDMA, vbase + c.NDMA + 1, vbase + c.NDMA + 2
    if c.a_blocked:
        a.e(f"s_mul_i32 s{S_TMP}, s{S_WAVE}, {c.NA * 8}")
        a.e(f"s_add_u32 s{S_TMP}, s{S_TMP}, s{S_M0}")
        a.e(f"s_lshr_b32 s{S_TMP}, s{S_TMP}, 4")
        a.e(f"s_mul_i32 s{S_TMP}, s{S_TMP}, {c.pitchA}")
        a.e(f"s_lshl_b32 s{S_TMP+1}, s{S_K0}, 5")
        a.e(f"s_add_u32 s{S_TMP}, s{S_TMP}, s{S_TMP+1}")
        a.e(f"s_add_u32 s{S_TMP}, s{S_TMP}, {c.a_off}")
        a.e(f"v_lshrrev_b32 v{t0}, 3, v1")
        a.e(f"v_lshlrev_b32 v{t1}, 6, v{t0}")
        a.e(f"v_add_u32 v{t1}, s{S_TMP}, v{t1}")
        for j in range(c.NA):
            a.e(f"v_lshrrev_b32 v{t2}, 4, v1")
            if j & 1:
                a.e(f"v_add_u32 v{t2}, 4, v{t2}")
            a.e(f"v_xor_b32 v{t2}, v{t2}, v1")
            a.e(f"v_and_b32 v{vA[j]}, 4, v{t2}")
            a.e(f"v_lshlrev_b32 v{vA[j]}, 8, v{vA[j]}")
            a.e(f"v_and_b32 v{t2}, 3, v{t2}")
            a.e(f"v_lshlrev_b32 v{t2}, 4, v{t2}")
            a.e(f"v_add3_u32 v{vA[j]}, v{vA[j]}, v{t1}, v{t2}")
            off = (j >> 1) * c.pitchA + (j & 1) * 512 - (j % 4) * 1024
            if off:
                a.e(f"v_add_u32 v{vA[j]}, {off & 0xffffffff}, v{vA[j]}")
    else:
        a.e(f"s_mul_i32 s{S_TMP}, s{S_WAVE}, {c.NA * 8}")
        a.e(f"s_add_u32 s{S_TMP}, s{S_TMP}, s{S_M0}")
        a.e(f"s_mul_i32 s{S_TMP}, s{S_TMP}, {c.pitchA}")
        a.e(f"s_lshl_b32 s{S_TMP+1}, s{S_K0}, 1")
        a.e(f"s_add_u32 s{S_TMP}, s{S_TMP}, s{S_TMP+1}")
        a.e(f"s_mov_b32 s{S_TMP+2}, {c.pitchA}")
        a.e(f"v_lshrrev_b32 v{t0}, 3, v1")
        a.e(f"v_mul_lo_u32 v{t1}, v{t0}, s{S_TMP+2}")
        a.e(f"v_add_u32 v{t1}, s{S_TMP}, v{t1}")
        for j in range(c.NA):
            a.e(f"v_lshrrev_b32 v{t2}, 4, v1")
            if j & 1:
                a.e(f"v_add_u32 v{t2}, 4, v{t2}")
            a.e(f"v_xor_b32 v{t2}, v{t2}, v1")
            a.e(f"v_and_b32 v{t2}, 7, v{t2}")
            a.e(f"v_lshlrev_b32 v{t2}, 4, v{t2}")
            a.e(f"v_add_u32 v{vA[j]}, v{t1}, v{t2}")
            off = j * 8 * c.pitchA - (j % 4) * 1024
            if off:
                a.e(f"v_add_u32 v{vA[j]}, {off}, v{vA[j]}")
    a.e(f"s_lshl_b32 s{S_TMP}, s{S_WAVE}, 4")
    a.e(f"s_add_u32 s{S_TMP}, s{S_TMP}, s{S_K0}")
    a.e(f"s_mul_i32 s{S_TMP}, s{S_TMP}, {c.pitchB}")
    a.e(f"s_lshl_b32 s{S_TMP+1}, s{S_N0}, 1")
    a.e(f"s_add_u32 s{S_TMP}, s{S_TMP}, s{S_TMP+1}")
    a.e(f"s_mov_b32 s{S_TMP+2}, {c.pitchB}")
    magic = -(-65536 // c.RC)
    for j in range(c.NBD):
        a.e(f"v_add_u32 v{t0}, {64*j}, v1")
        a.e(f"v_mul_u32_u24 v{t1}, {magic}, v{t0}")
        a.e(f"v_lshrrev_b32 v{t1}, 16, v{t1}")
        a.e(f"v_mul_u32_u24 v{t2}, {c.RC}, v{t1}")
        a.e(f"v_sub_u32 v{t0}, v{t0}, v{t2}")
        if c.RC % 16 in (4, 12):
            a.e(f"v_lshrrev_b32 v{t2}, 2, v{t1}")
            a.e(f"v_and_b32 v{t2}, 2, v{t2}")
        elif c.RC % 16 == 0:
            a.e(f"v_and_b32 v{t2}, 3, v{t1}")
            a.e(f"v_lshlrev_b32 v{t2}, 1, v{t2}")
            a.e(f"v_and_b32 v{vB[j]}, 8, v{t1}")
            a.e(f"v_or_b32 v{t2}, v{t2}, v{vB[j]}")
        else:
            a.e(f"v_and_b32 v{t2}, 2, v{t1}")
            a.e(f"v_lshrrev_b32 v{vB[j]}, 1, v{t1}")
            a.e(f"v_and_b32 v{vB[j]}, 4, v{vB[j]}")
            a.e(f"v_or_b32 v{t2}, v{t2}, v{vB[j]}")
        a.e(f"v_xor_b32 v{t0}, v{t0}, v{t2}")
        a.e(f"v_lshlrev_b32 v{t0}, 4, v{t0}")
        a.e(f"v_mul_lo_u32 v{t1}, v{t1}, s{S_TMP+2}")
        a.e(f"v_add3_u32 v{vB[j]}, v{t0}, v{t1}, s{S_TMP}")
        if j % 4:
            a.e(f"v_subrev_u32 v{vB[j]}, {(j % 4) * 1024}, v{vB[j]}")
    a.e(f"s_mul_i32 s{S_TMP+4}, s{S_WAVE}, {c.NA * 1024}")
    a.e(f"s_mul_i32 s{S_TMP+5}, s{S_WAVE}, {c.NBD * 1024}")
    a.e(f"s_add_u32 s{S_TMP+5}, s{S_TMP+5}, {c.A_BYTES}")
    a.e(f"s_mov_b32 s{S_SOFFA}, 0")
    a.e(f"s_mov_b32 s{S_SOFFB}, 0")
    a.e(f"s_mov_b32 s{S_SLOT}, 0")
    return vA, vB

def loader_issue(a, c, vA, vB):
    nodma = "nodma" in c.flags
    for grp, (vs, srd, soff, sreg) in enumerate(((vA, S_SRDA, S_SOFFA, S_TMP+4), (vB, S_SRDB, S_SOFFB, S_TMP+5))):
        for j, v in enumerate(vs):
            if j % 4 == 0:
                if j == 0:
                    a.e(f"s_add_u32 m0, s{S_SLOT}, s{sreg}")
                else:
                    a.e(f"s_add_u32 m0, m0, 4096")
                a.e("s_nop 0")
            if not nodma:
                a.e(f"buffer_load_dwordx4 v{v}, s[{srd}:{srd+3}], s{soff} offen offset:{(j%4)*1024} lds")
    a.e(f"s_add_u32 s{S_SOFFA}, s{S_SOFFA}, {2048 if c.a_blocked else 128}")
    a.e(f"s_add_u32 s{S_SOFFB}, s{S_SOFFB}, {64 * c.pitchB}")
    a.e(f"s_add_u32 s{S_SLOT}, s{S_SLOT}, {c.SLOT}")
    a.e(f"s_cmp_eq_u32 s{S_SLOT}, {c.SLOT * c.NSLOT}")
    a.e(f"s_cselect_b32 s{S_SLOT}, 0, s{S_SLOT}")

def loader_main(a, c, vbase=4):
    vA, vB = loader_setup(a, c, vbase)
    NS, NK, ND = c.NSLOT, c.NK, c.NDMA
    assert NK > NS
    c.stampf(1)
    for s in range(NS):
        loader_issue(a, c, vA, vB)
    c.stampf(2)
    a.e(f"s_waitcnt vmcnt({min(63, ND * (NS - 1))})")
    a.e("s_barrier")
    c.stampf(3)
    nloop = NK - NS
    a.e(f"s_mov_b32 s{S_CNT}, {nloop}")
    L = a.newlabel("Lld")
    a.label(L)
    a.e(f"s_waitcnt vmcnt({min(63, ND * (NS - 2))})")
    a.e("s_barrier")
    if "dma3" in c.flags: c.flags.add("nodma")
    loader_issue(a, c, vA, vB)
    a.e(f"s_sub_u32 s{S_CNT}, s{S_CNT}, 1")
    a.e(f"s_cmp_lg_u32 s{S_CNT}, 0")
    a.e(f"s_cbranch_scc1 {L}")
    for i in range(NS - 1):
        a.e(f"s_waitcnt vmcnt({min(63, ND * (NS - 2 - i))})")
        a.e("s_barrier")

class ConsRegs:
    def __init__(self, c, base):
        self.acc = base
        n = base + c.MB * c.NB * 4
        self.fa = [n, n + c.MB * 4]; n += 2 * c.MB * 4
        self.fb = [n, n + c.NB * 4]; n += 2 * c.NB * 4
        self.aA = [n, n + 1]; n += 2
        self.nBaddr = {12: 2, 4: 2, 0: min(c.NB, 8), 8: min(c.NB, 4)}[c.RC % 16]
        self.odd7 = (c.NB == 7)
        if self.odd7: self.nBaddr = 3
        self.aB = [n + i for i in range(self.nBaddr)]; n += self.nBaddr
        self.end = (n + 3) // 4 * 4
    def accreg(self, c, mb, nb):
        return self.acc + (mb * c.NB + nb) * 4

def consumer_setup(a, c, R, t0, t1):
    a.e(f"s_and_b32 s{S_TMP}, s{S_WAVE}, 1")
    a.e(f"s_mul_i32 s{S_TMP}, s{S_TMP}, {c.TM // 2 * 128}")
    a.e(f"v_and_b32 v{t0}, 15, v1")
    a.e(f"v_lshlrev_b32 v{R.aA[0]}, 7, v{t0}")
    a.e(f"v_lshrrev_b32 v{t0}, 1, v{t0}")
    a.e(f"v_lshrrev_b32 v{t1}, 4, v1")
    a.e(f"v_xor_b32 v{t0}, v{t0}, v{t1}")
    a.e(f"v_lshlrev_b32 v{t0}, 4, v{t0}")
    a.e(f"v_add3_u32 v{R.aA[0]}, v{R.aA[0]}, v{t0}, s{S_TMP}")
    a.e(f"v_xor_b32 v{R.aA[1]}, 64, v{R.aA[0]}")
    a.e(f"s_lshr_b32 s{S_TMP}, s{S_WAVE}, 1")
    a.e(f"s_mul_i32 s{S_TMP+1}, s{S_TMP}, {c.NB}")
    a.e(f"v_lshrrev_b32 v{t0}, 4, v1")
    a.e(f"v_lshlrev_b32 v{t0}, 3, v{t0}")
    a.e(f"v_bfe_u32 v{t1}, v1, 2, 2")
    a.e(f"v_add_u32 v{t0}, v{t0}, v{t1}")
    base = R.aB[-1]
    for i in range(R.nBaddr):
        d = R.aB[i]
        if c.RC % 16 in (4, 12):
            a.e(f"v_lshrrev_b32 v{t1}, 2, v{t0}")
            a.e(f"v_and_b32 v{t1}, 2, v{t1}")
        elif c.RC % 16 == 0:
            a.e(f"v_and_b32 v{t1}, 3, v{t0}")
            a.e(f"v_lshlrev_b32 v{t1}, 1, v{t1}")
            a.e(f"v_and_b32 v{d}, 8, v{t0}")
            a.e(f"v_or_b32 v{t1}, v{t1}, v{d}")
        else:
            a.e(f"v_and_b32 v{t1}, 2, v{t0}")
            a.e(f"v_lshrrev_b32 v{d}, 1, v{t0}")
            a.e(f"v_and_b32 v{d}, 4, v{d}")
            a.e(f"v_or_b32 v{t1}, v{t1}, v{d}")
        if R.odd7:
            if i < 2:
                a.e(f"s_lshl_b32 s{S_TMP+2}, s{S_TMP}, 3")
                a.e(f"s_add_u32 s{S_TMP+2}, s{S_TMP+2}, {i}")
            else:
                a.e(f"s_add_u32 s{S_TMP+2}, s{S_TMP}, 6")
        else:
            a.e(f"s_add_u32 s{S_TMP+2}, s{S_TMP+1}, {i}")
        a.e(f"s_lshl_b32 s{S_TMP+2}, s{S_TMP+2}, 1")
        a.e(f"v_xor_b32 v{t1}, s{S_TMP+2}, v{t1}")
        a.e(f"v_bfe_u32 v{d}, v1, 1, 1")
        a.e(f"v_or_b32 v{t1}, v{t1}, v{d}")
        a.e(f"v_lshlrev_b32 v{t1}, 4, v{t1}")
        a.e(f"v_mul_u32_u24 v{d}, {c.RC * 16}, v{t0}")
        a.e(f"v_add_u32 v{d}, v{d}, v{t1}")
        a.e(f"v_and_b32 v{t1}, 1, v1")
        a.e(f"v_lshlrev_b32 v{t1}, 3, v{t1}")
        a.e(f"v_add_u32 v{d}, v{d}, v{t1}")
        a.e(f"v_add_u32 v{d}, {c.A_BYTES}, v{d}")
    a.e(f"s_mov_b32 s{S_SLOT}, 0")

def frag_reads(c, R, ks, dst):
    out = []
    rb = []
    for i in range(c.NB):
        ai = i % R.nBaddr
        off = (i - ai) * 32 + ks * 32 * c.RC * 16
        if R.odd7:
            ai = 2 if i == 6 else i % 2
            off = (0 if i == 6 else (i - ai) * 32) + ks * 32 * c.RC * 16
        f = R.fb[dst] + i * 4
        rb.append([f"ds_read_b64_tr_b16 v[{f}:{f+1}], v{R.aB[ai]} offset:{off}",
                   f"ds_read_b64_tr_b16 v[{f+2}:{f+3}], v{R.aB[ai]} offset:{off + 4 * c.RC * 16}"])
    ra = []
    for m in range(c.MB):
        f = R.fa[dst] + m * 4
        ra.append(f"ds_read_b128 v[{f}:{f+3}], v{R.aA[ks]} offset:{m * 2048}")
    out += rb[0] + ra
    for x in rb[1:]:
        out += x
    return out

def mfmas(c, R, src):
    out = []
    for nb in range(c.NB):
        for mb in range(c.MB):
            d = R.accreg(c, mb, nb)
            fa = R.fa[src] + mb * 4; fb = R.fb[src] + nb * 4
            out.append(f"v_mfma_f32_16x16x32_bf16 v[{d}:{d+3}], v[{fb}:{fb+3}], v[{fa}:{fa+3}], v[{d}:{d+3}]")
    return out

def interleave(a, c, mf, others, tail=()):
    if "nomfma" in c.flags: mf = ["s_nop 0"] * 0
    if "noread" in c.flags: others = [o for o in others if not o.startswith("ds_read")]
    tail = dict(tail)
    oi = 0
    for i, m in enumerate(mf):
        a.e(m)
        if oi < len(others):
            a.e(others[oi]); oi += 1
            k = 1
            while k < getattr(c, "rpg", 1) and oi < len(others) and others[oi].startswith("ds_read"):
                a.e(others[oi]); oi += 1; k += 1
        if i in tail:
            while oi < len(others):
                a.e(others[oi]); oi += 1
            for t in tail.pop(i): a.e(t)
    while oi < len(others):
        a.e(others[oi]); oi += 1
    for k in sorted(tail):
        for t in tail[k]: a.e(t)

def consumer_main(a, c, R):
    nm = c.MB * c.NB
    adv = [f"s_add_u32 s{S_SLOT}, s{S_SLOT}, {c.SLOT}",
           f"s_cmp_eq_u32 s{S_SLOT}, {c.SLOT * c.NSLOT}",
           f"s_cselect_b32 s{S_TMP}, {-c.SLOT * (c.NSLOT - 1) & 0xffffffff}, {c.SLOT}" ,
           f"s_cselect_b32 s{S_SLOT}, 0, s{S_SLOT}"]
    adv[2] = f"s_cselect_b32 s{S_TMP}, s{S_TMP+6}, s{S_TMP+7}"
    a.e(f"s_mov_b32 s{S_TMP+6}, {-c.SLOT * (c.NSLOT - 1) & 0xffffffff}")
    a.e(f"s_mov_b32 s{S_TMP+7}, {c.SLOT}")
    upd = [f"v_add_u32 v{r}, s{S_TMP}, v{r}" for r in R.aA + R.aB]
    a.e("s_barrier")
    c.stampf(2)
    for r in frag_reads(c, R, 0, 0):
        if "noread" not in c.flags: a.e(r)
    if "read1" in c.flags:
        for r in frag_reads(c, R, 1, 1): a.e(r)
        c.flags.add("noread")
    a.e(f"s_mov_b32 s{S_CNT}, {c.NK - 1}")
    a.e("s_waitcnt lgkmcnt(0)")
    L = a.newlabel("Lcons")
    a.lines.append(".p2align 6")
    a.label(L)
    barpos = nm - 3
    interleave(a, c, mfmas(c, R, 0), frag_reads(c, R, 1, 1) + adv + upd,
               tail=[(barpos, ["s_waitcnt lgkmcnt(0)", "s_barrier"])])
    interleave(a, c, mfmas(c, R, 1), frag_reads(c, R, 0, 0) + [f"s_sub_u32 s{S_CNT}, s{S_CNT}, 1", f"s_cmp_lg_u32 s{S_CNT}, 0"],
               tail=[(nm - 1, ["s_waitcnt lgkmcnt(0)"])])
    a.e(f"s_cbranch_scc1 {L}")
    c.stampf(3)
    interleave(a, c, mfmas(c, R, 0), frag_reads(c, R, 1, 1), tail=[(nm - 1, ["s_waitcnt lgkmcnt(0)"])])
    interleave(a, c, mfmas(c, R, 1), [])
```

```python
import sys, math, struct
from asmlib import *
from gemmgen import *

def gelu_pairs(a, regs, tmp, kA, kB, one):
    n = len(regs)
    T = [tmp + 2*i for i in range(n)]
    for r, t in zip(regs, T): a.e(f"v_pk_mul_f32 v[{t}:{t+1}], v[{r}:{r+1}], v[{r}:{r+1}]")
    for r, t in zip(regs, T): a.e(f"v_pk_fma_f32 v[{t}:{t+1}], v[{t}:{t+1}], v[{kB}:{kB+1}], v[{kA}:{kA+1}]")
    for r, t in zip(regs, T): a.e(f"v_pk_mul_f32 v[{t}:{t+1}], v[{t}:{t+1}], v[{r}:{r+1}]")
    for r, t in zip(regs, T):
        a.e(f"v_exp_f32 v{t}, v{t}"); a.e(f"v_exp_f32 v{t+1}, v{t+1}")
    for r, t in zip(regs, T): a.e(f"v_pk_add_f32 v[{t}:{t+1}], v[{t}:{t+1}], v[{one}:{one+1}]")
    for r, t in zip(regs, T):
        a.e(f"v_rcp_f32 v{t}, v{t}"); a.e(f"v_rcp_f32 v{t+1}, v{t+1}")
    for r, t in zip(regs, T): a.e(f"v_pk_mul_f32 v[{r}:{r+1}], v[{t}:{t+1}], v[{r}:{r+1}]")

def gemm1(a, name, flags=()):
    c = GemmCfg(128, 224, 1024, 3, 2048, 7168)
    c.flags = set(flags)
    ST = 'stamp' in c.flags
    SC = ' sc1' if 'sc1' in c.flags else (' nt' if 'nt' in c.flags else '')
    c.stampf = (lambda i: stamp(a, i, ST))
    a.begin_kernel(name)
    Lend = a.newlabel("Lend"); Lload = a.newlabel("Lload")
    a.e(f"""
    s_cmp_ge_u32 s2, 256
    s_cbranch_scc1 {Lend}
    s_load_dwordx16 s[32:47], s[0:1], 0
    s_load_dwordx8 s[48:55], s[0:1], 64
    v_lshrrev_b32 v2, 6, v0
    v_and_b32 v1, 63, v0
    v_readfirstlane_b32 s{S_WAVE}, v2
    ; tile mapping: xcd = id&7, j = id>>3 ; mt = 8*(xcd&1) + (j&7) ; nt = 4*(xcd>>1) + (j>>3)
    s_and_b32 s3, s2, 1
    s_lshl_b32 s3, s3, 3
    s_bfe_u32 s4, s2, 0x30003
    s_add_u32 s3, s3, s4
    s_lshl_b32 s{S_M0}, s3, 7
    s_bfe_u32 s3, s2, 0x20001
    s_lshl_b32 s3, s3, 2
    s_lshr_b32 s4, s2, 6
    s_add_u32 s3, s3, s4
    s_mul_i32 s{S_N0}, s3, 224
    s_mov_b32 s{S_K0}, 0
    s_waitcnt lgkmcnt(0)
    """)
    stamp_init(a, ST); stamp(a, 0, ST)
    srd(a, S_SRDA, P_X, 2048*1024*2)
    srd(a, S_SRDB, P_W1, 1024*3584*2)
    a.e(f"s_cmp_ge_u32 s{S_WAVE}, 4")
    a.e(f"s_cbranch_scc1 {Lload}")
    R = ConsRegs(c, 8)
    T = R.end
    srd(a, 60, P_B1, 3584*2)
    srd(a, 64, P_WS, 2048*3584*2, H_OFF)
    a.e(f"s_lshr_b32 s3, s{S_WAVE}, 1")
    a.e(f"s_lshl_b32 s4, s3, 7")
    a.e(f"s_add_u32 s4, s4, s{S_N0}")
    a.e(f"s_lshl_b32 s4, s4, 1")
    a.e(f"s_lshl_b32 s5, s3, 4")
    a.e(f"s_add_u32 s5, s5, s{S_N0}")
    a.e(f"s_add_u32 s5, s5, 96")
    a.e(f"s_lshl_b32 s5, s5, 1")
    a.e(f"v_lshrrev_b32 v2, 4, v1")
    a.e(f"v_lshlrev_b32 v2, 3, v2")
    bt = R.fb[1]
    for nb in range(c.NB):
        if nb < 6:
            a.e(f"buffer_load_dwordx2 v[{bt+2*nb}:{bt+2*nb+1}], v2, s[60:63], s4 offen offset:{32*nb}")
        else:
            a.e(f"buffer_load_dwordx2 v[{bt+2*nb}:{bt+2*nb+1}], v2, s[60:63], s5 offen")
    consumer_setup(a, c, R, T, T+1)
    a.e("s_waitcnt vmcnt(0)")
    for nb in range(c.NB):
        for mb in range(c.MB):
            d = R.accreg(c, mb, nb)
            a.e(f"v_lshlrev_b32 v{d}, 16, v{bt+2*nb}")
            a.e(f"v_and_b32 v{d+1}, 0xffff0000, v{bt+2*nb}")
            a.e(f"v_lshlrev_b32 v{d+2}, 16, v{bt+2*nb+1}")
            a.e(f"v_and_b32 v{d+3}, 0xffff0000, v{bt+2*nb+1}")
    stamp(a, 1, ST)
    consumer_main(a, c, R)
    stamp(a, 4, ST)
    kA, kB, one = T, T+2, T+4
    A_ = 2*math.sqrt(2/math.pi)*math.log2(math.e)
    a.e(f"v_mov_b32 v{kA}, {f32(-A_)}"); a.e(f"v_mov_b32 v{kA+1}, {f32(-A_)}")
    a.e(f"v_mov_b32 v{kB}, {f32(-A_*0.044715)}"); a.e(f"v_mov_b32 v{kB+1}, {f32(-A_*0.044715)}")
    a.e(f"v_mov_b32 v{one}, 1.0"); a.e(f"v_mov_b32 v{one+1}, 1.0")
    a.e(f"s_and_b32 s4, s{S_WAVE}, 1")
    a.e(f"s_lshl_b32 s4, s4, 2")
    a.e(f"s_lshr_b32 s5, s{S_M0}, 4")
    a.e(f"s_add_u32 s4, s4, s5")
    a.e(f"s_mul_i32 s4, s4, 112")
    a.e(f"s_lshr_b32 s5, s{S_N0}, 5")
    a.e(f"s_add_u32 s4, s4, s5")
    a.e(f"s_lshl_b32 s4, s4, 10")
    a.e(f"s_lshl_b32 s6, s3, 12")
    a.e(f"s_add_u32 s6, s6, s4")
    a.e(f"s_lshl_b32 s7, s3, 5")
    a.e(f"s_add_u32 s7, s7, s4")
    a.e(f"s_add_u32 s7, s7, 3072")
    a.e(f"v_and_b32 v4, 15, v1")
    a.e(f"v_lshlrev_b32 v4, 6, v4")
    a.e(f"v_lshrrev_b32 v5, 4, v1")
    a.e(f"v_lshlrev_b32 v3, 3, v5")
    a.e(f"v_add3_u32 v3, v3, v4, s7")
    a.e(f"v_and_b32 v2, 1, v5")
    a.e(f"v_lshlrev_b32 v2, 5, v2")
    a.e(f"v_lshrrev_b32 v5, 1, v5")
    a.e(f"v_lshlrev_b32 v5, 4, v5")
    a.e(f"v_add3_u32 v2, v2, v5, v4")
    a.e(f"v_add_u32 v2, s6, v2")
    tmp = R.fa[0]
    pk = tmp + 32
    for mb in range(c.MB):
        a.e(f"s_mov_b32 s5, {mb*112*1024}")
        for p in range(0, c.NB, 2):
            nbs = [p, p+1] if p+1 < c.NB else [p]
            regs = []
            for nb in nbs:
                d = R.accreg(c, mb, nb); regs += [d, d+2]
            if "nogelu" not in c.flags:
                gelu_pairs(a, regs, tmp, kA, kB, one)
            q = pk + 4*((mb*4 + p//2) % 8)
            for i, r in enumerate(regs):
                a.e(f"v_cvt_pk_bf16_f32 v{q+i}, v{r}, v{r+1}")
            if len(nbs) == 2:
                a.e("s_nop 1")
                a.e(f"v_permlane16_swap_b32 v{q}, v{q+2}")
                a.e(f"v_permlane16_swap_b32 v{q+1}, v{q+3}")
                a.e("s_nop 1")
                a.e(f"buffer_store_dwordx4 v[{q}:{q+3}], v2, s[64:67], s5 offen offset:{512*p}{SC}")
            else:
                a.e(f"buffer_store_dwordx2 v[{q}:{q+1}], v3, s[64:67], s5 offen{SC}")
    stamp(a, 5, ST)
    a.e("s_waitcnt vmcnt(0)")
    stamp(a, 6, ST)
    stamp_flush(a, P_WS, ST)
    a.e("s_endpgm")
    a.label(Lload)
    a.e(f"s_sub_u32 s{S_WAVE}, s{S_WAVE}, 4")
    loader_main(a, c)
    stamp(a, 4, ST)
    stamp_flush(a, P_WS, ST)
    a.label(Lend)
    a.e("s_endpgm")
    a.end_kernel(name, 256)
    a.launch(name, 256, 512, c.SLOT * c.NSLOT)

def gemm2(a, name, flags=()):
    c = GemmCfg(256, 128, 896, 3, 112*1024, 2048)
    c.a_blocked = True; c.a_off = H_OFF
    c.flags = set(flags)
    ST = 'stamp' in c.flags
    SC = ' sc1' if 'sc1' in c.flags else (' nt' if 'nt' in c.flags else '')
    c.stampf = (lambda i: stamp(a, i, ST))
    a.begin_kernel(name)
    Lend = a.newlabel("Lend"); Lload = a.newlabel("Lload")
    a.e(f"""
    s_cmp_ge_u32 s2, 256
    s_cbranch_scc1 {Lend}
    s_load_dwordx16 s[32:47], s[0:1], 0
    s_load_dwordx8 s[48:55], s[0:1], 64
    v_lshrrev_b32 v2, 6, v0
    v_and_b32 v1, 63, v0
    v_readfirstlane_b32 s{S_WAVE}, v2
    ; xcd = id&7, j = id>>3 ; ks = xcd>>1 ; mt = 4*(xcd&1) + (j&3) ; nt = j>>2
    s_and_b32 s3, s2, 1
    s_lshl_b32 s3, s3, 2
    s_bfe_u32 s4, s2, 0x20003
    s_add_u32 s3, s3, s4
    s_lshl_b32 s{S_M0}, s3, 8
    s_lshr_b32 s3, s2, 5
    s_lshl_b32 s{S_N0}, s3, 7
    s_bfe_u32 s56, s2, 0x20001
    s_mul_i32 s{S_K0}, s56, 896
    s_waitcnt lgkmcnt(0)
    """)
    stamp_init(a, ST); stamp(a, 0, ST)
    srd(a, S_SRDA, P_WS, H_OFF + 2048*3584*2)
    srd(a, S_SRDB, P_W2, 1024*3584*2)
    a.e(f"s_cmp_ge_u32 s{S_WAVE}, 4")
    a.e(f"s_cbranch_scc1 {Lload}")
    R = ConsRegs(c, 8)
    T = R.end
    srd(a, 64, P_WS, 4*2048*1024*2, P_OFF)
    consumer_setup(a, c, R, T, T+1)
    for i in range(c.MB*c.NB*4):
        a.e(f"v_mov_b32 v{R.acc+i}, 0")
    stamp(a, 1, ST)
    consumer_main(a, c, R)
    stamp(a, 4, ST)
    a.e(f"s_and_b32 s4, s{S_WAVE}, 1")
    a.e(f"s_lshl_b32 s4, s4, 3")
    a.e(f"s_lshr_b32 s5, s{S_M0}, 4")
    a.e(f"s_add_u32 s4, s4, s5")
    a.e(f"s_lshl_b32 s4, s4, 5")
    a.e(f"s_lshr_b32 s5, s{S_N0}, 5")
    a.e(f"s_add_u32 s4, s4, s5")
    a.e(f"s_and_b32 s5, s{S_WAVE}, 2")
    a.e(f"s_add_u32 s4, s4, s5")
    a.e(f"s_lshl_b32 s4, s4, 10")
    a.e(f"s_lshl_b32 s5, s56, 22")
    a.e(f"s_add_u32 s4, s4, s5")
    a.e(f"v_and_b32 v4, 15, v1")
    a.e(f"v_lshlrev_b32 v4, 6, v4")
    a.e(f"v_lshrrev_b32 v5, 4, v1")
    a.e(f"v_and_b32 v2, 1, v5")
    a.e(f"v_lshlrev_b32 v2, 5, v2")
    a.e(f"v_lshrrev_b32 v5, 1, v5")
    a.e(f"v_lshlrev_b32 v5, 4, v5")
    a.e(f"v_add3_u32 v2, v2, v5, v4")
    a.e(f"v_add_u32 v2, s4, v2")
    pk = R.fa[0]
    for mb in range(c.MB):
        a.e(f"s_mov_b32 s5, {mb*32*1024}")
        for p in range(0, c.NB, 2):
            q = pk + 4*(mb*2 + p//2)
            for i, nb in enumerate((p, p+1)):
                d = R.accreg(c, mb, nb)
                a.e(f"v_cvt_pk_bf16_f32 v{q+2*i}, v{d}, v{d+1}")
                a.e(f"v_cvt_pk_bf16_f32 v{q+2*i+1}, v{d+2}, v{d+3}")
            a.e("s_nop 1")
            a.e(f"v_permlane16_swap_b32 v{q}, v{q+2}")
            a.e(f"v_permlane16_swap_b32 v{q+1}, v{q+3}")
            a.e("s_nop 1")
            a.e(f"buffer_store_dwordx4 v[{q}:{q+3}], v2, s[64:67], s5 offen offset:{512*p}{SC}")
    stamp(a, 5, ST)
    a.e("s_waitcnt vmcnt(0)")
    stamp(a, 6, ST)
    stamp_flush(a, P_WS, ST)
    a.e("s_endpgm")
    a.label(Lload)
    a.e(f"s_sub_u32 s{S_WAVE}, s{S_WAVE}, 4")
    loader_main(a, c)
    stamp(a, 4, ST)
    stamp_flush(a, P_WS, ST)
    a.label(Lend)
    a.e("s_endpgm")
    a.end_kernel(name, 256)
    a.launch(name, 256, 512, c.SLOT * c.NSLOT)

def gemm2b(a, name, flags=(), NS=5):
    c = GemmCfg(128, 128, 1792, NS, 112*1024, 2048)
    c.a_blocked = True; c.a_off = H_OFF
    c.flags = set(flags)
    ST = 'stamp' in c.flags
    SC = ' sc1' if 'sc1' in c.flags else (' nt' if 'nt' in c.flags else '')
    c.stampf = (lambda i: stamp(a, i, ST))
    a.begin_kernel(name)
    Lend = a.newlabel("Lend"); Lload = a.newlabel("Lload")
    a.e(f"""
    s_cmp_ge_u32 s2, 256
    s_cbranch_scc1 {Lend}
    s_load_dwordx16 s[32:47], s[0:1], 0
    s_load_dwordx8 s[48:55], s[0:1], 64
    v_lshrrev_b32 v2, 6, v0
    v_and_b32 v1, 63, v0
    v_readfirstlane_b32 s{S_WAVE}, v2
    ; xcd = id&7: ks = xcd>>2 ; mt = 4*(xcd&3) + (j&3) ; nt = j>>2
    s_and_b32 s3, s2, 3
    s_lshl_b32 s3, s3, 2
    s_bfe_u32 s4, s2, 0x20003
    s_add_u32 s3, s3, s4
    s_lshl_b32 s{S_M0}, s3, 7
    s_lshr_b32 s3, s2, 5
    s_lshl_b32 s{S_N0}, s3, 7
    s_bfe_u32 s56, s2, 0x10002
    s_mul_i32 s{S_K0}, s56, 1792
    s_waitcnt lgkmcnt(0)
    """)
    stamp_init(a, ST); stamp(a, 0, ST)
    srd(a, S_SRDA, P_WS, H_OFF + 2048*3584*2)
    srd(a, S_SRDB, P_W2, 1024*3584*2)
    a.e(f"s_cmp_ge_u32 s{S_WAVE}, 4")
    a.e(f"s_cbranch_scc1 {Lload}")
    R = ConsRegs(c, 8)
    T = R.end
    srd(a, 64, P_WS, 4*2048*1024*2, P_OFF)
    consumer_setup(a, c, R, T, T+1)
    for i in range(c.MB*c.NB*4):
        a.e(f"v_mov_b32 v{R.acc+i}, 0")
    stamp(a, 1, ST)
    consumer_main(a, c, R)
    stamp(a, 4, ST)
    a.e(f"s_and_b32 s4, s{S_WAVE}, 1")
    a.e(f"s_lshl_b32 s4, s4, 2")
    a.e(f"s_lshr_b32 s5, s{S_M0}, 4")
    a.e(f"s_add_u32 s4, s4, s5")
    a.e(f"s_lshl_b32 s4, s4, 5")
    a.e(f"s_lshr_b32 s5, s{S_N0}, 5")
    a.e(f"s_add_u32 s4, s4, s5")
    a.e(f"s_and_b32 s5, s{S_WAVE}, 2")
    a.e(f"s_add_u32 s4, s4, s5")
    a.e(f"s_lshl_b32 s4, s4, 10")
    a.e(f"s_lshl_b32 s5, s56, 22")
    a.e(f"s_add_u32 s4, s4, s5")
    a.e(f"v_and_b32 v4, 15, v1")
    a.e(f"v_lshlrev_b32 v4, 6, v4")
    a.e(f"v_lshrrev_b32 v5, 4, v1")
    a.e(f"v_and_b32 v2, 1, v5")
    a.e(f"v_lshlrev_b32 v2, 5, v2")
    a.e(f"v_lshrrev_b32 v5, 1, v5")
    a.e(f"v_lshlrev_b32 v5, 4, v5")
    a.e(f"v_add3_u32 v2, v2, v5, v4")
    a.e(f"v_add_u32 v2, s4, v2")
    pk = R.fa[0]
    for mb in range(c.MB):
        a.e(f"s_mov_b32 s5, {mb*32*1024}")
        for p in range(0, c.NB, 2):
            q = pk + 4*(mb*2 + p//2)
            for i, nb in enumerate((p, p+1)):
                d = R.accreg(c, mb, nb)
                a.e(f"v_cvt_pk_bf16_f32 v{q+2*i}, v{d}, v{d+1}")
                a.e(f"v_cvt_pk_bf16_f32 v{q+2*i+1}, v{d+2}, v{d+3}")
            a.e("s_nop 1")
            a.e(f"v_permlane16_swap_b32 v{q}, v{q+2}")
            a.e(f"v_permlane16_swap_b32 v{q+1}, v{q+3}")
            a.e("s_nop 1")
            a.e(f"buffer_store_dwordx4 v[{q}:{q+3}], v2, s[64:67], s5 offen offset:{512*p}{SC}")
    stamp(a, 5, ST)
    a.e("s_waitcnt vmcnt(0)")
    stamp(a, 6, ST)
    stamp_flush(a, P_WS, ST)
    a.e("s_endpgm")
    a.label(Lload)
    a.e(f"s_sub_u32 s{S_WAVE}, s{S_WAVE}, 4")
    loader_main(a, c)
    stamp(a, 4, ST)
    stamp_flush(a, P_WS, ST)
    a.label(Lend)
    a.e("s_endpgm")
    a.end_kernel(name, 256)
    a.launch(name, 256, 512, c.SLOT * c.NSLOT)
```

```python
import re
VR = re.compile(r'\bv\[(\d+):(\d+)\]|\bv(\d+)\b')
SR = re.compile(r'\bs\[(\d+):(\d+)\]|\bs(\d+)\b|\b(vcc|exec|m0)\b')
TRANS = ("v_exp_f32", "v_log_f32", "v_rcp_f32", "v_rsq_f32", "v_sqrt_f32", "v_sin_f32", "v_cos_f32")
def vregs(op):
    out = []
    for m in VR.finditer(op):
        if m.group(3) is not None: out.append(int(m.group(3)))
        else: out += list(range(int(m.group(1)), int(m.group(2)) + 1))
    return out
def sregs(op):
    out = []
    for m in SR.finditer(op):
        if m.group(4): out.append(m.group(4))
        elif m.group(3) is not None: out.append(int(m.group(3)))
        else: out += list(range(int(m.group(1)), int(m.group(2)) + 1))
    return out
def split_ops(rest):
    ops, depth, cur = [], 0, ""
    for ch in rest:
        if ch == '[': depth += 1
        if ch == ']': depth -= 1
        if ch == ',' and depth == 0: ops.append(cur.strip()); cur = ""
        else: cur += ch
    ops.append(cur.strip())
    return ops

def fix(lines):
    out = []
    t = 0
    valu_w = {}; trans_w = {}; mfma_w = {}; mfma_c = {}; store_d = {}; valu_sw = {}; salu_m0 = -99; mfma_full = {}
    valu_exec = -99
    for line in lines:
        s = line.split(';')[0].strip()
        if not s or s.endswith(':') or s.startswith('.'):
            out.append(line); continue
        parts = s.split(None, 1)
        op = parts[0]; ops = split_ops(parts[1]) if len(parts) > 1 else []
        if op == "s_nop":
            out.append(line); t += int(ops[0], 0) + 1; continue
        need = 0
        def req(tw, ws):
            nonlocal need
            if tw is not None: need = max(need, tw + ws + 1 - t)
        is_mfma = op.startswith("v_mfma")
        is_valu = op.startswith("v_") and not is_mfma
        is_mem = op.startswith(("buffer_", "global_", "ds_", "flat_"))
        rd, wr, srd_, swr = [], [], [], []
        if is_mfma:
            wr = vregs(ops[0]); A = vregs(ops[1]); B = vregs(ops[2]); C = vregs(ops[3])
            passes = 8 if "32x32x16" in op else 4
            for r in A + B + C: req(valu_w.get(r), 2)
            for r in A + B:
                if r in mfma_w: req(mfma_w[r][0], mfma_w[r][1] + 4)
            same = C and all(mfma_full.get(r) == (tuple(C), passes) for r in C)
            if not same:
                for r in C:
                    if r in mfma_w: req(mfma_w[r][0], mfma_w[r][1] + 2)
            for r in wr:
                if r in mfma_w and mfma_full.get(r) != (tuple(wr), passes): req(mfma_w[r][0], mfma_w[r][1] + 2)
            req(valu_exec, 4)
        elif is_valu:
            dpp = "row_" in s or "quad_perm" in s or "wave_" in s
            if op.startswith(("v_cmp", "v_readlane", "v_readfirstlane")):
                swr = sregs(ops[0]); rd = sum((vregs(o) for o in ops[1:]), []); srd_ = sum((sregs(o) for o in ops[1:]), [])
                if op.startswith("v_cmpx"): swr.append("exec")
            elif op.startswith("v_permlane"):
                rd = vregs(ops[0]) + vregs(ops[1]); wr = rd
            else:
                wr = vregs(ops[0]); rd = sum((vregs(o) for o in ops[1:]), []); srd_ = sum((sregs(o) for o in ops[1:]), [])
                if op.startswith(("v_fmac", "v_pk_fmac", "v_dot2c", "v_writelane")) or dpp: rd = rd + wr
                if "_co_" in op: swr = sregs(ops[1]);
            for r in rd + wr:
                if r in mfma_w: req(mfma_w[r][0], mfma_w[r][1] + 4)
            for r in wr:
                if r in mfma_c: req(mfma_c[r][0], mfma_c[r][1] - 1)
                req(store_d.get(r), 2)
            if not op.startswith(TRANS):
                for r in rd: req(trans_w.get(r), 1)
            if op.startswith("v_permlane") or dpp:
                for r in rd: req(valu_w.get(r), 2)
                req(valu_exec, 5)
            if op.startswith(("v_readlane", "v_readfirstlane")):
                for r in rd: req(valu_w.get(r), 1)
                req(valu_exec, 4)
            for r in srd_: req(valu_sw.get(r), 4 if op.startswith(("v_readlane", "v_writelane")) else 2)
            if op.startswith("v_cndmask") and len(ops) == 3: req(valu_sw.get("vcc"), 2)
        elif is_mem:
            allv = [vregs(o) for o in ops]
            is_load = ("_load" in op or op.startswith("ds_read") or "permute" in op or "swizzle" in op) and " lds" not in (" " + s)
            ret_atomic = "atomic" in op and (" sc0" in s)
            if is_load: wr = allv[0]; rd = sum(allv[1:], [])
            else: rd = sum(allv, [])
            if is_load and "d16" in op: rd = rd + wr
            for r in rd + wr:
                if r in mfma_w: req(mfma_w[r][0], mfma_w[r][1] + 4)
            for r in rd: req(trans_w.get(r), 1)
            for r in wr: req(store_d.get(r), 1)
            if not op.startswith("ds_"):
                for o in ops:
                    for r in sregs(o): req(valu_sw.get(r), 5)
            if " lds" in (" " + s): req(salu_m0, 1)
        else:
            for o in ops:
                for r in sregs(o): req(valu_sw.get(r), 1)
        if need > 0:
            n = need
            while n > 0:
                k = min(n, 16); out.append(f"    s_nop {k-1}"); n -= k
            t += need
        out.append(line)
        if is_mfma:
            for r in wr:
                mfma_w[r] = (t, passes); mfma_full[r] = (tuple(wr), passes); valu_w.pop(r, None); trans_w.pop(r, None)
            for r in C: mfma_c[r] = (t, passes)
        elif is_valu:
            for r in wr:
                valu_w[r] = t; mfma_w.pop(r, None); mfma_full.pop(r, None)
                if op.startswith(TRANS): trans_w[r] = t
                else: trans_w.pop(r, None)
            for r in swr:
                valu_sw[r] = t
                if r == "exec": valu_exec = t
        elif is_mem:
            for r in wr:
                mfma_w.pop(r, None); mfma_full.pop(r, None); valu_w.pop(r, None); trans_w.pop(r, None)
            if ("store" in op and ("x3" in op or "x4" in op)) or op in ("ds_write_b128", "ds_write_b96"):
                dat = allv[0] if op.startswith("buffer_") else allv[1]
                for r in dat: store_d[r] = t
        else:
            if ops and ops[0] == "m0": salu_m0 = t
            if ops:
                for r in sregs(ops[0]): valu_sw.pop(r, None)
        t += 1
    return out
```

```python
import sys
from asmlib import *
from gen_g1 import gemm1, gemm2
from fftgen import *
def build(stampk=None):
    a = Asm()
    n1 = small_kernel(a, "rf_kernel", lambda a, V, sw: rf_body(a, V, sw, 0, SC=" sc1"), 16384, ST=(stampk == "rf"))
    gemm1(a, "g1_kernel", ("sc1",))
    n2 = small_kernel(a, "cp_kernel", lambda a, V, sw: cp_body(a, V, sw, 0, SC=" sc1"), 16384, ST=(stampk == "cp"))
    gemm2(a, "g2_kernel", ("sc1",))
    n3 = small_kernel(a, "fin_kernel", lambda a, V, sw: fin_body(a, V, sw, 0, SC=" sc1"), 16384, ST=(stampk == "fin"))
    print("vgprs", n1, n2, n3)
    return a
hdr = open("gated_mix__spectral_gfnet__dense_activation_gelu__prompt.s.ref").read().split("; Override launch")[0]
open("v1.s", "w").write(build().text(hdr))
for k in ("rf", "cp", "fin"):
    open(f"v1_{k}.s", "w").write(build(k).text(hdr))
```

```python
from gen_v1 import *
for n in (2, 4):
    a = build()
    a.begin_kernel("nop_kernel"); a.e("s_endpgm"); a.end_kernel("nop_kernel", 8)
    for i in range(n): a.launch("nop_kernel", 256, 256, 0)
    open(f"v1_x{n}.s", "w").write(a.text(hdr))
```

```python
from gen_v1 import *
a = build()
a.launches = a.launches + a.launches
open("v1_twice.s", "w").write(a.text(hdr))
a = build()
L = a.launches
a.launches = [L[0], L[1], L[1], L[2], L[3], L[4]]
open("v1_g1twice.s", "w").write(a.text(hdr))
a = build()
L = a.launches
a.launches = [L[0], L[0], L[1], L[2], L[3], L[4]]
open("v1_rftwice.s", "w").write(a.text(hdr))
a = build()
L = a.launches
a.launches = [L[0], L[1], L[2], L[3], L[3], L[4]]
open("v1_g2twice.s", "w").write(a.text(hdr))
a = build()
L = a.launches
a.launches = [L[0], L[1], L[2], L[3], L[4], L[4]]
open("v1_fintwice.s", "w").write(a.text(hdr))
```

```python
from asmlib import *
import math
SGN2 = "0x80008000"

class VA:
    def __init__(self, base, limit=256): self.n = base; self.limit = limit
    def get(self, k=1, align=None):
        al = align or (4 if k >= 4 else (2 if k >= 2 else 1))
        self.n = (self.n + al - 1) // al * al
        r = self.n; self.n += k
        assert self.n <= self.limit, self.n
        return r

def mfma(a, d, A, B, first):
    c = "0" if first else f"v[{d}:{d+3}]"
    a.e(f"v_mfma_f32_16x16x32_bf16 v[{d}:{d+3}], v[{A}:{A+3}], v[{B}:{B+3}], {c}")

def angles(a, step, base, consts, cs):
    for K, (c, s) in zip(consts, cs):
        if K == 0: a.e(f"v_mov_b32 v{s}, v{base}")
        else: a.e(f"v_fmamk_f32 v{s}, v{step}, {f32(K)}, v{base}")
    for K, (c, s) in zip(consts, cs):
        a.e(f"v_cos_f32 v{c}, v{s}")
        a.e(f"v_sin_f32 v{s}, v{s}")

def rot(c, s, q):
    q %= 4
    return [(f"v{c}", f"v{s}"), (f"-v{s}", f"v{c}"), (f"-v{c}", f"-v{s}"), (f"v{s}", f"-v{c}")][q]

def pk(a, d, lohi): a.e(f"v_cvt_pk_bf16_f32 v{d}, {lohi[0]}, {lohi[1]}")

def twiddle_pack(a, re, im, tw, dst, tmp):
    for j in range(4):
        c, s = tw + 2*j, tw + 2*j + 1
        a.e(f"v_mul_f32 v{tmp+2*j}, v{re+j}, v{c}")
        a.e(f"v_mul_f32 v{tmp+2*j+1}, v{im+j}, v{c}")
    for j in range(4):
        c, s = tw + 2*j, tw + 2*j + 1
        a.e(f"v_fmac_f32 v{tmp+2*j}, v{im+j}, v{s}")
        a.e(f"v_fma_f32 v{tmp+2*j+1}, -v{re+j}, v{s}, v{tmp+2*j+1}")
    for j in range(4):
        a.e(f"v_cvt_pk_bf16_f32 v{dst+j}, v{tmp+2*j}, v{tmp+2*j+1}")

def lane_consts(a, V):
    l15 = V.get(); g = V.get(); l15f = V.get(); g4f = V.get()
    a.e(f"v_and_b32 v{l15}, 15, v1")
    a.e(f"v_lshrrev_b32 v{g}, 4, v1")
    a.e(f"v_cvt_f32_u32 v{l15f}, v{l15}")
    a.e(f"v_lshlrev_b32 v{g4f}, 2, v{g}")
    a.e(f"v_cvt_f32_u32 v{g4f}, v{g4f}")
    return l15, g, l15f, g4f

def row_consts(a, V, L, inverse):
    l15, g, l15f, g4f = L
    K = {}
    K["F1re"] = V.get(4); K["F1im"] = V.get(4); K["TW"] = V.get(16)
    K["G"] = [[[V.get(4) for ro in range(2)] for bb in range(2)] for db in range(2)]
    mark = V.n
    st = V.get(); ba = V.get(); cs = [(V.get(), V.get()) for _ in range(4)]; msk = V.get()
    a.e(f"v_mul_f32 v{st}, {f32(1/16)}, v{l15f}")
    a.e(f"v_mul_f32 v{ba}, v{g4f}, v{st}")
    angles(a, st, ba, [0, 1, 2, 3], cs)
    for i, (c, s) in enumerate(cs):
        pk(a, K["F1re"] + i, rot(c, s, 0)); pk(a, K["F1im"] + i, rot(c, s, 1))
    if inverse:
        a.e(f"v_lshlrev_b32 v{msk}, 26, v1")
        a.e(f"v_and_b32 v{msk}, 0x80000000, v{msk}")
        for i in range(4):
            a.e(f"v_xor_b32 v{K['F1re']+i}, v{msk}, v{K['F1re']+i}")
            a.e(f"v_xor_b32 v{K['F1im']+i}, v{msk}, v{K['F1im']+i}")
    a.e(f"v_mul_f32 v{st}, {f32(1/512)}, v{l15f}")
    a.e(f"v_mul_f32 v{ba}, v{g4f}, v{st}")
    angles(a, st, ba, [16*bb + j for bb in range(2) for j in range(4)], [(K["TW"] + 2*i, K["TW"] + 2*i + 1) for i in range(8)])
    a.e(f"v_mul_f32 v{st}, {f32(1/32)}, v{l15f}")
    a.e(f"v_mul_f32 v{ba}, v{g4f}, v{st}")
    angles(a, st, ba, [0, 1, 2, 3], cs)
    a.e(f"v_and_b32 v{msk}, 1, v1")
    a.e(f"v_mul_u32_u24 v{msk}, 0x8000, v{msk}")
    a.e(f"v_lshl_or_b32 v{msk}, v{msk}, 16, v{msk}")
    for db in range(2):
        negim = inverse or db == 1
        for j, (c, s) in enumerate(cs):
            q = 2 * j * db
            pk(a, K["G"][db][0][0] + j, rot(c, s, q))
            pk(a, K["G"][db][0][1] + j, rot(c, s, q + 1 + (2 if negim else 0)))
        for ro in range(2):
            for j in range(4):
                a.e(f"v_xor_b32 v{K['G'][db][1][ro]+j}, v{msk}, v{K['G'][db][0][ro]+j}")
    V.n = mark
    return K

def row_fft(a, K, data, D1, P, D2, tmp):
    for bb in range(2):
        mfma(a, D1 + 8*bb, data + 4*bb, K["F1re"], True)
        mfma(a, D1 + 8*bb + 4, data + 4*bb, K["F1im"], True)
    for bb in range(2):
        twiddle_pack(a, D1 + 8*bb, D1 + 8*bb + 4, K["TW"] + 8*bb, P + 4*bb, tmp)
    for bb in range(2):
        for db in range(2):
            for ro in range(2):
                mfma(a, D2 + 8*db + 4*ro, P + 4*bb, K["G"][db][bb][ro], bb == 0)

def rf_body(a, V, sw, lds_base, SC="", bar=True):
    xd = V.get(16); gw = V.get(8)
    vo = V.get()
    srd(a, S_R1, P_X, 2048*1024*2)
    srd(a, S_R2, P_GATE, 2048)
    a.e(f"s_lshr_b32 s3, s2, 4")
    a.e(f"s_lshl_b32 s3, s3, 7")
    a.e(f"s_and_b32 s4, s2, 15")
    a.e(f"s_lshl_b32 s4, s4, 1")
    a.e(f"s_add_u32 s3, s3, s4")
    a.e(f"s_lshl_b32 s4, s{sw}, 5")
    a.e(f"s_add_u32 s20, s3, s4")
    a.e(f"s_lshl_b32 s3, s20, 11")
    a.e(f"s_add_u32 s4, s3, 2048")
    L = lane_consts(a, V)
    l15, g, l15f, g4f = L
    a.e(f"v_lshlrev_b32 v{vo}, 9, v{g}")
    a.e(f"v_lshl_add_u32 v{vo}, v{l15}, 2, v{vo}")
    for j in range(2):
        for bb in range(2):
            for i in range(4):
                a.e(f"buffer_load_dword v{xd+8*j+4*bb+i}, v{vo}, s[{S_R1}:{S_R1+3}], s{3+j} offen offset:{128*i+64*bb}")
    for bb in range(2):
        for i in range(4):
            a.e(f"buffer_load_dword v{gw+4*bb+i}, v{vo}, s[{S_R2}:{S_R2+3}], 0 offen offset:{128*i+64*bb}")
    srd(a, S_R1, P_WR, 2048*513*2)
    srd(a, S_R2, P_WI, 2048*513*2)
    wd = V.get(20); we = V.get(20); wo = V.get(4); wdl = V.get(); t0 = V.get(); t1 = V.get(); t2 = V.get()
    a.e(f"s_lshr_b32 s5, s2, 2")
    a.e(f"s_and_b32 s6, s2, 3")
    a.e(f"s_lshl_b32 s6, s6, 7")
    a.e(f"s_add_u32 s5, s5, s6")
    a.e(f"v_and_b32 v{t0}, 1, v1")
    a.e(f"v_lshlrev_b32 v{t0}, 10, v{t0}")
    a.e(f"v_add_u32 v{t0}, s5, v{t0}")
    a.e(f"v_and_b32 v{t1}, 2, v1")
    a.e(f"v_cmp_ne_u32 vcc, 0, v{t1}")
    a.e(f"v_lshrrev_b32 v{t1}, 2, v1")
    a.e(f"s_lshl_b32 s6, s{sw}, 6")
    a.e(f"v_add_u32 v{t1}, s6, v{t1}")
    a.e(f"v_sub_u32 v{t2}, 512, v{t1}")
    a.e(f"v_cndmask_b32 v{t1}, v{t1}, v{t2}, vcc")
    a.e(f"v_lshlrev_b32 v{t1}, 1, v{t1}")
    a.e(f"v_mov_b32 v{wdl}, 32")
    a.e(f"v_mov_b32 v{t2}, -32")
    a.e(f"v_cndmask_b32 v{wdl}, v{wdl}, v{t2}, vcc")
    rowb = V.get(4)
    for i in range(4):
        a.e(f"v_add_u32 v{t2}, {512*(i>>1) + 64*(i&1)}, v{t0}")
        a.e(f"v_sub_u32 v{wo+i}, 2048, v{t2}")
        a.e(f"v_and_b32 v{wo+i}, 2047, v{wo+i}")
        a.e(f"v_cndmask_b32 v{t2}, v{t2}, v{wo+i}, vcc")
        a.e(f"v_mul_u32_u24 v{rowb+i}, 1026, v{t2}")
        a.e(f"v_add_u32 v{wo+i}, v{rowb+i}, v{t1}")
    for n in range(4):
        for i in range(4):
            a.e(f"buffer_load_ushort v{wd+4*n+i}, v{wo+i}, s[{S_R1}:{S_R1+3}], 0 offen")
            a.e(f"buffer_load_ushort v{we+4*n+i}, v{wo+i}, s[{S_R2}:{S_R2+3}], 0 offen")
            if n < 3: a.e(f"v_add_u32 v{wo+i}, v{wdl}, v{wo+i}")
    a.e(f"v_bfe_u32 v{t1}, v1, 2, 1")
    a.e(f"v_lshlrev_b32 v{t1}, 8, v{t1}")
    a.e(f"v_add_u32 v{t1}, 256, v{t1}")
    a.e(f"v_sub_u32 v{t2}, 512, v{t1}")
    a.e(f"v_cndmask_b32 v{t1}, v{t1}, v{t2}, vcc")
    a.e(f"v_lshlrev_b32 v{t1}, 1, v{t1}")
    for i in range(4):
        a.e(f"v_add_u32 v{wo+i}, v{rowb+i}, v{t1}")
        a.e(f"buffer_load_ushort v{wd+16+i}, v{wo+i}, s[{S_R1}:{S_R1+3}], 0 offen")
        a.e(f"buffer_load_ushort v{we+16+i}, v{wo+i}, s[{S_R2}:{S_R2+3}], 0 offen")
    NW = 40
    K = row_consts(a, V, L, False)
    D1 = V.get(16); P = V.get(8); D2 = V.get(16); tmp = V.get(16); ob = V.get(16); la = V.get()
    gf = V.get(16); acc = V.get(2)
    a.e(f"v_lshlrev_b32 v{la}, 6, v{l15}")
    a.e(f"v_lshl_add_u32 v{la}, v{g}, 4, v{la}")
    a.e(f"s_lshl_b32 s6, s{sw}, 11")
    a.e(f"s_add_u32 s6, s6, {lds_base}")
    a.e(f"v_add_u32 v{la}, s6, v{la}")
    a.e(f"s_waitcnt vmcnt({NW + 8})")
    for j in range(2):
        row_fft(a, K, xd + 8*j, D1, P, D2, tmp)
        for db in range(2):
            for jj in range(4):
                a.e(f"v_cvt_pk_bf16_f32 v{ob+8*j+4*db+jj}, v{D2+8*db+jj}, v{D2+8*db+4+jj}")
            a.e(f"ds_write_b128 v{la}, v[{ob+8*j+4*db}:{ob+8*j+4*db+3}] offset:{j*8192 + db*1024}")
    a.e(f"s_waitcnt vmcnt({NW})")
    for i in range(8):
        a.e(f"v_lshlrev_b32 v{gf+2*i}, 16, v{gw+i}")
        a.e(f"v_and_b32 v{gf+2*i+1}, 0xffff0000, v{gw+i}")
    a.e(f"v_mov_b32 v{t0}, 0x3f803f80")
    for j in range(2):
        for i in range(8):
            a.e(f"v_lshlrev_b32 v{tmp+2*i}, 16, v{xd+8*j+i}")
            a.e(f"v_and_b32 v{tmp+2*i+1}, 0xffff0000, v{xd+8*j+i}")
        for i in range(8):
            a.e(f"v_pk_mul_f32 v[{tmp+2*i}:{tmp+2*i+1}], v[{tmp+2*i}:{tmp+2*i+1}], v[{gf+2*i}:{gf+2*i+1}]")
        for i in range(8):
            a.e(f"v_cvt_pk_bf16_f32 v{tmp+2*i}, v{tmp+2*i}, v{tmp+2*i+1}")
        a.e(f"v_mov_b32 v{acc+j}, 0")
        for i in range(8):
            a.e(f"v_dot2_f32_bf16 v{acc+j}, v{tmp+2*i}, v{t0}, v{acc+j}")
        a.e("s_nop 2")
    for ctl in ("row_shr:1 bound_ctrl:0", "row_shr:2 bound_ctrl:0", "row_shr:4 bound_ctrl:0", "row_shr:8 bound_ctrl:0",
                "row_bcast:15 row_mask:0xa", "row_bcast:31 row_mask:0xc"):
        for j in range(2):
            a.e(f"v_add_f32_dpp v{acc+j}, v{acc+j}, v{acc+j} {ctl}")
    a.e(f"v_cvt_pk_bf16_f32 v{t1}, v{acc}, v{acc+1}")
    a.e(f"v_lshlrev_b32 v{acc}, 16, v{t1}")
    a.e(f"v_and_b32 v{acc+1}, 0xffff0000, v{t1}")
    for j in range(2):
        a.e(f"v_mul_f32 v{acc+j}, {f32(-math.log2(math.e))}, v{acc+j}")
    for j in range(2): a.e(f"v_exp_f32 v{acc+j}, v{acc+j}")
    for j in range(2): a.e(f"v_add_f32 v{acc+j}, 1.0, v{acc+j}")
    for j in range(2): a.e(f"v_rcp_f32 v{acc+j}, v{acc+j}")
    a.e(f"v_cvt_pk_bf16_f32 v{t1}, v{acc}, v{acc+1}")
    a.e(f"v_lshlrev_b32 v{acc}, 16, v{t1}")
    a.e(f"v_and_b32 v{acc+1}, 0xffff0000, v{t1}")
    a.e(f"s_lshl_b32 s6, s20, 2")
    a.e(f"s_add_u32 s6, s6, {G_OFF}")
    a.e(f"v_mov_b32 v{t1}, 0")
    a.e(f"s_mov_b64 s[22:23], exec")
    a.e(f"s_lshl_b64 exec, 1, 63")
    a.e(f"buffer_store_dwordx2 v[{acc}:{acc+1}], v{t1}, s[{S_WS}:{S_WS+3}], s6 offen{SC}")
    a.e(f"s_mov_b64 exec, s[22:23]")
    a.e(f"s_lshr_b32 s5, s2, 6")
    a.e(f"s_lshl_b32 s5, s5, 12")
    a.e(f"s_and_b32 s6, s2, 3")
    a.e(f"s_lshl_b32 s6, s6, 10")
    a.e(f"s_add_u32 s5, s5, s6")
    a.e(f"s_bfe_u32 s6, s2, 0x40002")
    a.e(f"s_lshl_b32 s6, s6, 6")
    a.e(f"s_add_u32 s5, s5, s6")
    a.e(f"s_add_u32 s5, s5, {WT_OFF}")
    a.e(f"s_lshl_b32 s6, s{sw}, 20")
    a.e(f"s_add_u32 s6, s6, s5")
    so = V.get()
    a.e(f"v_lshrrev_b32 v{so}, 2, v1")
    a.e(f"v_lshlrev_b32 v{so}, 14, v{so}")
    a.e(f"v_and_b32 v{t1}, 3, v1")
    a.e(f"v_lshl_add_u32 v{so}, v{t1}, 4, v{so}")
    a.e(f"s_waitcnt vmcnt(1)")
    for i in range(20):
        a.e(f"v_lshl_or_b32 v{wd+i}, v{we+i}, 16, v{wd+i}")
    for n in range(4):
        a.e(f"buffer_store_dwordx4 v[{wd+4*n}:{wd+4*n+3}], v{so}, s[{S_WS}:{S_WS+3}], s6 offen{SC}")
        a.e(f"s_add_u32 s6, s6, {16*16384}")
    a.e(f"s_add_u32 s5, s5, {256*16384}")
    a.e(f"s_cmp_eq_u32 s{sw}, 0")
    a.e(f"s_cselect_b64 exec, 0xff, 0")
    Ls = a.newlabel("Lskip")
    a.e(f"s_cbranch_execz {Ls}")
    a.e(f"buffer_store_dwordx4 v[{wd+16}:{wd+19}], v{so}, s[{S_WS}:{S_WS+3}], s5 offen{SC}")
    a.label(Ls)
    a.e(f"s_mov_b64 exec, -1")
    if bar is True:
        a.e("s_waitcnt lgkmcnt(0)")
        a.e("s_barrier")
    else: bar(tmp)
    a.e(f"v_lshrrev_b32 v{t0}, 2, v1")
    a.e(f"s_lshl_b32 s6, s{sw}, 6")
    a.e(f"v_add_u32 v{t0}, s6, v{t0}")
    a.e(f"v_sub_u32 v{t1}, 512, v{t0}")
    a.e(f"v_and_b32 v{t2}, 1, v1")
    a.e(f"v_cmp_ne_u32 vcc, 0, v{t2}")
    a.e(f"v_cndmask_b32 v{t0}, v{t0}, v{t1}, vcc")
    a.e(f"v_mov_b32 v{wdl}, 64")
    a.e(f"v_mov_b32 v{t1}, -64")
    a.e(f"v_cndmask_b32 v{wdl}, v{wdl}, v{t1}, vcc")
    a.e(f"v_lshlrev_b32 v{t0}, 2, v{t0}")
    a.e(f"v_and_b32 v{t2}, 2, v1")
    a.e(f"v_lshlrev_b32 v{t2}, 12, v{t2}")
    a.e(f"v_add_u32 v{t2}, {lds_base}, v{t2}")
    a.e(f"v_add_u32 v{wo+1}, v{t0}, v{t2}")
    a.e(f"v_mov_b32 v{t1}, 1024")
    a.e(f"v_cmp_eq_u32 vcc, 2048, v{t0}")
    a.e(f"v_cndmask_b32 v{t1}, v{t0}, v{t1}, vcc")
    a.e(f"v_add_u32 v{wo}, v{t1}, v{t2}")
    a.e(f"v_add_u32 v{wo+1}, v{wdl}, v{wo+1}")
    a.e(f"v_add_u32 v{wo+2}, v{wdl}, v{wo+1}")
    a.e(f"v_add_u32 v{wo+3}, v{wdl}, v{wo+2}")
    for n in range(4):
        a.e(f"ds_read2st64_b32 v[{ob+4*n}:{ob+4*n+1}], v{wo+n} offset0:0 offset1:8")
        a.e(f"ds_read2st64_b32 v[{ob+4*n+2}:{ob+4*n+3}], v{wo+n} offset0:16 offset1:24")
    a.e(f"s_lshr_b32 s5, s2, 4")
    a.e(f"s_lshl_b32 s5, s5, 10")
    a.e(f"s_and_b32 s6, s2, 15")
    a.e(f"s_lshl_b32 s6, s6, 6")
    a.e(f"s_add_u32 s5, s5, s6")
    a.e(f"s_add_u32 s5, s5, {Z1_OFF}")
    a.e(f"s_lshl_b32 s6, s{sw}, 20")
    a.e(f"s_add_u32 s6, s6, s5")
    for n in range(4):
        a.e(f"s_waitcnt lgkmcnt({6 - 2*n})")
        a.e(f"buffer_store_dwordx4 v[{ob+4*n}:{ob+4*n+3}], v{so}, s[{S_WS}:{S_WS+3}], s6 offen{SC}")
        a.e(f"s_add_u32 s6, s6, {16*16384}")


def cp_body(a, V, sw, lds_base, SCL="", SC="", bar=True, p_s=2, hook=None, sy=None):
    L = lane_consts(a, V)
    l15, g, l15f, g4f = L
    X = V.get(64)
    Wd = V.get(16)
    vo = V.get(); vw = V.get()
    a.e(f"v_lshlrev_b32 v{vo}, 10, v{g}")
    a.e(f"v_lshl_add_u32 v{vo}, v{l15}, 5, v{vo}")
    a.e(f"s_lshl_b32 s3, s{p_s}, 14")
    a.e(f"s_add_u32 s20, s3, {Z1_OFF}")
    for t in range(1, 4): a.e(f"s_add_u32 s{20+t}, s20, {4096*t}")
    def xr(sig, bb, t): return X + ((sig*2 + bb)*4 + t)*4
    for sig in range(2):
        for bb in range(2):
            for t in range(4):
                r = xr(sig, bb, t)
                a.e(f"buffer_load_dwordx4 v[{r}:{r+3}], v{vo}, s[{S_WS}:{S_WS+3}], s{20+t} offen offset:{512*bb+16*sig}{SCL}")
    a.e(f"v_lshlrev_b32 v{vw}, 6, v1")
    a.e(f"s_lshl_b32 s4, s{sw}, 12")
    a.e(f"s_add_u32 s4, s4, s3")
    a.e(f"s_add_u32 s4, s4, {WT_OFF}")
    for q in range(4):
        a.e(f"buffer_load_dwordx4 v[{Wd+4*q}:{Wd+4*q+3}], v{vw}, s[{S_WS}:{S_WS+3}], s4 offen offset:{16*q}{SCL}")
    K1 = [[V.get(4) for ro in range(2)] for t in range(4)]
    TW = V.get(16)
    K2 = [[V.get(4) for bb in range(2)] for blk in range(4)]
    D = V.get(32); P = V.get(16); tmp = V.get(16)
    st = V.get(); ba = V.get(); cf = V.get(); msk = V.get()
    cs = [(tmp + 2*i, tmp + 2*i + 1) for i in range(8)]
    a.e(f"s_lshl_b32 s5, s{sw}, 4")
    a.e(f"v_add_u32 v{cf}, s5, v{l15}")
    a.e(f"v_cvt_f32_u32 v{cf}, v{cf}")
    a.e(f"v_and_b32 v{msk}, 1, v1")
    a.e(f"v_mul_u32_u24 v{msk}, 0x8000, v{msk}")
    a.e(f"v_lshl_or_b32 v{msk}, v{msk}, 16, v{msk}")
    a.e(f"v_mul_f32 v{st}, {f32(1/64)}, v{cf}")
    a.e(f"v_mul_f32 v{ba}, v{g4f}, v{st}")
    angles(a, st, ba, [16*t + i for t in range(2) for i in range(4)], cs)
    for t in range(2):
        for i in range(4):
            c, s = cs[4*t + i]
            pk(a, K1[t][0] + i, rot(c, s, 0)); pk(a, K1[t][1] + i, rot(c, s, 1))
        for ro in range(2):
            for i in range(4):
                a.e(f"v_xor_b32 v{K1[t+2][ro]+i}, v{msk}, v{K1[t][ro]+i}")
    if hook: hook(tmp)
    a.e(f"v_mul_f32 v{st}, {f32(1/2048)}, v{cf}")
    a.e(f"v_mul_f32 v{ba}, v{g4f}, v{st}")
    angles(a, st, ba, [16*bb + j for bb in range(2) for j in range(4)], [(TW + 2*i, TW + 2*i + 1) for i in range(8)])
    m2 = V.get()
    a.e(f"v_lshrrev_b32 v{st}, 1, v{l15}")
    a.e(f"v_cvt_f32_u32 v{st}, v{st}")
    a.e(f"v_mul_f32 v{st}, {f32(1/32)}, v{st}")
    a.e(f"v_and_b32 v{ba}, 1, v1")
    a.e(f"v_cvt_f32_u32 v{ba}, v{ba}")
    a.e(f"v_mul_f32 v{ba}, {f32(0.25)}, v{ba}")
    a.e(f"v_fmac_f32 v{ba}, v{g4f}, v{st}")
    angles(a, st, ba, [0, 1, 2, 3], cs[:4])
    a.e(f"v_bfe_u32 v{m2}, v1, 1, 1")
    a.e(f"v_mul_u32_u24 v{m2}, 0x8000, v{m2}")
    a.e(f"v_lshl_or_b32 v{m2}, v{m2}, 16, v{m2}")
    for blk in range(4):
        for j in range(4):
            c, s = cs[j]
            pk(a, K2[blk][0] + j, rot(c, s, j * blk))
        for j in range(4):
            a.e(f"v_xor_b32 v{K2[blk][1]+j}, v{m2}, v{K2[blk][0]+j}")
    def dr(sig, bb, ro): return D + ((sig*2 + bb)*2 + ro)*4
    for sig in range(2):
        a.e(f"s_waitcnt vmcnt({12 - 8*sig})")
        for bb in range(2):
            for t in range(4):
                for ro in range(2):
                    mfma(a, dr(sig, bb, ro), xr(sig, bb, t), K1[t][ro], t == 0)
    for sig in range(2):
        for bb in range(2):
            twiddle_pack(a, dr(sig, bb, 0), dr(sig, bb, 1), TW + 8*bb, P + (sig*2 + bb)*4, tmp)
    def fr(sig, blk): return D + (sig*4 + blk)*4
    for sig in range(2):
        for bb in range(2):
            for blk in range(4):
                mfma(a, fr(sig, blk), K2[blk][bb], P + (sig*2 + bb)*4, bb == 0)
    K3 = [[[X + ((bb*2 + u)*2 + ro)*4 for ro in range(2)] for u in range(2)] for bb in range(2)]
    a.e(f"v_mul_f32 v{st}, {f32(1/32)}, v{l15f}")
    a.e(f"v_mul_f32 v{ba}, 0.5, v{g4f}")
    a.e(f"v_mul_f32 v{ba}, v{ba}, v{st}")
    angles(a, st, ba, [0, 1, 8, 9], cs[:4])
    for bb in range(2):
        for sl in range(4):
            c, s = cs[sl]
            q = 2 * bb * (sl & 1)
            pk(a, K3[bb][0][0] + sl, rot(c, s, q)); pk(a, K3[bb][0][1] + sl, rot(c, s, q + 1))
        for ro in range(2):
            for sl in range(4):
                a.e(f"v_xor_b32 v{K3[bb][1][ro]+sl}, v{msk}, v{K3[bb][0][ro]+sl}")
    h = 0.5 / (2048 * 512)
    a.e(f"v_cvt_f32_u32 v{cf}, s5")
    a.e(f"v_add_f32 v{cf}, v{cf}, v{g4f}")
    for bb in range(2):
        a.e(f"v_add_f32 v{st}, {f32(16.0*bb)}, v{l15f}")
        a.e(f"v_mul_f32 v{st}, {f32(1/2048)}, v{st}")
        a.e(f"v_mul_f32 v{ba}, v{cf}, v{st}")
        angles(a, st, ba, [0, 1, 2, 3], [(TW + 8*bb + 2*i, TW + 8*bb + 2*i + 1) for i in range(4)])
    for i in range(16):
        a.e(f"v_mul_f32 v{TW+i}, {f32(h)}, v{TW+i}")
    Lsp = a.newlabel("Lspecial"); Ljoin = a.newlabel("Ljoin")
    sc = X + 32
    w = X + 36
    a.e(f"s_cmp_eq_u32 s{p_s}, 0")
    a.e(f"s_cbranch_scc1 {Lsp}")
    a.e(f"v_cvt_f32_u32 v{st}, s{p_s}")
    a.e(f"v_mul_f32 v{st}, {f32(1/1024)}, v{st}")
    a.e(f"v_sin_f32 v{sc}, v{st}")
    a.e(f"v_cos_f32 v{sc+2}, v{st}")
    a.e(f"v_sin_f32 v{sc+1}, v{st}")
    a.e(f"v_cos_f32 v{sc+3}, v{st}")
    a.e(f"s_waitcnt vmcnt(0)")
    def pr(x): return f"v[{x}:{x+1}]"
    for i8 in range(8):
        F = fr(0, i8 >> 1) + 2*(i8 & 1); G = fr(1, i8 >> 1) + 2*(i8 & 1)
        o = w + 14*(i8 & 1) if False else w
        wp, wq, S, Df, a1, a2, be, zp, rr = [w + 2*k for k in range(9)]
        a.e(f"v_lshlrev_b32 v{wp}, 16, v{Wd+i8}")
        a.e(f"v_and_b32 v{wp+1}, 0xffff0000, v{Wd+i8}")
        a.e(f"v_lshlrev_b32 v{wq}, 16, v{Wd+8+i8}")
        a.e(f"v_and_b32 v{wq+1}, 0xffff0000, v{Wd+8+i8}")
        a.e(f"v_pk_add_f32 {pr(S)}, {pr(wp)}, {pr(wq)} neg_hi:[0,1]")
        a.e(f"v_pk_add_f32 {pr(Df)}, {pr(wp)}, {pr(wq)} neg_lo:[0,1]")
        a.e(f"v_pk_fma_f32 {pr(a1)}, {pr(Df)}, {pr(sc)}, {pr(S)} neg_lo:[1,0,0] neg_hi:[1,0,0]")
        a.e(f"v_pk_fma_f32 {pr(a2)}, {pr(Df)}, {pr(sc)}, {pr(S)}")
        a.e(f"v_pk_mul_f32 {pr(be)}, {pr(Df)}, {pr(sc+2)}")
        a.e(f"v_pk_mul_f32 {pr(zp)}, {pr(a1)}, {pr(F)} op_sel:[0,0] op_sel_hi:[0,1]")
        a.e(f"v_pk_mul_f32 {pr(rr)}, {pr(a2)}, {pr(G)} op_sel:[0,0] op_sel_hi:[0,1]")
        a.e(f"v_pk_fma_f32 {pr(zp)}, {pr(a1)}, {pr(F)}, {pr(zp)} op_sel:[1,1,0] op_sel_hi:[1,0,1] neg_lo:[0,1,0]")
        a.e(f"v_pk_fma_f32 {pr(rr)}, {pr(a2)}, {pr(G)}, {pr(rr)} op_sel:[1,1,0] op_sel_hi:[1,0,1] neg_lo:[0,1,0]")
        a.e(f"v_pk_fma_f32 {pr(zp)}, {pr(be)}, {pr(G)}, {pr(zp)} op_sel:[0,1,0] op_sel_hi:[0,0,1] neg_lo:[0,1,0]")
        a.e(f"v_pk_fma_f32 {pr(rr)}, {pr(be)}, {pr(F)}, {pr(rr)} op_sel:[0,1,0] op_sel_hi:[0,0,1] neg_hi:[0,1,0]")
        a.e(f"v_pk_fma_f32 {pr(zp)}, {pr(be)}, {pr(G)}, {pr(zp)} op_sel:[1,0,0] op_sel_hi:[1,1,1] neg_lo:[0,1,0] neg_hi:[0,1,0]")
        a.e(f"v_pk_fma_f32 {pr(rr)}, {pr(be)}, {pr(F)}, {pr(rr)} op_sel:[1,0,0] op_sel_hi:[1,1,1]")
        a.e(f"v_cvt_pk_bf16_f32 v{P+i8}, v{zp}, -v{zp+1}")
        a.e(f"v_cvt_pk_bf16_f32 v{P+8+i8}, v{rr}, -v{rr+1}")
    a.e(f"s_branch {Ljoin}")
    a.label(Lsp)
    E1 = K2[0][0]
    E2 = E1 + 16
    a.e(f"s_add_u32 s4, s4, {256*16384}")
    for q in range(2):
        a.e(f"buffer_load_dwordx4 v[{E1+4*q}:{E1+4*q+3}], v{vw}, s[{S_WS}:{S_WS+3}], s4 offen offset:{16*q}{SCL}")
    a.e(f"s_add_u32 s4, s4, 16384")
    for q in range(4):
        a.e(f"buffer_load_dwordx4 v[{E2+4*q}:{E2+4*q+3}], v{vw}, s[{S_WS}:{S_WS+3}], s4 offen offset:{16*q}{SCL}")
    ka = w; kb = w + 1
    a.e(f"v_lshlrev_b32 v{ka}, 7, v{g}")
    a.e(f"v_add3_u32 v{ka}, v{ka}, v{l15}, s5")
    a.e(f"v_sub_u32 v{kb}, 2048, v{ka}")
    a.e(f"v_lshlrev_b32 v{ka}, 3, v{ka}")
    a.e(f"v_add_u32 v{ka}, {lds_base}, v{ka}")
    for i8 in range(8):
        F = fr(0, i8 >> 1) + 2*(i8 & 1)
        a.e(f"ds_write_b64 v{ka}, {pr(F)} offset:{(512*(i8>>1) + 64*(i8&1))*8}")
    if bar is True:
        a.e("s_waitcnt lgkmcnt(0)")
        a.e("s_barrier")
    else: sy.cbar_alt(a, tmp, 1)
    Y = X + 48
    for i8 in range(8):
        a.e(f"v_subrev_u32 v{ka}, {512*(i8>>1) + 64*(i8&1)}, v{kb}")
        a.e(f"v_and_b32 v{ka}, 2047, v{ka}")
        a.e(f"v_lshlrev_b32 v{ka}, 3, v{ka}")
        a.e(f"v_add_u32 v{ka}, {lds_base}, v{ka}")
        a.e(f"ds_read_b64 {pr(Y+2*i8)}, v{ka}")
    a.e("s_waitcnt vmcnt(0) lgkmcnt(0)")
    if bar is True: a.e("s_barrier")
    else: sy.cbar_alt(a, tmp, 2)
    for i8 in range(8):
        F = fr(0, i8 >> 1) + 2*(i8 & 1); G = fr(1, i8 >> 1) + 2*(i8 & 1); Yr = Y + 2*i8
        u0, u1, S, Df, zp, rr = [w + 2*k for k in range(6)]
        def unp(d, s_):
            a.e(f"v_lshlrev_b32 v{d}, 16, v{s_}")
            a.e(f"v_and_b32 v{d+1}, 0xffff0000, v{s_}")
        unp(u0, Wd + i8); unp(u1, E2 + 8 + i8)
        a.e(f"v_pk_add_f32 {pr(S)}, {pr(u0)}, {pr(u1)} neg_hi:[0,1]")
        unp(u0, E2 + i8); unp(u1, Wd + 8 + i8)
        a.e(f"v_pk_add_f32 {pr(Df)}, {pr(u0)}, {pr(u1)} neg_hi:[0,1]")
        a.e(f"v_pk_add_f32 {pr(u0)}, {pr(S)}, {pr(Df)}")
        a.e(f"v_pk_add_f32 {pr(u1)}, {pr(S)}, {pr(Df)} neg_lo:[0,1] neg_hi:[0,1]")
        a.e(f"v_pk_mul_f32 {pr(zp)}, {pr(u0)}, {pr(F)} op_sel:[0,0] op_sel_hi:[0,1]")
        a.e(f"v_pk_fma_f32 {pr(zp)}, {pr(u0)}, {pr(F)}, {pr(zp)} op_sel:[1,1,0] op_sel_hi:[1,0,1] neg_lo:[0,1,0]")
        a.e(f"v_pk_fma_f32 {pr(zp)}, {pr(u1)}, {pr(Yr)}, {pr(zp)} op_sel:[0,1,0] op_sel_hi:[0,0,1]")
        a.e(f"v_pk_fma_f32 {pr(zp)}, {pr(u1)}, {pr(Yr)}, {pr(zp)} op_sel:[1,0,0] op_sel_hi:[1,1,1] neg_lo:[0,1,0]")
        a.e(f"v_mul_f32 v{zp}, 0.5, v{zp}")
        a.e(f"v_mul_f32 v{zp+1}, 0.5, v{zp+1}")
        unp(u0, E1 + i8)
        a.e(f"v_pk_mul_f32 {pr(rr)}, {pr(u0)}, {pr(G)} op_sel:[0,0] op_sel_hi:[0,1]")
        a.e(f"v_pk_fma_f32 {pr(rr)}, {pr(u0)}, {pr(G)}, {pr(rr)} op_sel:[1,1,0] op_sel_hi:[1,0,1] neg_lo:[0,1,0]")
        a.e(f"v_add_f32 v{rr}, v{rr}, v{rr}")
        a.e(f"v_add_f32 v{rr+1}, v{rr+1}, v{rr+1}")
        a.e(f"v_cvt_pk_bf16_f32 v{P+i8}, v{zp}, -v{zp+1}")
        a.e(f"v_cvt_pk_bf16_f32 v{P+8+i8}, v{rr}, -v{rr+1}")
    a.label(Ljoin)
    a.e("s_nop 1")
    for sig in range(2):
        for bb in range(2):
            for u in range(2):
                for ro in range(2):
                    mfma(a, dr(sig, bb, ro), P + sig*8 + 4*u, K3[bb][u][ro], u == 0)
    la = st
    a.e(f"s_lshl_b32 s6, s{sw}, 2")
    a.e(f"v_add_u32 v{la}, s6, v{g}")
    a.e(f"v_xor_b32 v{la}, v{la}, v{l15}")
    a.e(f"v_lshlrev_b32 v{la}, 4, v{la}")
    a.e(f"v_lshl_add_u32 v{la}, v{l15}, 8, v{la}")
    a.e(f"v_add_u32 v{la}, {lds_base}, v{la}")
    O = K2[0][0]
    for sig in range(2):
        for bb in range(2):
            o = O + (sig*2 + bb)*4
            twiddle_pack(a, dr(sig, bb, 0), dr(sig, bb, 1), TW + 8*bb, o, tmp)
            a.e(f"ds_write_b128 v{la}, v[{o}:{o+3}] offset:{sig*8192 + bb*4096}")
    ra = [tmp + i for i in range(4)]
    a.e(f"v_xor_b32 v{ra[0]}, v{g}, v{l15}")
    a.e(f"v_lshlrev_b32 v{ra[0]}, 4, v{ra[0]}")
    a.e(f"v_lshl_add_u32 v{ra[0]}, v{l15}, 8, v{ra[0]}")
    a.e(f"v_add_u32 v{ra[0]}, {lds_base}, v{ra[0]}")
    for t in range(1, 4): a.e(f"v_xor_b32 v{ra[t]}, {64*t}, v{ra[0]}")
    if bar is True:
        a.e("s_waitcnt lgkmcnt(0)")
        a.e("s_barrier")
    else: bar(tmp + 8)
    for sig in range(2):
        for bb in range(2):
            for t in range(4):
                r = xr(sig, bb, t)
                a.e(f"ds_read_b128 v[{r}:{r+3}], v{ra[t]} offset:{sig*8192 + bb*4096}")
    a.e(f"v_lshlrev_b32 v{vo}, 8, v{l15}")
    a.e(f"v_lshl_add_u32 v{vo}, v{g}, 4, v{vo}")
    a.e(f"s_lshl_b32 s4, s{sw}, 12")
    a.e(f"s_add_u32 s4, s4, s3")
    a.e(f"s_add_u32 s4, s4, {Z2_OFF}")
    for sig in range(2):
        for bb in range(2):
            a.e(f"s_waitcnt lgkmcnt({12 - 4*(sig*2+bb)})")
            for t in range(4):
                for ro in range(2):
                    mfma(a, dr(sig, bb, ro), xr(sig, bb, t), K1[t][ro], t == 0)
    for sig in range(2):
        for bb in range(2):
            o = O + (sig*2 + bb)*4
            for j in range(4):
                a.e(f"v_cvt_pk_bf16_f32 v{o+j}, v{dr(sig,bb,0)+j}, v{dr(sig,bb,1)+j}")
            a.e(f"buffer_store_dwordx4 v[{o}:{o+3}], v{vo}, s[{S_WS}:{S_WS+3}], s4 offen offset:{bb*128+sig*64}{SC}")

def fin_body(a, V, sw, lds_base, NSPLIT=4, SCL="", SC=""):
    L = lane_consts(a, V)
    l15, g, l15f, g4f = L
    zd = V.get(16); vo = V.get(); t0 = V.get(); t1 = V.get(); t2 = V.get(); wa = V.get(4); dl = V.get()
    a.e(f"v_lshrrev_b32 v{vo}, 2, v1")
    a.e(f"v_lshlrev_b32 v{vo}, 14, v{vo}")
    a.e(f"v_and_b32 v{t0}, 2, v1")
    a.e(f"v_lshl_add_u32 v{vo}, v{t0}, 5, v{vo}")
    a.e(f"v_and_b32 v{t0}, 1, v1")
    a.e(f"v_lshl_add_u32 v{vo}, v{t0}, 4, v{vo}")
    a.e(f"s_lshr_b32 s3, s2, 1")
    a.e(f"s_lshl_b32 s3, s3, 7")
    a.e(f"s_and_b32 s4, s2, 1")
    a.e(f"s_lshl_b32 s4, s4, 5")
    a.e(f"s_add_u32 s3, s3, s4")
    a.e(f"s_add_u32 s3, s3, {Z2_OFF}")
    a.e(f"s_lshl_b32 s4, s{sw}, 20")
    a.e(f"s_add_u32 s3, s3, s4")
    for n in range(4):
        a.e(f"buffer_load_dwordx4 v[{zd+4*n}:{zd+4*n+3}], v{vo}, s[{S_WS}:{S_WS+3}], s3 offen{SCL}")
        a.e(f"s_add_u32 s3, s3, {16*16384}")
    pd = V.get(16*NSPLIT); b2 = V.get(8); gv = V.get(2); po = V.get(); oo = V.get()
    a.e(f"v_lshlrev_b32 v{po}, 10, v{l15}")
    a.e(f"v_lshl_add_u32 v{po}, v{g}, 4, v{po}")
    a.e(f"s_lshl_b32 s20, s2, 3")
    a.e(f"s_lshl_b32 s4, s{sw}, 1")
    a.e(f"s_add_u32 s20, s20, s4")
    a.e(f"s_lshr_b32 s4, s20, 4")
    a.e(f"s_lshl_b32 s4, s4, 15")
    a.e(f"s_and_b32 s5, s20, 15")
    a.e(f"s_lshl_b32 s5, s5, 6")
    a.e(f"s_add_u32 s4, s4, s5")
    a.e(f"s_add_u32 s4, s4, {P_OFF}")
    def pdr(j, db, ks): return pd + ((j*2 + db)*NSPLIT + ks)*4
    for db in range(2):
        for ks in range(NSPLIT):
            a.e(f"s_add_u32 s5, s4, {db*16384 + ks*(4<<20)}")
            for j in range(2):
                r = pdr(j, db, ks)
                a.e(f"buffer_load_dwordx4 v[{r}:{r+3}], v{po}, s[{S_WS}:{S_WS+3}], s5 offen offset:{64*j}{SCL}")
    srd(a, S_R1, P_B2, 2048)
    srd(a, S_R2, P_OUT, 2048*1024*2)
    a.e(f"v_lshlrev_b32 v{oo}, 6, v{l15}")
    a.e(f"v_lshl_add_u32 v{oo}, v{g}, 4, v{oo}")
    for db in range(2):
        a.e(f"buffer_load_dwordx4 v[{b2+4*db}:{b2+4*db+3}], v{oo}, s[{S_R1}:{S_R1+3}], 0 offen offset:{1024*db}")
    a.e(f"s_lshl_b32 s5, s20, 2")
    a.e(f"s_add_u32 s5, s5, {G_OFF}")
    a.e(f"v_mov_b32 v{t0}, 0")
    a.e(f"buffer_load_dwordx2 v[{gv}:{gv+1}], v{t0}, s[{S_WS}:{S_WS+3}], s5 offen{SCL}")
    NL = 4*NSPLIT + 3
    a.e(f"v_lshrrev_b32 v{t0}, 2, v1")
    a.e(f"s_lshl_b32 s6, s{sw}, 6")
    a.e(f"v_add_u32 v{t0}, s6, v{t0}")
    a.e(f"v_sub_u32 v{t1}, 512, v{t0}")
    a.e(f"v_and_b32 v{t2}, 2, v1")
    a.e(f"v_cmp_ne_u32 vcc, 0, v{t2}")
    a.e(f"v_cndmask_b32 v{t0}, v{t0}, v{t1}, vcc")
    a.e(f"v_mov_b32 v{dl}, 64")
    a.e(f"v_mov_b32 v{t1}, -64")
    a.e(f"v_cndmask_b32 v{dl}, v{dl}, v{t1}, vcc")
    a.e(f"v_lshlrev_b32 v{t0}, 2, v{t0}")
    a.e(f"v_and_b32 v{t2}, 1, v1")
    a.e(f"v_lshlrev_b32 v{t2}, 13, v{t2}")
    a.e(f"v_add_u32 v{t2}, {lds_base}, v{t2}")
    a.e(f"v_add_u32 v{wa+1}, v{t0}, v{t2}")
    a.e(f"v_mov_b32 v{t1}, 1024")
    a.e(f"v_cmp_eq_u32 vcc, 2048, v{t0}")
    a.e(f"v_cndmask_b32 v{t1}, v{t0}, v{t1}, vcc")
    a.e(f"v_add_u32 v{wa}, v{t1}, v{t2}")
    a.e(f"v_add_u32 v{wa+1}, v{dl}, v{wa+1}")
    a.e(f"v_add_u32 v{wa+2}, v{dl}, v{wa+1}")
    a.e(f"v_add_u32 v{wa+3}, v{dl}, v{wa+2}")
    K = row_consts(a, V, L, True)
    xd = zd; D1 = V.get(16); P = V.get(8); D2 = V.get(16); tmp = V.get(16); b2f = V.get(16); ra = V.get()
    for n in range(4):
        a.e(f"s_waitcnt vmcnt({NL + 3 - n})")
        a.e(f"ds_write2st64_b32 v{wa+n}, v{zd+4*n}, v{zd+4*n+1} offset0:0 offset1:8")
        a.e(f"ds_write2st64_b32 v{wa+n}, v{zd+4*n+2}, v{zd+4*n+3} offset0:16 offset1:24")
    a.e(f"v_lshlrev_b32 v{ra}, 9, v{g}")
    a.e(f"v_lshl_add_u32 v{ra}, v{l15}, 2, v{ra}")
    a.e(f"s_lshl_b32 s6, s{sw}, 12")
    a.e(f"s_add_u32 s6, s6, {lds_base}")
    a.e(f"v_add_u32 v{ra}, s6, v{ra}")
    a.e(f"v_add_u32 v{t0}, 2048, v{ra}")
    a.e("s_waitcnt lgkmcnt(0)")
    a.e("s_barrier")
    for j in range(2):
        ad = ra if j == 0 else t0
        for bb in range(2):
            r = xd + 8*j + 4*bb
            a.e(f"ds_read2_b32 v[{r}:{r+1}], v{ad} offset0:{16*bb} offset1:{16*bb+32}")
            a.e(f"ds_read2_b32 v[{r+2}:{r+3}], v{ad} offset0:{16*bb+64} offset1:{16*bb+96}")
    a.e(f"s_waitcnt vmcnt(0)")
    for i in range(8):
        a.e(f"v_lshlrev_b32 v{b2f+2*i}, 16, v{b2+i}")
        a.e(f"v_and_b32 v{b2f+2*i+1}, 0xffff0000, v{b2+i}")
    og = V.get(2)
    a.e(f"v_sub_f32 v{og}, 1.0, v{gv}")
    a.e(f"v_sub_f32 v{og+1}, 1.0, v{gv+1}")
    a.e(f"v_cvt_pk_bf16_f32 v{t1}, v{og}, v{og+1}")
    a.e(f"v_lshlrev_b32 v{og}, 16, v{t1}")
    a.e(f"v_and_b32 v{og+1}, 0xffff0000, v{t1}")
    a.e(f"s_lshl_b32 s4, s20, 11")
    def pr(x): return f"v[{x}:{x+1}]"
    for j in range(2):
        a.e(f"s_waitcnt lgkmcnt({4 - 4*j})")
        row_fft(a, K, xd + 8*j, D1, P, D2, tmp)
        for db in range(2):
            for i in range(4):
                for ks in range(NSPLIT):
                    src = pdr(j, db, ks) + i
                    u = tmp + 8 + 2*(ks & 1)
                    a.e(f"v_lshlrev_b32 v{u}, 16, v{src}")
                    a.e(f"v_and_b32 v{u+1}, 0xffff0000, v{src}")
                    prev = b2f + 8*db + 2*i if ks == 0 else tmp + 2*i
                    a.e(f"v_pk_add_f32 {pr(tmp+2*i)}, {pr(u)}, {pr(prev)}")
            o = pdr(j, db, 0)
            for i in range(4):
                a.e(f"v_mul_f32 v{tmp+2*i}, v{og+j}, v{tmp+2*i}")
                a.e(f"v_mul_f32 v{tmp+2*i+1}, v{og+j}, v{tmp+2*i+1}")
                a.e(f"v_fmac_f32 v{tmp+2*i}, v{gv+j}, v{D2+8*db+i}")
                a.e(f"v_fmac_f32 v{tmp+2*i+1}, v{gv+j}, v{D2+8*db+4+i}")
                a.e(f"v_cvt_pk_bf16_f32 v{o+i}, v{tmp+2*i}, v{tmp+2*i+1}")
            a.e(f"buffer_store_dwordx4 v[{o}:{o+3}], v{oo}, s[{S_R2}:{S_R2+3}], s4 offen offset:{2048*j + 1024*db}{SC}")

def fin_body2(a, V, sw, lds_base, NSPLIT, SCL, SC, bar, sig, poll):
    L = lane_consts(a, V)
    l15, g, l15f, g4f = L
    zd = V.get(16); vo = V.get(); t0 = V.get(); t1 = V.get(); t2 = V.get(); wa = V.get(4); dl = V.get()
    a.e(f"v_lshrrev_b32 v{vo}, 2, v1")
    a.e(f"v_lshlrev_b32 v{vo}, 14, v{vo}")
    a.e(f"v_and_b32 v{t0}, 2, v1")
    a.e(f"v_lshl_add_u32 v{vo}, v{t0}, 5, v{vo}")
    a.e(f"v_and_b32 v{t0}, 1, v1")
    a.e(f"v_lshl_add_u32 v{vo}, v{t0}, 4, v{vo}")
    a.e(f"s_lshr_b32 s3, s2, 1")
    a.e(f"s_lshl_b32 s3, s3, 7")
    a.e(f"s_and_b32 s4, s2, 1")
    a.e(f"s_lshl_b32 s4, s4, 5")
    a.e(f"s_add_u32 s3, s3, s4")
    a.e(f"s_add_u32 s3, s3, {Z2_OFF}")
    a.e(f"s_lshl_b32 s4, s{sw}, 20")
    a.e(f"s_add_u32 s3, s3, s4")
    for n in range(4):
        a.e(f"buffer_load_dwordx4 v[{zd+4*n}:{zd+4*n+3}], v{vo}, s[{S_WS}:{S_WS+3}], s3 offen{SCL}")
        a.e(f"s_add_u32 s3, s3, {16*16384}")
    pd = V.get(16*NSPLIT); b2 = V.get(8); gv = V.get(2); po = V.get(); oo = V.get()
    a.e(f"v_lshlrev_b32 v{po}, 10, v{l15}")
    a.e(f"v_lshl_add_u32 v{po}, v{g}, 4, v{po}")
    a.e(f"s_lshl_b32 s20, s2, 3")
    a.e(f"s_lshl_b32 s4, s{sw}, 1")
    a.e(f"s_add_u32 s20, s20, s4")
    a.e(f"s_lshr_b32 s4, s20, 4")
    a.e(f"s_lshl_b32 s4, s4, 15")
    a.e(f"s_and_b32 s5, s20, 15")
    a.e(f"s_lshl_b32 s5, s5, 6")
    a.e(f"s_add_u32 s4, s4, s5")
    a.e(f"s_add_u32 s4, s4, {P_OFF}")
    def pdr(j, db, ks): return pd + ((j*2 + db)*NSPLIT + ks)*4
    a.e(f"s_mov_b32 s21, s4")
    srd(a, S_R1, P_B2, 2048)
    srd(a, S_R2, P_OUT, 2048*1024*2)
    a.e(f"v_lshlrev_b32 v{oo}, 6, v{l15}")
    a.e(f"v_lshl_add_u32 v{oo}, v{g}, 4, v{oo}")
    for db in range(2):
        a.e(f"buffer_load_dwordx4 v[{b2+4*db}:{b2+4*db+3}], v{oo}, s[{S_R1}:{S_R1+3}], 0 offen offset:{1024*db}")
    a.e(f"s_lshl_b32 s5, s20, 2")
    a.e(f"s_add_u32 s5, s5, {G_OFF}")
    a.e(f"v_mov_b32 v{t0}, 0")
    a.e(f"buffer_load_dwordx2 v[{gv}:{gv+1}], v{t0}, s[{S_WS}:{S_WS+3}], s5 offen{SCL}")
    NL = 3
    a.e(f"v_lshrrev_b32 v{t0}, 2, v1")
    a.e(f"s_lshl_b32 s6, s{sw}, 6")
    a.e(f"v_add_u32 v{t0}, s6, v{t0}")
    a.e(f"v_sub_u32 v{t1}, 512, v{t0}")
    a.e(f"v_and_b32 v{t2}, 2, v1")
    a.e(f"v_cmp_ne_u32 vcc, 0, v{t2}")
    a.e(f"v_cndmask_b32 v{t0}, v{t0}, v{t1}, vcc")
    a.e(f"v_mov_b32 v{dl}, 64")
    a.e(f"v_mov_b32 v{t1}, -64")
    a.e(f"v_cndmask_b32 v{dl}, v{dl}, v{t1}, vcc")
    a.e(f"v_lshlrev_b32 v{t0}, 2, v{t0}")
    a.e(f"v_and_b32 v{t2}, 1, v1")
    a.e(f"v_lshlrev_b32 v{t2}, 13, v{t2}")
    a.e(f"v_add_u32 v{t2}, {lds_base}, v{t2}")
    a.e(f"v_add_u32 v{wa+1}, v{t0}, v{t2}")
    a.e(f"v_mov_b32 v{t1}, 1024")
    a.e(f"v_cmp_eq_u32 vcc, 2048, v{t0}")
    a.e(f"v_cndmask_b32 v{t1}, v{t0}, v{t1}, vcc")
    a.e(f"v_add_u32 v{wa}, v{t1}, v{t2}")
    a.e(f"v_add_u32 v{wa+1}, v{dl}, v{wa+1}")
    a.e(f"v_add_u32 v{wa+2}, v{dl}, v{wa+1}")
    a.e(f"v_add_u32 v{wa+3}, v{dl}, v{wa+2}")
    K = row_consts(a, V, L, True)
    xd = zd; D1 = V.get(16); P = V.get(8); D2 = V.get(32); tmp = V.get(16); b2f = V.get(16); ra = V.get()
    sig(tmp, 7)
    for n in range(4):
        a.e(f"s_waitcnt vmcnt({NL + 3 - n})")
        a.e(f"ds_write2st64_b32 v{wa+n}, v{zd+4*n}, v{zd+4*n+1} offset0:0 offset1:8")
        a.e(f"ds_write2st64_b32 v{wa+n}, v{zd+4*n+2}, v{zd+4*n+3} offset0:16 offset1:24")
    a.e(f"v_lshlrev_b32 v{ra}, 9, v{g}")
    a.e(f"v_lshl_add_u32 v{ra}, v{l15}, 2, v{ra}")
    a.e(f"s_lshl_b32 s6, s{sw}, 12")
    a.e(f"s_add_u32 s6, s6, {lds_base}")
    a.e(f"v_add_u32 v{ra}, s6, v{ra}")
    a.e(f"v_add_u32 v{t0}, 2048, v{ra}")
    bar(tmp)
    for j in range(2):
        ad = ra if j == 0 else t0
        for bb in range(2):
            r = xd + 8*j + 4*bb
            a.e(f"ds_read2_b32 v[{r}:{r+1}], v{ad} offset0:{16*bb} offset1:{16*bb+32}")
            a.e(f"ds_read2_b32 v[{r+2}:{r+3}], v{ad} offset0:{16*bb+64} offset1:{16*bb+96}")
    a.e(f"s_waitcnt vmcnt(0)")
    for i in range(8):
        a.e(f"v_lshlrev_b32 v{b2f+2*i}, 16, v{b2+i}")
        a.e(f"v_and_b32 v{b2f+2*i+1}, 0xffff0000, v{b2+i}")
    og = V.get(2)
    a.e(f"v_sub_f32 v{og}, 1.0, v{gv}")
    a.e(f"v_sub_f32 v{og+1}, 1.0, v{gv+1}")
    a.e(f"v_cvt_pk_bf16_f32 v{t1}, v{og}, v{og+1}")
    a.e(f"v_lshlrev_b32 v{og}, 16, v{t1}")
    a.e(f"v_and_b32 v{og+1}, 0xffff0000, v{t1}")
    a.e(f"s_lshl_b32 s4, s20, 11")
    def pr(x): return f"v[{x}:{x+1}]"
    for j in range(2):
        a.e(f"s_waitcnt lgkmcnt({4 - 4*j})")
        row_fft(a, K, xd + 8*j, D1, P, D2 + 16*j, tmp)
    poll(tmp)
    for j in range(2):
        for db in range(2):
            for ks in range(NSPLIT):
                a.e(f"s_add_u32 s5, s21, {db*16384 + ks*(4<<20)}")
                r = pdr(j, db, ks)
                a.e(f"buffer_load_dwordx4 v[{r}:{r+3}], v{po}, s[{S_WS}:{S_WS+3}], s5 offen offset:{64*j}{SCL}")
    for j in range(2):
        for db in range(2):
            idx = j*2 + db
            a.e(f"s_waitcnt vmcnt({(3 - idx)*NSPLIT + idx})")
            for i in range(4):
                for ks in range(NSPLIT):
                    src = pdr(j, db, ks) + i
                    u = tmp + 8 + 2*(ks & 1)
                    a.e(f"v_lshlrev_b32 v{u}, 16, v{src}")
                    a.e(f"v_and_b32 v{u+1}, 0xffff0000, v{src}")
                    prev = b2f + 8*db + 2*i if ks == 0 else tmp + 2*i
                    a.e(f"v_pk_add_f32 {pr(tmp+2*i)}, {pr(u)}, {pr(prev)}")
            o = pdr(j, db, 0)
            for i in range(4):
                a.e(f"v_mul_f32 v{tmp+2*i}, v{og+j}, v{tmp+2*i}")
                a.e(f"v_mul_f32 v{tmp+2*i+1}, v{og+j}, v{tmp+2*i+1}")
                a.e(f"v_fmac_f32 v{tmp+2*i}, v{gv+j}, v{D2+16*j+8*db+i}")
                a.e(f"v_fmac_f32 v{tmp+2*i+1}, v{gv+j}, v{D2+16*j+8*db+4+i}")
                a.e(f"v_cvt_pk_bf16_f32 v{o+i}, v{tmp+2*i}, v{tmp+2*i+1}")
            a.e(f"buffer_store_dwordx4 v[{o}:{o+3}], v{oo}, s[{S_R2}:{S_R2+3}], s4 offen offset:{2048*j + 1024*db}{SC}")

def small_kernel(a, name, body, lds, nv=256, ST=False):
    a.begin_kernel(name)
    Lend = a.newlabel("Lend")
    a.e(f"s_cmp_ge_u32 s2, 256")
    a.e(f"s_cbranch_scc1 {Lend}")
    load_ptrs(a)
    a.e("v_lshrrev_b32 v2, 6, v0")
    a.e("v_and_b32 v1, 63, v0")
    a.e("v_readfirstlane_b32 s28, v2")
    a.e("s_waitcnt lgkmcnt(0)")
    stamp_init(a, ST); stamp(a, 0, ST)
    srd(a, S_WS, P_WS, WS_USED)
    V = VA(2, 248)
    body(a, V, 28)
    stamp(a, 1, ST)
    if ST: a.e("s_waitcnt vmcnt(0)")
    stamp(a, 2, ST)
    stamp_flush(a, P_WS, ST)
    a.label(Lend)
    a.e("s_endpgm")
    a.end_kernel(name, 256 if ST else max(V.n, 8))
    a.launch(name, 256, 256, lds)
    return V.n
```

```python
import sys, math
from asmlib import *
from gemmgen import *
import gemmgen
from fftgen import *
from gen_g1 import gelu_pairs

FLAG_OFF = 47 << 20
SCR = 135168
SYNC = SCR + 16384
LDS_TOTAL = SYNC + 64
S_DBG = 100
SPIN_MAX = 1 << 18

class Sync:
    def __init__(self): self.nbar = 0; self.nsig = 0
    def cbar(self, a, vt):
        self.nbar += 1
        L = a.newlabel("Lcb")
        a.e("s_waitcnt lgkmcnt(0)")
        a.e(f"v_mov_b32 v{vt}, {SYNC}")
        a.e(f"v_mov_b32 v{vt+1}, 1")
        a.e("s_mov_b64 exec, 1")
        a.e(f"ds_add_u32 v{vt}, v{vt+1}")
        a.label(L)
        a.e(f"ds_read_b32 v{vt+1}, v{vt}")
        a.e("s_waitcnt lgkmcnt(0)")
        a.e(f"v_readfirstlane_b32 s7, v{vt+1}")
        a.e(f"s_cmp_ge_u32 s7, {4*self.nbar}")
        a.e(f"s_cbranch_scc0 {L}")
        a.e("s_mov_b64 exec, -1")
    def cbar_alt(self, a, vt, k):
        L = a.newlabel("Lcb")
        a.e("s_waitcnt lgkmcnt(0)")
        a.e(f"v_mov_b32 v{vt}, {SYNC + 60}")
        a.e(f"v_mov_b32 v{vt+1}, 1")
        a.e("s_mov_b64 exec, 1")
        a.e(f"ds_add_u32 v{vt}, v{vt+1}")
        a.label(L)
        a.e(f"ds_read_b32 v{vt+1}, v{vt}")
        a.e("s_waitcnt lgkmcnt(0)")
        a.e(f"v_readfirstlane_b32 s7, v{vt+1}")
        a.e(f"s_cmp_ge_u32 s7, {4*k}")
        a.e(f"s_cbranch_scc0 {L}")
        a.e("s_mov_b64 exec, -1")
    def signal(self, a, vt, emit):
        self.nsig += 1
        L = a.newlabel("Lsg")
        a.e(f"v_mov_b32 v{vt}, {SYNC + 4*self.nsig}")
        a.e(f"v_mov_b32 v{vt+1}, 1")
        a.e("s_mov_b64 exec, 1")
        a.e(f"ds_add_rtn_u32 v{vt+1}, v{vt}, v{vt+1}")
        a.e("s_waitcnt lgkmcnt(0)")
        a.e(f"v_readfirstlane_b32 s7, v{vt+1}")
        a.e(f"s_cmp_eq_u32 s7, 3")
        a.e(f"s_cbranch_scc0 {L}")
        emit()
        a.label(L)
        a.e("s_mov_b64 exec, -1")

def dbg_add(a, vt, off):
    a.e(f"v_mov_b32 v{vt}, {off}")
    a.e(f"v_mov_b32 v{vt+1}, 1")
    a.e(f"global_atomic_add v{vt}, v{vt+1}, s[{P_DBG}:{P_DBG+1}] sc1")

def poll_dbg(a, vt, off, target):
    L = a.newlabel("Lpd"); Lo = a.newlabel("Lpo")
    a.e(f"v_mov_b32 v{vt}, {off}")
    a.e(f"s_mov_b32 s6, 0")
    a.label(L)
    a.e(f"global_load_dword v{vt+1}, v{vt}, s[{P_DBG}:{P_DBG+1}] sc1")
    a.e("s_waitcnt vmcnt(0)")
    a.e(f"v_readfirstlane_b32 s7, v{vt+1}")
    a.e(f"s_cmp_ge_u32 s7, {target}")
    a.e(f"s_cbranch_scc1 {Lo}")
    a.e("s_sleep 2")
    a.e("s_add_u32 s6, s6, 1")
    a.e(f"s_cmp_lt_u32 s6, {SPIN_MAX}")
    a.e(f"s_cbranch_scc1 {L}")
    a.label(Lo)

def poll_flags(a, vt, s_off, n, keep=0):
    L = a.newlabel("Lpf"); Lo = a.newlabel("Lpo")
    a.e(f"v_and_b32 v{vt}, {n-1}, v1")
    a.e(f"v_lshlrev_b32 v{vt}, 2, v{vt}")
    a.e(f"s_mov_b32 s6, 0")
    a.label(L)
    a.e(f"buffer_load_dword v{vt+1}, v{vt}, s[{S_WS}:{S_WS+3}], s{s_off} offen sc1")
    a.e("s_waitcnt vmcnt(0)")
    a.e(f"v_cmp_ne_u32 vcc, 1, v{vt+1}")
    a.e(f"s_cbranch_vccz {Lo}")
    a.e("s_sleep 1")
    a.e("s_add_u32 s6, s6, 1")
    a.e(f"s_cmp_lt_u32 s6, {SPIN_MAX}")
    a.e(f"s_cbranch_scc1 {L}")
    a.label(Lo)

def issue_part(a, c, vs, srd_, soff, sreg, slot, extra_soff, SC=""):
    for j, v in enumerate(vs):
        if j % 4 == 0:
            a.e(f"s_add_u32 m0, s{sreg}, {slot * c.SLOT + (j // 4) * 4096}")
            a.e("s_nop 0")
        a.e(f"buffer_load_dwordx4 v{v}, s[{srd_}:{srd_+3}], s{soff} offen offset:{(j%4)*1024}{SC} lds")
    a.e(f"s_add_u32 s{soff}, s{soff}, {extra_soff}")

def loader_loop(a, c, vA, vB, first_issued, lastbar_pre=None):
    NS, NK, ND = c.NSLOT, c.NK, c.NDMA
    a.e(f"s_waitcnt vmcnt({min(63, c.wait0)})")
    a.e("s_barrier")
    for s in range(first_issued, NS):
        loader_issue(a, c, vA, vB)
    nloop = NK - NS
    a.e(f"s_mov_b32 s{S_CNT}, {nloop}")
    L = a.newlabel("Lld")
    a.label(L)
    a.e(f"s_waitcnt vmcnt({min(63, ND * (NS - 2))})")
    a.e("s_barrier")
    loader_issue(a, c, vA, vB)
    a.e(f"s_sub_u32 s{S_CNT}, s{S_CNT}, 1")
    a.e(f"s_cmp_lg_u32 s{S_CNT}, 0")
    a.e(f"s_cbranch_scc1 {L}")
    for i in range(NS - 1):
        a.e(f"s_waitcnt vmcnt({min(63, ND * (NS - 2 - i))})")
        a.e("s_barrier")
    if lastbar_pre: lastbar_pre()
    a.e("s_barrier")

def consumer_loop(a, c, R):
    nm = c.MB * c.NB
    adv = [f"s_add_u32 s{S_SLOT}, s{S_SLOT}, {c.SLOT}",
           f"s_cmp_eq_u32 s{S_SLOT}, {c.SLOT * c.NSLOT}",
           f"s_cselect_b32 s{S_TMP}, s{S_TMP+6}, s{S_TMP+7}",
           f"s_cselect_b32 s{S_SLOT}, 0, s{S_SLOT}"]
    a.e(f"s_mov_b32 s{S_TMP+6}, {-c.SLOT * (c.NSLOT - 1) & 0xffffffff}")
    a.e(f"s_mov_b32 s{S_TMP+7}, {c.SLOT}")
    upd = [f"v_add_u32 v{r}, s{S_TMP}, v{r}" for r in R.aA + R.aB]
    a.e("s_barrier")
    c.stampf(0)
    for r in frag_reads(c, R, 0, 0): a.e(r)
    a.e(f"s_mov_b32 s{S_CNT}, {c.NK - 1}")
    a.e("s_waitcnt lgkmcnt(0)")
    L = a.newlabel("Lcons")
    a.lines.append(".p2align 6")
    a.label(L)
    barpos = nm - 3
    interleave(a, c, mfmas(c, R, 0), frag_reads(c, R, 1, 1) + adv + upd,
               tail=[(barpos, ["s_waitcnt lgkmcnt(0)", "s_barrier"])])
    interleave(a, c, mfmas(c, R, 1), frag_reads(c, R, 0, 0) + [f"s_sub_u32 s{S_CNT}, s{S_CNT}, 1", f"s_cmp_lg_u32 s{S_CNT}, 0"],
               tail=[(nm - 1, ["s_waitcnt lgkmcnt(0)"])])
    a.e(f"s_cbranch_scc1 {L}")
    interleave(a, c, mfmas(c, R, 0), frag_reads(c, R, 1, 1), tail=[(barpos, ["s_waitcnt lgkmcnt(0)", "s_barrier"])])
    interleave(a, c, mfmas(c, R, 1), [])
    c.stampf(1)

def map_g1(a):
    a.e(f"""
    s_and_b32 s3, s2, 1
    s_lshl_b32 s3, s3, 3
    s_bfe_u32 s4, s2, 0x30003
    s_add_u32 s3, s3, s4
    s_lshl_b32 s{S_M0}, s3, 7
    s_bfe_u32 s3, s2, 0x20001
    s_lshl_b32 s3, s3, 2
    s_lshr_b32 s4, s2, 6
    s_add_u32 s3, s3, s4
    s_mul_i32 s{S_N0}, s3, 224
    s_mov_b32 s{S_K0}, 0
    """)
def map_g2(a):
    a.e(f"""
    s_and_b32 s3, s2, 3
    s_lshl_b32 s3, s3, 2
    s_bfe_u32 s4, s2, 0x20003
    s_add_u32 s3, s3, s4
    s_lshl_b32 s{S_M0}, s3, 7
    s_lshr_b32 s3, s2, 5
    s_lshl_b32 s{S_N0}, s3, 7
    s_bfe_u32 s3, s2, 0x10002
    s_mul_i32 s{S_K0}, s3, 1792
    """)

def build(name, ST=False, NS2=4):
    a = Asm()
    SC = " sc1"
    c1 = GemmCfg(128, 224, 1024, 3, 2048, 7168)
    c2 = GemmCfg(128, 128, 1792, NS2, 112*1024, 2048)
    c2.a_blocked = True; c2.a_off = H_OFF
    assert c1.SLOT*c1.NSLOT <= SCR and c2.SLOT*c2.NSLOT <= SCR
    sy = Sync()
    a.begin_kernel(name)
    Lend = a.newlabel("Lend"); Lload = a.newlabel("Lload")
    a.e(f"s_cmp_ge_u32 s2, 256")
    a.e(f"s_cbranch_scc1 {Lend}")
    load_ptrs(a)
    a.e("v_lshrrev_b32 v2, 6, v0")
    a.e("v_and_b32 v1, 63, v0")
    a.e(f"v_readfirstlane_b32 s{S_WAVE}, v2")
    a.e(f"v_and_b32 v2, 15, v0")
    a.e(f"v_lshlrev_b32 v2, 2, v2")
    a.e(f"v_mov_b32 v3, 0")
    a.e(f"ds_write_b32 v2, v3 offset:{SYNC - 131072}" if False else f"v_add_u32 v2, {SYNC}, v2")
    a.e(f"ds_write_b32 v2, v3")
    map_g1(a)
    a.e("s_waitcnt lgkmcnt(0)")
    stamp_init(a, ST); stamp(a, 0, ST)
    srd(a, S_WS, P_WS, WS_USED)
    a.e(f"s_cmp_ge_u32 s{S_WAVE}, 4")
    a.e(f"s_cbranch_scc1 {Lload}")
    a.e("s_barrier")
    BT = 242
    srd(a, S_R1, P_B1, 3584*2)
    a.e(f"s_lshr_b32 s3, s{S_WAVE}, 1")
    a.e(f"s_lshl_b32 s4, s3, 7")
    a.e(f"s_add_u32 s4, s4, s{S_N0}")
    a.e(f"s_lshl_b32 s4, s4, 1")
    a.e(f"s_lshl_b32 s5, s3, 4")
    a.e(f"s_add_u32 s5, s5, s{S_N0}")
    a.e(f"s_add_u32 s5, s5, 96")
    a.e(f"s_lshl_b32 s5, s5, 1")
    a.e(f"v_lshrrev_b32 v2, 4, v1")
    a.e(f"v_lshlrev_b32 v2, 3, v2")
    for nb in range(7):
        if nb < 6: a.e(f"buffer_load_dwordx2 v[{BT+2*nb}:{BT+2*nb+1}], v2, s[{S_R1}:{S_R1+3}], s4 offen offset:{32*nb}")
        else: a.e(f"buffer_load_dwordx2 v[{BT+2*nb}:{BT+2*nb+1}], v2, s[{S_R1}:{S_R1+3}], s5 offen")
    a.e(f"""
    s_lshr_b32 s3, s{S_M0}, 6
    s_bfe_u32 s4, s2, 0x10002
    s_add_u32 s3, s3, s4
    s_lshl_b32 s3, s3, 7
    s_bfe_u32 s4, s2, 0x10001
    s_lshl_b32 s4, s4, 2
    s_lshr_b32 s5, s2, 6
    s_add_u32 s4, s4, s5
    s_lshl_b32 s4, s4, 2
    s_add_u32 s3, s3, s4
    s_add_u32 s100, s3, {FLAG_OFF}
    s_and_b32 s3, s2, 3
    s_lshl_b32 s3, s3, 2
    s_bfe_u32 s4, s2, 0x20003
    s_add_u32 s3, s3, s4
    s_lshl_b32 s3, s3, 7
    s_lshr_b32 s4, s2, 5
    s_lshl_b32 s4, s4, 1
    s_bfe_u32 s5, s2, 0x10002
    s_add_u32 s4, s4, s5
    s_lshl_b32 s4, s4, 2
    s_add_u32 s3, s3, s4
    s_add_u32 s101, s3, {FLAG_OFF + 8192}
    v_mov_b32 v2, 0
    s_mov_b64 exec, 1
    buffer_store_dword v2, v2, s[{S_WS}:{S_WS+3}], s100 offen sc1
    buffer_store_dword v2, v2, s[{S_WS}:{S_WS+3}], s101 offen sc1
    s_mov_b64 exec, -1
    """)
    V = VA(2, BT)
    rf_body(a, V, S_WAVE, SCR, SC=SC, bar=lambda vt: sy.cbar(a, vt))
    stamp(a, 1, ST)
    R = ConsRegs(c1, 8)
    T = R.end
    consumer_setup(a, c1, R, T, T+1)
    for nb in range(c1.NB):
        for mb in range(c1.MB):
            d = R.accreg(c1, mb, nb)
            a.e(f"v_lshlrev_b32 v{d}, 16, v{BT+2*nb}")
            a.e(f"v_and_b32 v{d+1}, 0xffff0000, v{BT+2*nb}")
            a.e(f"v_lshlrev_b32 v{d+2}, 16, v{BT+2*nb+1}")
            a.e(f"v_and_b32 v{d+3}, 0xffff0000, v{BT+2*nb+1}")
    a.e("s_waitcnt vmcnt(0)")
    sy.signal(a, T, lambda: dbg_add(a, T, 0))
    c1.stampf = lambda i: stamp(a, 2 + i, ST)
    consumer_loop(a, c1, R)
    kA, kB, one = T, T+2, T+4
    A_ = 2*math.sqrt(2/math.pi)*math.log2(math.e)
    a.e(f"v_mov_b32 v{kA}, {f32(-A_)}"); a.e(f"v_mov_b32 v{kA+1}, {f32(-A_)}")
    a.e(f"v_mov_b32 v{kB}, {f32(-A_*0.044715)}"); a.e(f"v_mov_b32 v{kB+1}, {f32(-A_*0.044715)}")
    a.e(f"v_mov_b32 v{one}, 1.0"); a.e(f"v_mov_b32 v{one+1}, 1.0")
    a.e(f"""
    s_lshr_b32 s3, s{S_WAVE}, 1
    s_and_b32 s4, s{S_WAVE}, 1
    s_lshl_b32 s4, s4, 2
    s_lshr_b32 s5, s{S_M0}, 4
    s_add_u32 s4, s4, s5
    s_mul_i32 s4, s4, 112
    s_lshr_b32 s5, s{S_N0}, 5
    s_add_u32 s4, s4, s5
    s_lshl_b32 s4, s4, 10
    s_add_u32 s4, s4, {H_OFF}
    s_lshl_b32 s6, s3, 12
    s_add_u32 s6, s6, s4
    s_lshl_b32 s7, s3, 5
    s_add_u32 s7, s7, s4
    s_add_u32 s7, s7, 3072
    v_and_b32 v4, 15, v1
    v_lshlrev_b32 v4, 6, v4
    v_lshrrev_b32 v5, 4, v1
    v_lshlrev_b32 v3, 3, v5
    v_add3_u32 v3, v3, v4, s7
    v_and_b32 v2, 1, v5
    v_lshlrev_b32 v2, 5, v2
    v_lshrrev_b32 v5, 1, v5
    v_lshlrev_b32 v5, 4, v5
    v_add3_u32 v2, v2, v5, v4
    v_add_u32 v2, s6, v2
    """)
    tmp = R.fa[0]; pk_ = tmp + 32
    for mb in range(c1.MB):
        a.e(f"s_mov_b32 s5, {mb*112*1024}")
        for p in range(0, c1.NB, 2):
            nbs = [p, p+1] if p+1 < c1.NB else [p]
            regs = []
            for nb in nbs:
                d = R.accreg(c1, mb, nb); regs += [d, d+2]
            gelu_pairs(a, regs, tmp, kA, kB, one)
            q = pk_ + 4*((mb*4 + p//2) % 8)
            for i, r in enumerate(regs):
                a.e(f"v_cvt_pk_bf16_f32 v{q+i}, v{r}, v{r+1}")
            if len(nbs) == 2:
                a.e(f"v_permlane16_swap_b32 v{q}, v{q+2}")
                a.e(f"v_permlane16_swap_b32 v{q+1}, v{q+3}")
                a.e(f"buffer_store_dwordx4 v[{q}:{q+3}], v2, s[{S_WS}:{S_WS+3}], s5 offen offset:{512*p}{SC}")
            else:
                a.e(f"buffer_store_dwordx2 v[{q}:{q+1}], v3, s[{S_WS}:{S_WS+3}], s5 offen{SC}")
    stamp(a, 4, ST)
    def sig_h(vt):
        a.e("s_waitcnt vmcnt(20)")
        def em():
            a.e(f"v_mov_b32 v{vt}, 0"); a.e(f"v_mov_b32 v{vt+1}, 1")
            a.e(f"buffer_store_dword v{vt+1}, v{vt}, s[{S_WS}:{S_WS+3}], s100 offen sc1")
        sy.signal(a, vt, em)
    V = VA(2, 248)
    cp_body(a, V, S_WAVE, SCR, SCL=SC, SC=SC, bar=lambda vt: sy.cbar(a, vt), hook=sig_h, sy=sy)
    stamp(a, 5, ST)
    map_g2(a)
    R = ConsRegs(c2, 8)
    T = R.end
    consumer_setup(a, c2, R, T, T+1)
    for i in range(c2.MB*c2.NB*4): a.e(f"v_mov_b32 v{R.acc+i}, 0")
    a.e("s_waitcnt vmcnt(0)")
    sy.signal(a, T, lambda: dbg_add(a, T, 128))
    c2.stampf = lambda i: (stamp(a, 6, ST) if i == 1 else None)
    consumer_loop(a, c2, R)
    a.e(f"""
    s_and_b32 s4, s{S_WAVE}, 1
    s_lshl_b32 s4, s4, 2
    s_lshr_b32 s5, s{S_M0}, 4
    s_add_u32 s4, s4, s5
    s_lshl_b32 s4, s4, 5
    s_lshr_b32 s5, s{S_N0}, 5
    s_add_u32 s4, s4, s5
    s_and_b32 s5, s{S_WAVE}, 2
    s_add_u32 s4, s4, s5
    s_lshl_b32 s4, s4, 10
    s_bfe_u32 s5, s2, 0x10002
    s_lshl_b32 s5, s5, 22
    s_add_u32 s4, s4, s5
    s_add_u32 s4, s4, {P_OFF}
    v_and_b32 v4, 15, v1
    v_lshlrev_b32 v4, 6, v4
    v_lshrrev_b32 v5, 4, v1
    v_and_b32 v2, 1, v5
    v_lshlrev_b32 v2, 5, v2
    v_lshrrev_b32 v5, 1, v5
    v_lshlrev_b32 v5, 4, v5
    v_add3_u32 v2, v2, v5, v4
    v_add_u32 v2, s4, v2
    """)
    pk_ = R.fa[0]
    for mb in range(c2.MB):
        a.e(f"s_mov_b32 s5, {mb*32*1024}")
        for p in range(0, c2.NB, 2):
            q = pk_ + 4*(mb*2 + p//2)
            for i, nb in enumerate((p, p+1)):
                d = R.accreg(c2, mb, nb)
                a.e(f"v_cvt_pk_bf16_f32 v{q+2*i}, v{d}, v{d+1}")
                a.e(f"v_cvt_pk_bf16_f32 v{q+2*i+1}, v{d+2}, v{d+3}")
            a.e(f"v_permlane16_swap_b32 v{q}, v{q+2}")
            a.e(f"v_permlane16_swap_b32 v{q+1}, v{q+3}")
            a.e(f"buffer_store_dwordx4 v[{q}:{q+3}], v2, s[{S_WS}:{S_WS+3}], s5 offen offset:{512*p}{SC}")
    def sig_p(vt, n):
        a.e(f"s_waitcnt vmcnt({n})")
        def em():
            a.e(f"v_mov_b32 v{vt}, 0"); a.e(f"v_mov_b32 v{vt+1}, 1")
            a.e(f"buffer_store_dword v{vt+1}, v{vt}, s[{S_WS}:{S_WS+3}], s101 offen sc1")
        sy.signal(a, vt, em)
    def poll_p(vt):
        a.e(f"s_lshr_b32 s5, s2, 4")
        a.e(f"s_lshl_b32 s5, s5, 7")
        a.e(f"s_add_u32 s5, s5, {FLAG_OFF + 8192}")
        poll_flags(a, vt, 5, 16)
    V = VA(2, 248)
    fin_body2(a, V, S_WAVE, SCR, 2, SC, SC, bar=lambda vt: sy.cbar(a, vt), sig=sig_p, poll=poll_p)
    stamp(a, 7, ST)
    stamp_flush(a, P_WS, ST)
    a.e("s_endpgm")
    a.label(Lload)
    a.e(f"s_sub_u32 s{S_WAVE}, s{S_WAVE}, 4")
    srd(a, S_SRDA, P_X, 2048*1024*2)
    srd(a, S_SRDB, P_W1, 1024*3584*2)
    vA, vB = loader_setup(a, c1, 4)
    loader_issue(a, c1, vA, vB)
    a.e("s_barrier")
    loader_issue(a, c1, vA, vB)
    c1.wait0 = c1.NDMA
    stamp(a, 1, ST)
    vA2 = vB2 = None
    def pre1():
        nonlocal vA2, vB2
        map_g2(a)
        srd(a, S_SRDB, P_W2, 1024*3584*2)
        vA2, vB2 = loader_setup(a, c2, 32)
        poll_dbg(a, 60, 0, 256)
    loader_loop(a, c1, vA, vB, 2, lastbar_pre=pre1)
    stamp(a, 3, ST)
    for s in range(c2.NSLOT):
        issue_part(a, c2, vB2, S_SRDB, S_SOFFB, S_TMP+5, s, 64*c2.pitchB)
    a.e(f"s_lshr_b32 s5, s{S_M0}, 6")
    a.e(f"s_bfe_u32 s4, s2, 0x10002")
    a.e(f"s_add_u32 s5, s5, s4")
    a.e(f"s_lshl_b32 s5, s5, 7")
    a.e(f"s_add_u32 s5, s5, {FLAG_OFF}")
    poll_flags(a, 60, 5, 8)
    stamp(a, 4, ST)
    a.e(f"s_mov_b32 s{S_SRDA}, s{S_WS}"); a.e(f"s_mov_b32 s{S_SRDA+1}, s{S_WS+1}")
    a.e(f"s_mov_b32 s{S_SRDA+2}, {H_OFF + 2048*3584*2}")
    for s in range(c2.NSLOT):
        issue_part(a, c2, vA2, S_SRDA, S_SOFFA, S_TMP+4, s, 2048)
    c2.wait0 = c2.NA * (c2.NSLOT - 1)
    stamp(a, 5, ST)
    loader_loop2(a, c2, vA2, vB2, lastbar_pre=lambda: poll_dbg(a, 60, 128, 256))
    stamp(a, 6, ST)
    stamp_flush(a, P_WS, ST)
    a.label(Lend)
    a.e("s_endpgm")
    a.end_kernel(name, 256)
    a.launches.append(f"; @launch grid=(256,1,1) block=(512,1,1) lds={LDS_TOTAL}")
    return a

def loader_loop2(a, c, vA, vB, lastbar_pre):
    NS, NK, ND, NA = c.NSLOT, c.NK, c.NDMA, c.NA
    a.e(f"s_waitcnt vmcnt({NA * (NS - 1)})")
    a.e("s_barrier")
    peel = NS - 2
    for t in range(peel):
        a.e(f"s_waitcnt vmcnt({min(63, NA * (NS - 2 - t) + ND * t)})")
        a.e("s_barrier")
        loader_issue(a, c, vA, vB)
    nloop = NK - NS - peel
    a.e(f"s_mov_b32 s{S_CNT}, {nloop}")
    L = a.newlabel("Lld")
    a.label(L)
    a.e(f"s_waitcnt vmcnt({min(63, ND * (NS - 2))})")
    a.e("s_barrier")
    loader_issue(a, c, vA, vB)
    a.e(f"s_sub_u32 s{S_CNT}, s{S_CNT}, 1")
    a.e(f"s_cmp_lg_u32 s{S_CNT}, 0")
    a.e(f"s_cbranch_scc1 {L}")
    for i in range(NS - 1):
        a.e(f"s_waitcnt vmcnt({min(63, ND * (NS - 2 - i))})")
        a.e("s_barrier")
    lastbar_pre()
    a.e("s_barrier")

NAME = "gated_mix__spectral_gfnet__dense_activation_gelu__prompt_kernel"
hdr = open("gated_mix__spectral_gfnet__dense_activation_gelu__prompt.s.ref").read().split("; Override launch")[0]
if __name__ == "__main__":
    open("f1.s", "w").write(build(NAME).text(hdr))
    open("f1_st.s", "w").write(build(NAME, ST=True).text(hdr))
```

```python
from asmlib import *
import math
SGN2 = "0x80008000"

class VA:
    def __init__(self, base, limit=256): self.n = base; self.limit = limit
    def get(self, k=1, align=None):
        al = align or (4 if k >= 4 else (2 if k >= 2 else 1))
        self.n = (self.n + al - 1) // al * al
        r = self.n; self.n += k
        assert self.n <= self.limit, self.n
        return r

def mfma(a, d, A, B, first):
    c = "0" if first else f"v[{d}:{d+3}]"
    a.e(f"v_mfma_f32_16x16x32_bf16 v[{d}:{d+3}], v[{A}:{A+3}], v[{B}:{B+3}], {c}")

def angles(a, step, base, consts, cs):
    for K, (c, s) in zip(consts, cs):
        if K == 0: a.e(f"v_mov_b32 v{s}, v{base}")
        else: a.e(f"v_fmamk_f32 v{s}, v{step}, {f32(K)}, v{base}")
    for K, (c, s) in zip(consts, cs):
        a.e(f"v_cos_f32 v{c}, v{s}")
        a.e(f"v_sin_f32 v{s}, v{s}")

def rot(c, s, q):
    q %= 4
    return [(f"v{c}", f"v{s}"), (f"-v{s}", f"v{c}"), (f"-v{c}", f"-v{s}"), (f"v{s}", f"-v{c}")][q]

def pk(a, d, lohi): a.e(f"v_cvt_pk_bf16_f32 v{d}, {lohi[0]}, {lohi[1]}")

def twiddle_pack(a, re, im, tw, dst, tmp):
    for j in range(4):
        c, s = tw + 2*j, tw + 2*j + 1
        a.e(f"v_mul_f32 v{tmp+2*j}, v{re+j}, v{c}")
        a.e(f"v_mul_f32 v{tmp+2*j+1}, v{im+j}, v{c}")
    for j in range(4):
        c, s = tw + 2*j, tw + 2*j + 1
        a.e(f"v_fmac_f32 v{tmp+2*j}, v{im+j}, v{s}")
        a.e(f"v_fma_f32 v{tmp+2*j+1}, -v{re+j}, v{s}, v{tmp+2*j+1}")
    for j in range(4):
        a.e(f"v_cvt_pk_bf16_f32 v{dst+j}, v{tmp+2*j}, v{tmp+2*j+1}")

def lane_consts(a, V):
    l15 = V.get(); g = V.get(); l15f = V.get(); g4f = V.get()
    a.e(f"v_and_b32 v{l15}, 15, v1")
    a.e(f"v_lshrrev_b32 v{g}, 4, v1")
    a.e(f"v_cvt_f32_u32 v{l15f}, v{l15}")
    a.e(f"v_lshlrev_b32 v{g4f}, 2, v{g}")
    a.e(f"v_cvt_f32_u32 v{g4f}, v{g4f}")
    return l15, g, l15f, g4f

def row_consts(a, V, L, inverse):
    l15, g, l15f, g4f = L
    K = {}
    K["F1re"] = V.get(4); K["F1im"] = V.get(4); K["TW"] = V.get(16)
    K["G"] = [[[V.get(4) for ro in range(2)] for bb in range(2)] for db in range(2)]
    mark = V.n
    st = V.get(); ba = V.get(); cs = [(V.get(), V.get()) for _ in range(4)]; msk = V.get()
    a.e(f"v_mul_f32 v{st}, {f32(1/16)}, v{l15f}")
    a.e(f"v_mul_f32 v{ba}, v{g4f}, v{st}")
    angles(a, st, ba, [0, 1, 2, 3], cs)
    for i, (c, s) in enumerate(cs):
        pk(a, K["F1re"] + i, rot(c, s, 0)); pk(a, K["F1im"] + i, rot(c, s, 1))
    if inverse:
        a.e(f"v_lshlrev_b32 v{msk}, 26, v1")
        a.e(f"v_and_b32 v{msk}, 0x80000000, v{msk}")
        for i in range(4):
            a.e(f"v_xor_b32 v{K['F1re']+i}, v{msk}, v{K['F1re']+i}")
            a.e(f"v_xor_b32 v{K['F1im']+i}, v{msk}, v{K['F1im']+i}")
    a.e(f"v_mul_f32 v{st}, {f32(1/512)}, v{l15f}")
    a.e(f"v_mul_f32 v{ba}, v{g4f}, v{st}")
    angles(a, st, ba, [16*bb + j for bb in range(2) for j in range(4)], [(K["TW"] + 2*i, K["TW"] + 2*i + 1) for i in range(8)])
    a.e(f"v_mul_f32 v{st}, {f32(1/32)}, v{l15f}")
    a.e(f"v_mul_f32 v{ba}, v{g4f}, v{st}")
    angles(a, st, ba, [0, 1, 2, 3], cs)
    a.e(f"v_and_b32 v{msk}, 1, v1")
    a.e(f"v_mul_u32_u24 v{msk}, 0x8000, v{msk}")
    a.e(f"v_lshl_or_b32 v{msk}, v{msk}, 16, v{msk}")
    for db in range(2):
        negim = inverse or db == 1
        for j, (c, s) in enumerate(cs):
            q = 2 * j * db
            pk(a, K["G"][db][0][0] + j, rot(c, s, q))
            pk(a, K["G"][db][0][1] + j, rot(c, s, q + 1 + (2 if negim else 0)))
        for ro in range(2):
            for j in range(4):
                a.e(f"v_xor_b32 v{K['G'][db][1][ro]+j}, v{msk}, v{K['G'][db][0][ro]+j}")
    V.n = mark
    return K

def row_fft(a, K, data, D1, P, D2, tmp):
    for bb in range(2):
        mfma(a, D1 + 8*bb, data + 4*bb, K["F1re"], True)
        mfma(a, D1 + 8*bb + 4, data + 4*bb, K["F1im"], True)
    for bb in range(2):
        twiddle_pack(a, D1 + 8*bb, D1 + 8*bb + 4, K["TW"] + 8*bb, P + 4*bb, tmp)
    for bb in range(2):
        for db in range(2):
            for ro in range(2):
                mfma(a, D2 + 8*db + 4*ro, P + 4*bb, K["G"][db][bb][ro], bb == 0)

def rf_body(a, V, sw, lds_base, SC="", bar=True, pf=None):
    xd = V.get(16); gw = V.get(8)
    vo = V.get()
    srd(a, S_R1, P_X, 2048*1024*2)
    srd(a, S_R2, P_GATE, 2048)
    a.e(f"s_lshr_b32 s3, s2, 4")
    a.e(f"s_lshl_b32 s3, s3, 7")
    a.e(f"s_and_b32 s4, s2, 15")
    a.e(f"s_lshl_b32 s4, s4, 1")
    a.e(f"s_add_u32 s3, s3, s4")
    a.e(f"s_lshl_b32 s4, s{sw}, 5")
    a.e(f"s_add_u32 s20, s3, s4")
    a.e(f"s_lshl_b32 s3, s20, 11")
    a.e(f"s_add_u32 s4, s3, 2048")
    L = lane_consts(a, V)
    l15, g, l15f, g4f = L
    a.e(f"v_lshlrev_b32 v{vo}, 9, v{g}")
    a.e(f"v_lshl_add_u32 v{vo}, v{l15}, 2, v{vo}")
    for j in range(2):
        for bb in range(2):
            for i in range(4):
                a.e(f"buffer_load_dword v{xd+8*j+4*bb+i}, v{vo}, s[{S_R1}:{S_R1+3}], s{3+j} offen offset:{128*i+64*bb}")
    for bb in range(2):
        for i in range(4):
            a.e(f"buffer_load_dword v{gw+4*bb+i}, v{vo}, s[{S_R2}:{S_R2+3}], 0 offen offset:{128*i+64*bb}")
    srd(a, S_R1, P_WR, 2048*513*2)
    srd(a, S_R2, P_WI, 2048*513*2)
    wd = V.get(20); we = V.get(20); wo = V.get(4); wdl = V.get(); t0 = V.get(); t1 = V.get(); t2 = V.get()
    a.e(f"s_lshr_b32 s5, s2, 2")
    a.e(f"s_and_b32 s6, s2, 3")
    a.e(f"s_lshl_b32 s6, s6, 7")
    a.e(f"s_add_u32 s5, s5, s6")
    a.e(f"v_and_b32 v{t0}, 1, v1")
    a.e(f"v_lshlrev_b32 v{t0}, 10, v{t0}")
    a.e(f"v_add_u32 v{t0}, s5, v{t0}")
    a.e(f"v_and_b32 v{t1}, 2, v1")
    a.e(f"v_cmp_ne_u32 vcc, 0, v{t1}")
    a.e(f"v_lshrrev_b32 v{t1}, 2, v1")
    a.e(f"s_lshl_b32 s6, s{sw}, 6")
    a.e(f"v_add_u32 v{t1}, s6, v{t1}")
    a.e(f"v_sub_u32 v{t2}, 512, v{t1}")
    a.e(f"v_cndmask_b32 v{t1}, v{t1}, v{t2}, vcc")
    a.e(f"v_lshlrev_b32 v{t1}, 1, v{t1}")
    a.e(f"v_mov_b32 v{wdl}, 32")
    a.e(f"v_mov_b32 v{t2}, -32")
    a.e(f"v_cndmask_b32 v{wdl}, v{wdl}, v{t2}, vcc")
    rowb = V.get(4)
    for i in range(4):
        a.e(f"v_add_u32 v{t2}, {512*(i>>1) + 64*(i&1)}, v{t0}")
        a.e(f"v_sub_u32 v{wo+i}, 2048, v{t2}")
        a.e(f"v_and_b32 v{wo+i}, 2047, v{wo+i}")
        a.e(f"v_cndmask_b32 v{t2}, v{t2}, v{wo+i}, vcc")
        a.e(f"v_mul_u32_u24 v{rowb+i}, 1026, v{t2}")
        a.e(f"v_add_u32 v{wo+i}, v{rowb+i}, v{t1}")
    for n in range(4):
        for i in range(4):
            a.e(f"buffer_load_ushort v{wd+4*n+i}, v{wo+i}, s[{S_R1}:{S_R1+3}], 0 offen")
            a.e(f"buffer_load_ushort v{we+4*n+i}, v{wo+i}, s[{S_R2}:{S_R2+3}], 0 offen")
            if n < 3: a.e(f"v_add_u32 v{wo+i}, v{wdl}, v{wo+i}")
    a.e(f"v_bfe_u32 v{t1}, v1, 2, 1")
    a.e(f"v_lshlrev_b32 v{t1}, 8, v{t1}")
    a.e(f"v_add_u32 v{t1}, 256, v{t1}")
    a.e(f"v_sub_u32 v{t2}, 512, v{t1}")
    a.e(f"v_cndmask_b32 v{t1}, v{t1}, v{t2}, vcc")
    a.e(f"v_lshlrev_b32 v{t1}, 1, v{t1}")
    for i in range(4):
        a.e(f"v_add_u32 v{wo+i}, v{rowb+i}, v{t1}")
        a.e(f"buffer_load_ushort v{wd+16+i}, v{wo+i}, s[{S_R1}:{S_R1+3}], 0 offen")
        a.e(f"buffer_load_ushort v{we+16+i}, v{wo+i}, s[{S_R2}:{S_R2+3}], 0 offen")
    NW = 40
    NPF = pf() if pf else 0
    NW += NPF
    K = row_consts(a, V, L, False)
    D1 = V.get(16); P = V.get(8); D2 = V.get(16); tmp = V.get(16); ob = V.get(16); la = V.get()
    gf = V.get(16); acc = V.get(2)
    assert V.n <= 239
    a.e(f"v_lshlrev_b32 v{la}, 6, v{l15}")
    a.e(f"v_lshl_add_u32 v{la}, v{g}, 4, v{la}")
    a.e(f"s_lshl_b32 s6, s{sw}, 11")
    a.e(f"s_add_u32 s6, s6, {lds_base}")
    a.e(f"v_add_u32 v{la}, s6, v{la}")
    a.e(f"s_waitcnt vmcnt({NW + 8})")
    for j in range(2):
        row_fft(a, K, xd + 8*j, D1, P, D2, tmp)
        for db in range(2):
            for jj in range(4):
                a.e(f"v_cvt_pk_bf16_f32 v{ob+8*j+4*db+jj}, v{D2+8*db+jj}, v{D2+8*db+4+jj}")
            a.e(f"ds_write_b128 v{la}, v[{ob+8*j+4*db}:{ob+8*j+4*db+3}] offset:{j*8192 + db*1024}")
    a.e(f"s_waitcnt vmcnt({NW})")
    for i in range(8):
        a.e(f"v_lshlrev_b32 v{gf+2*i}, 16, v{gw+i}")
        a.e(f"v_and_b32 v{gf+2*i+1}, 0xffff0000, v{gw+i}")
    a.e(f"v_mov_b32 v{t0}, 0x3f803f80")
    for j in range(2):
        for i in range(8):
            a.e(f"v_lshlrev_b32 v{tmp+2*i}, 16, v{xd+8*j+i}")
            a.e(f"v_and_b32 v{tmp+2*i+1}, 0xffff0000, v{xd+8*j+i}")
        for i in range(8):
            a.e(f"v_pk_mul_f32 v[{tmp+2*i}:{tmp+2*i+1}], v[{tmp+2*i}:{tmp+2*i+1}], v[{gf+2*i}:{gf+2*i+1}]")
        for i in range(8):
            a.e(f"v_cvt_pk_bf16_f32 v{tmp+2*i}, v{tmp+2*i}, v{tmp+2*i+1}")
        a.e(f"v_mov_b32 v{acc+j}, 0")
        for i in range(8):
            a.e(f"v_dot2_f32_bf16 v{acc+j}, v{tmp+2*i}, v{t0}, v{acc+j}")
        a.e("s_nop 2")
    for ctl in ("row_shr:1 bound_ctrl:0", "row_shr:2 bound_ctrl:0", "row_shr:4 bound_ctrl:0", "row_shr:8 bound_ctrl:0",
                "row_bcast:15 row_mask:0xa", "row_bcast:31 row_mask:0xc"):
        for j in range(2):
            a.e(f"v_add_f32_dpp v{acc+j}, v{acc+j}, v{acc+j} {ctl}")
    a.e(f"v_cvt_pk_bf16_f32 v{t1}, v{acc}, v{acc+1}")
    a.e(f"v_lshlrev_b32 v{acc}, 16, v{t1}")
    a.e(f"v_and_b32 v{acc+1}, 0xffff0000, v{t1}")
    for j in range(2):
        a.e(f"v_mul_f32 v{acc+j}, {f32(-math.log2(math.e))}, v{acc+j}")
    for j in range(2): a.e(f"v_exp_f32 v{acc+j}, v{acc+j}")
    for j in range(2): a.e(f"v_add_f32 v{acc+j}, 1.0, v{acc+j}")
    for j in range(2): a.e(f"v_rcp_f32 v{acc+j}, v{acc+j}")
    a.e(f"v_cvt_pk_bf16_f32 v{t1}, v{acc}, v{acc+1}")
    a.e(f"v_lshlrev_b32 v{acc}, 16, v{t1}")
    a.e(f"v_and_b32 v{acc+1}, 0xffff0000, v{t1}")
    a.e(f"s_lshl_b32 s6, s20, 2")
    a.e(f"s_add_u32 s6, s6, {G_OFF}")
    a.e(f"v_mov_b32 v{t1}, 0")
    a.e(f"s_mov_b64 s[22:23], exec")
    a.e(f"s_lshl_b64 exec, 1, 63")
    a.e(f"buffer_store_dwordx2 v[{acc}:{acc+1}], v{t1}, s[{S_WS}:{S_WS+3}], s6 offen{SC}")
    a.e(f"s_mov_b64 exec, s[22:23]")
    a.e(f"s_lshr_b32 s5, s2, 6")
    a.e(f"s_lshl_b32 s5, s5, 12")
    a.e(f"s_and_b32 s6, s2, 3")
    a.e(f"s_lshl_b32 s6, s6, 10")
    a.e(f"s_add_u32 s5, s5, s6")
    a.e(f"s_bfe_u32 s6, s2, 0x40002")
    a.e(f"s_lshl_b32 s6, s6, 6")
    a.e(f"s_add_u32 s5, s5, s6")
    a.e(f"s_add_u32 s5, s5, {WT_OFF}")
    a.e(f"s_lshl_b32 s6, s{sw}, 20")
    a.e(f"s_add_u32 s6, s6, s5")
    so = V.get()
    a.e(f"v_lshrrev_b32 v{so}, 2, v1")
    a.e(f"v_lshlrev_b32 v{so}, 14, v{so}")
    a.e(f"v_and_b32 v{t1}, 3, v1")
    a.e(f"v_lshl_add_u32 v{so}, v{t1}, 4, v{so}")
    a.e(f"s_waitcnt vmcnt({1 + NPF})")
    for i in range(20):
        a.e(f"v_lshl_or_b32 v{wd+i}, v{we+i}, 16, v{wd+i}")
    for n in range(4):
        a.e(f"buffer_store_dwordx4 v[{wd+4*n}:{wd+4*n+3}], v{so}, s[{S_WS}:{S_WS+3}], s6 offen{SC}")
        a.e(f"s_add_u32 s6, s6, {16*16384}")
    a.e(f"s_add_u32 s5, s5, {256*16384}")
    a.e(f"s_cmp_eq_u32 s{sw}, 0")
    a.e(f"s_cselect_b64 exec, 0xff, 0")
    Ls = a.newlabel("Lskip")
    a.e(f"s_cbranch_execz {Ls}")
    a.e(f"buffer_store_dwordx4 v[{wd+16}:{wd+19}], v{so}, s[{S_WS}:{S_WS+3}], s5 offen{SC}")
    a.label(Ls)
    a.e(f"s_mov_b64 exec, -1")
    if bar is True:
        a.e("s_waitcnt lgkmcnt(0)")
        a.e("s_barrier")
    else: bar(tmp)
    a.e(f"v_lshrrev_b32 v{t0}, 2, v1")
    a.e(f"s_lshl_b32 s6, s{sw}, 6")
    a.e(f"v_add_u32 v{t0}, s6, v{t0}")
    a.e(f"v_sub_u32 v{t1}, 512, v{t0}")
    a.e(f"v_and_b32 v{t2}, 1, v1")
    a.e(f"v_cmp_ne_u32 vcc, 0, v{t2}")
    a.e(f"v_cndmask_b32 v{t0}, v{t0}, v{t1}, vcc")
    a.e(f"v_mov_b32 v{wdl}, 64")
    a.e(f"v_mov_b32 v{t1}, -64")
    a.e(f"v_cndmask_b32 v{wdl}, v{wdl}, v{t1}, vcc")
    a.e(f"v_lshlrev_b32 v{t0}, 2, v{t0}")
    a.e(f"v_and_b32 v{t2}, 2, v1")
    a.e(f"v_lshlrev_b32 v{t2}, 12, v{t2}")
    a.e(f"v_add_u32 v{t2}, {lds_base}, v{t2}")
    a.e(f"v_add_u32 v{wo+1}, v{t0}, v{t2}")
    a.e(f"v_mov_b32 v{t1}, 1024")
    a.e(f"v_cmp_eq_u32 vcc, 2048, v{t0}")
    a.e(f"v_cndmask_b32 v{t1}, v{t0}, v{t1}, vcc")
    a.e(f"v_add_u32 v{wo}, v{t1}, v{t2}")
    a.e(f"v_add_u32 v{wo+1}, v{wdl}, v{wo+1}")
    a.e(f"v_add_u32 v{wo+2}, v{wdl}, v{wo+1}")
    a.e(f"v_add_u32 v{wo+3}, v{wdl}, v{wo+2}")
    for n in range(4):
        a.e(f"ds_read2st64_b32 v[{ob+4*n}:{ob+4*n+1}], v{wo+n} offset0:0 offset1:8")
        a.e(f"ds_read2st64_b32 v[{ob+4*n+2}:{ob+4*n+3}], v{wo+n} offset0:16 offset1:24")
    a.e(f"s_lshr_b32 s5, s2, 4")
    a.e(f"s_lshl_b32 s5, s5, 10")
    a.e(f"s_and_b32 s6, s2, 15")
    a.e(f"s_lshl_b32 s6, s6, 6")
    a.e(f"s_add_u32 s5, s5, s6")
    a.e(f"s_add_u32 s5, s5, {Z1_OFF}")
    a.e(f"s_lshl_b32 s6, s{sw}, 20")
    a.e(f"s_add_u32 s6, s6, s5")
    for n in range(4):
        a.e(f"s_waitcnt lgkmcnt({6 - 2*n})")
        a.e(f"buffer_store_dwordx4 v[{ob+4*n}:{ob+4*n+3}], v{so}, s[{S_WS}:{S_WS+3}], s6 offen{SC}")
        a.e(f"s_add_u32 s6, s6, {16*16384}")


def cp_body(a, V, sw, lds_base, SCL="", SC="", bar=True, p_s=2, hook=None, sy=None):
    L = lane_consts(a, V)
    l15, g, l15f, g4f = L
    X = V.get(64)
    Wd = V.get(16)
    vo = V.get(); vw = V.get()
    a.e(f"v_lshlrev_b32 v{vo}, 10, v{g}")
    a.e(f"v_lshl_add_u32 v{vo}, v{l15}, 5, v{vo}")
    a.e(f"s_lshl_b32 s3, s{p_s}, 14")
    a.e(f"s_add_u32 s20, s3, {Z1_OFF}")
    for t in range(1, 4): a.e(f"s_add_u32 s{20+t}, s20, {4096*t}")
    def xr(sig, bb, t): return X + ((sig*2 + bb)*4 + t)*4
    for sig in range(2):
        for bb in range(2):
            for t in range(4):
                r = xr(sig, bb, t)
                a.e(f"buffer_load_dwordx4 v[{r}:{r+3}], v{vo}, s[{S_WS}:{S_WS+3}], s{20+t} offen offset:{512*bb+16*sig}{SCL}")
    a.e(f"v_lshlrev_b32 v{vw}, 6, v1")
    a.e(f"s_lshl_b32 s4, s{sw}, 12")
    a.e(f"s_add_u32 s4, s4, s3")
    a.e(f"s_add_u32 s4, s4, {WT_OFF}")
    for q in range(4):
        a.e(f"buffer_load_dwordx4 v[{Wd+4*q}:{Wd+4*q+3}], v{vw}, s[{S_WS}:{S_WS+3}], s4 offen offset:{16*q}{SCL}")
    K1 = [[V.get(4) for ro in range(2)] for t in range(4)]
    TW = V.get(16)
    K2 = [[V.get(4) for bb in range(2)] for blk in range(4)]
    D = V.get(32); P = V.get(16); tmp = V.get(16)
    st = V.get(); ba = V.get(); cf = V.get(); msk = V.get()
    cs = [(tmp + 2*i, tmp + 2*i + 1) for i in range(8)]
    a.e(f"s_lshl_b32 s5, s{sw}, 4")
    a.e(f"v_add_u32 v{cf}, s5, v{l15}")
    a.e(f"v_cvt_f32_u32 v{cf}, v{cf}")
    a.e(f"v_and_b32 v{msk}, 1, v1")
    a.e(f"v_mul_u32_u24 v{msk}, 0x8000, v{msk}")
    a.e(f"v_lshl_or_b32 v{msk}, v{msk}, 16, v{msk}")
    a.e(f"v_mul_f32 v{st}, {f32(1/64)}, v{cf}")
    a.e(f"v_mul_f32 v{ba}, v{g4f}, v{st}")
    angles(a, st, ba, [16*t + i for t in range(2) for i in range(4)], cs)
    for t in range(2):
        for i in range(4):
            c, s = cs[4*t + i]
            pk(a, K1[t][0] + i, rot(c, s, 0)); pk(a, K1[t][1] + i, rot(c, s, 1))
        for ro in range(2):
            for i in range(4):
                a.e(f"v_xor_b32 v{K1[t+2][ro]+i}, v{msk}, v{K1[t][ro]+i}")
    if hook: hook(tmp)
    a.e(f"v_mul_f32 v{st}, {f32(1/2048)}, v{cf}")
    a.e(f"v_mul_f32 v{ba}, v{g4f}, v{st}")
    angles(a, st, ba, [16*bb + j for bb in range(2) for j in range(4)], [(TW + 2*i, TW + 2*i + 1) for i in range(8)])
    m2 = V.get()
    a.e(f"v_lshrrev_b32 v{st}, 1, v{l15}")
    a.e(f"v_cvt_f32_u32 v{st}, v{st}")
    a.e(f"v_mul_f32 v{st}, {f32(1/32)}, v{st}")
    a.e(f"v_and_b32 v{ba}, 1, v1")
    a.e(f"v_cvt_f32_u32 v{ba}, v{ba}")
    a.e(f"v_mul_f32 v{ba}, {f32(0.25)}, v{ba}")
    a.e(f"v_fmac_f32 v{ba}, v{g4f}, v{st}")
    angles(a, st, ba, [0, 1, 2, 3], cs[:4])
    a.e(f"v_bfe_u32 v{m2}, v1, 1, 1")
    a.e(f"v_mul_u32_u24 v{m2}, 0x8000, v{m2}")
    a.e(f"v_lshl_or_b32 v{m2}, v{m2}, 16, v{m2}")
    for blk in range(4):
        for j in range(4):
            c, s = cs[j]
            pk(a, K2[blk][0] + j, rot(c, s, j * blk))
        for j in range(4):
            a.e(f"v_xor_b32 v{K2[blk][1]+j}, v{m2}, v{K2[blk][0]+j}")
    def dr(sig, bb, ro): return D + ((sig*2 + bb)*2 + ro)*4
    for sig in range(2):
        a.e(f"s_waitcnt vmcnt({12 - 8*sig})")
        for bb in range(2):
            for t in range(4):
                for ro in range(2):
                    mfma(a, dr(sig, bb, ro), xr(sig, bb, t), K1[t][ro], t == 0)
    for sig in range(2):
        for bb in range(2):
            twiddle_pack(a, dr(sig, bb, 0), dr(sig, bb, 1), TW + 8*bb, P + (sig*2 + bb)*4, tmp)
    def fr(sig, blk): return D + (sig*4 + blk)*4
    for sig in range(2):
        for bb in range(2):
            for blk in range(4):
                mfma(a, fr(sig, blk), K2[blk][bb], P + (sig*2 + bb)*4, bb == 0)
    K3 = [[[X + ((bb*2 + u)*2 + ro)*4 for ro in range(2)] for u in range(2)] for bb in range(2)]
    a.e(f"v_mul_f32 v{st}, {f32(1/32)}, v{l15f}")
    a.e(f"v_mul_f32 v{ba}, 0.5, v{g4f}")
    a.e(f"v_mul_f32 v{ba}, v{ba}, v{st}")
    angles(a, st, ba, [0, 1, 8, 9], cs[:4])
    for bb in range(2):
        for sl in range(4):
            c, s = cs[sl]
            q = 2 * bb * (sl & 1)
            pk(a, K3[bb][0][0] + sl, rot(c, s, q)); pk(a, K3[bb][0][1] + sl, rot(c, s, q + 1))
        for ro in range(2):
            for sl in range(4):
                a.e(f"v_xor_b32 v{K3[bb][1][ro]+sl}, v{msk}, v{K3[bb][0][ro]+sl}")
    h = 0.5 / (2048 * 512)
    a.e(f"v_cvt_f32_u32 v{cf}, s5")
    a.e(f"v_add_f32 v{cf}, v{cf}, v{g4f}")
    for bb in range(2):
        a.e(f"v_add_f32 v{st}, {f32(16.0*bb)}, v{l15f}")
        a.e(f"v_mul_f32 v{st}, {f32(1/2048)}, v{st}")
        a.e(f"v_mul_f32 v{ba}, v{cf}, v{st}")
        angles(a, st, ba, [0, 1, 2, 3], [(TW + 8*bb + 2*i, TW + 8*bb + 2*i + 1) for i in range(4)])
    for i in range(16):
        a.e(f"v_mul_f32 v{TW+i}, {f32(h)}, v{TW+i}")
    Lsp = a.newlabel("Lspecial"); Ljoin = a.newlabel("Ljoin")
    sc = X + 32
    w = X + 36
    a.e(f"s_cmp_eq_u32 s{p_s}, 0")
    a.e(f"s_cbranch_scc1 {Lsp}")
    a.e(f"v_cvt_f32_u32 v{st}, s{p_s}")
    a.e(f"v_mul_f32 v{st}, {f32(1/1024)}, v{st}")
    a.e(f"v_sin_f32 v{sc}, v{st}")
    a.e(f"v_cos_f32 v{sc+2}, v{st}")
    a.e(f"v_sin_f32 v{sc+1}, v{st}")
    a.e(f"v_cos_f32 v{sc+3}, v{st}")
    a.e(f"s_waitcnt vmcnt(0)")
    def pr(x): return f"v[{x}:{x+1}]"
    for i8 in range(8):
        F = fr(0, i8 >> 1) + 2*(i8 & 1); G = fr(1, i8 >> 1) + 2*(i8 & 1)
        o = w + 14*(i8 & 1) if False else w
        wp, wq, S, Df, a1, a2, be, zp, rr = [w + 2*k for k in range(9)]
        a.e(f"v_lshlrev_b32 v{wp}, 16, v{Wd+i8}")
        a.e(f"v_and_b32 v{wp+1}, 0xffff0000, v{Wd+i8}")
        a.e(f"v_lshlrev_b32 v{wq}, 16, v{Wd+8+i8}")
        a.e(f"v_and_b32 v{wq+1}, 0xffff0000, v{Wd+8+i8}")
        a.e(f"v_pk_add_f32 {pr(S)}, {pr(wp)}, {pr(wq)} neg_hi:[0,1]")
        a.e(f"v_pk_add_f32 {pr(Df)}, {pr(wp)}, {pr(wq)} neg_lo:[0,1]")
        a.e(f"v_pk_fma_f32 {pr(a1)}, {pr(Df)}, {pr(sc)}, {pr(S)} neg_lo:[1,0,0] neg_hi:[1,0,0]")
        a.e(f"v_pk_fma_f32 {pr(a2)}, {pr(Df)}, {pr(sc)}, {pr(S)}")
        a.e(f"v_pk_mul_f32 {pr(be)}, {pr(Df)}, {pr(sc+2)}")
        a.e(f"v_pk_mul_f32 {pr(zp)}, {pr(a1)}, {pr(F)} op_sel:[0,0] op_sel_hi:[0,1]")
        a.e(f"v_pk_mul_f32 {pr(rr)}, {pr(a2)}, {pr(G)} op_sel:[0,0] op_sel_hi:[0,1]")
        a.e(f"v_pk_fma_f32 {pr(zp)}, {pr(a1)}, {pr(F)}, {pr(zp)} op_sel:[1,1,0] op_sel_hi:[1,0,1] neg_lo:[0,1,0]")
        a.e(f"v_pk_fma_f32 {pr(rr)}, {pr(a2)}, {pr(G)}, {pr(rr)} op_sel:[1,1,0] op_sel_hi:[1,0,1] neg_lo:[0,1,0]")
        a.e(f"v_pk_fma_f32 {pr(zp)}, {pr(be)}, {pr(G)}, {pr(zp)} op_sel:[0,1,0] op_sel_hi:[0,0,1] neg_lo:[0,1,0]")
        a.e(f"v_pk_fma_f32 {pr(rr)}, {pr(be)}, {pr(F)}, {pr(rr)} op_sel:[0,1,0] op_sel_hi:[0,0,1] neg_hi:[0,1,0]")
        a.e(f"v_pk_fma_f32 {pr(zp)}, {pr(be)}, {pr(G)}, {pr(zp)} op_sel:[1,0,0] op_sel_hi:[1,1,1] neg_lo:[0,1,0] neg_hi:[0,1,0]")
        a.e(f"v_pk_fma_f32 {pr(rr)}, {pr(be)}, {pr(F)}, {pr(rr)} op_sel:[1,0,0] op_sel_hi:[1,1,1]")
        a.e(f"v_cvt_pk_bf16_f32 v{P+i8}, v{zp}, -v{zp+1}")
        a.e(f"v_cvt_pk_bf16_f32 v{P+8+i8}, v{rr}, -v{rr+1}")
    a.e(f"s_branch {Ljoin}")
    a.label(Lsp)
    E1 = K2[0][0]
    E2 = E1 + 16
    a.e(f"s_add_u32 s4, s4, {256*16384}")
    for q in range(2):
        a.e(f"buffer_load_dwordx4 v[{E1+4*q}:{E1+4*q+3}], v{vw}, s[{S_WS}:{S_WS+3}], s4 offen offset:{16*q}{SCL}")
    a.e(f"s_add_u32 s4, s4, 16384")
    for q in range(4):
        a.e(f"buffer_load_dwordx4 v[{E2+4*q}:{E2+4*q+3}], v{vw}, s[{S_WS}:{S_WS+3}], s4 offen offset:{16*q}{SCL}")
    ka = w; kb = w + 1
    a.e(f"v_lshlrev_b32 v{ka}, 7, v{g}")
    a.e(f"v_add3_u32 v{ka}, v{ka}, v{l15}, s5")
    a.e(f"v_sub_u32 v{kb}, 2048, v{ka}")
    a.e(f"v_lshlrev_b32 v{ka}, 3, v{ka}")
    a.e(f"v_add_u32 v{ka}, {lds_base}, v{ka}")
    for i8 in range(8):
        F = fr(0, i8 >> 1) + 2*(i8 & 1)
        a.e(f"ds_write_b64 v{ka}, {pr(F)} offset:{(512*(i8>>1) + 64*(i8&1))*8}")
    if bar is True:
        a.e("s_waitcnt lgkmcnt(0)")
        a.e("s_barrier")
    else: sy.cbar_alt(a, tmp, 1)
    Y = X + 48
    for i8 in range(8):
        a.e(f"v_subrev_u32 v{ka}, {512*(i8>>1) + 64*(i8&1)}, v{kb}")
        a.e(f"v_and_b32 v{ka}, 2047, v{ka}")
        a.e(f"v_lshlrev_b32 v{ka}, 3, v{ka}")
        a.e(f"v_add_u32 v{ka}, {lds_base}, v{ka}")
        a.e(f"ds_read_b64 {pr(Y+2*i8)}, v{ka}")
    a.e("s_waitcnt vmcnt(0) lgkmcnt(0)")
    if bar is True: a.e("s_barrier")
    else: sy.cbar_alt(a, tmp, 2)
    for i8 in range(8):
        F = fr(0, i8 >> 1) + 2*(i8 & 1); G = fr(1, i8 >> 1) + 2*(i8 & 1); Yr = Y + 2*i8
        u0, u1, S, Df, zp, rr = [w + 2*k for k in range(6)]
        def unp(d, s_):
            a.e(f"v_lshlrev_b32 v{d}, 16, v{s_}")
            a.e(f"v_and_b32 v{d+1}, 0xffff0000, v{s_}")
        unp(u0, Wd + i8); unp(u1, E2 + 8 + i8)
        a.e(f"v_pk_add_f32 {pr(S)}, {pr(u0)}, {pr(u1)} neg_hi:[0,1]")
        unp(u0, E2 + i8); unp(u1, Wd + 8 + i8)
        a.e(f"v_pk_add_f32 {pr(Df)}, {pr(u0)}, {pr(u1)} neg_hi:[0,1]")
        a.e(f"v_pk_add_f32 {pr(u0)}, {pr(S)}, {pr(Df)}")
        a.e(f"v_pk_add_f32 {pr(u1)}, {pr(S)}, {pr(Df)} neg_lo:[0,1] neg_hi:[0,1]")
        a.e(f"v_pk_mul_f32 {pr(zp)}, {pr(u0)}, {pr(F)} op_sel:[0,0] op_sel_hi:[0,1]")
        a.e(f"v_pk_fma_f32 {pr(zp)}, {pr(u0)}, {pr(F)}, {pr(zp)} op_sel:[1,1,0] op_sel_hi:[1,0,1] neg_lo:[0,1,0]")
        a.e(f"v_pk_fma_f32 {pr(zp)}, {pr(u1)}, {pr(Yr)}, {pr(zp)} op_sel:[0,1,0] op_sel_hi:[0,0,1]")
        a.e(f"v_pk_fma_f32 {pr(zp)}, {pr(u1)}, {pr(Yr)}, {pr(zp)} op_sel:[1,0,0] op_sel_hi:[1,1,1] neg_lo:[0,1,0]")
        a.e(f"v_mul_f32 v{zp}, 0.5, v{zp}")
        a.e(f"v_mul_f32 v{zp+1}, 0.5, v{zp+1}")
        unp(u0, E1 + i8)
        a.e(f"v_pk_mul_f32 {pr(rr)}, {pr(u0)}, {pr(G)} op_sel:[0,0] op_sel_hi:[0,1]")
        a.e(f"v_pk_fma_f32 {pr(rr)}, {pr(u0)}, {pr(G)}, {pr(rr)} op_sel:[1,1,0] op_sel_hi:[1,0,1] neg_lo:[0,1,0]")
        a.e(f"v_add_f32 v{rr}, v{rr}, v{rr}")
        a.e(f"v_add_f32 v{rr+1}, v{rr+1}, v{rr+1}")
        a.e(f"v_cvt_pk_bf16_f32 v{P+i8}, v{zp}, -v{zp+1}")
        a.e(f"v_cvt_pk_bf16_f32 v{P+8+i8}, v{rr}, -v{rr+1}")
    a.label(Ljoin)
    a.e("s_nop 1")
    for sig in range(2):
        for bb in range(2):
            for u in range(2):
                for ro in range(2):
                    mfma(a, dr(sig, bb, ro), P + sig*8 + 4*u, K3[bb][u][ro], u == 0)
    la = st
    a.e(f"s_lshl_b32 s6, s{sw}, 2")
    a.e(f"v_add_u32 v{la}, s6, v{g}")
    a.e(f"v_xor_b32 v{la}, v{la}, v{l15}")
    a.e(f"v_lshlrev_b32 v{la}, 4, v{la}")
    a.e(f"v_lshl_add_u32 v{la}, v{l15}, 8, v{la}")
    a.e(f"v_add_u32 v{la}, {lds_base}, v{la}")
    O = K2[0][0]
    for sig in range(2):
        for bb in range(2):
            o = O + (sig*2 + bb)*4
            twiddle_pack(a, dr(sig, bb, 0), dr(sig, bb, 1), TW + 8*bb, o, tmp)
            a.e(f"ds_write_b128 v{la}, v[{o}:{o+3}] offset:{sig*8192 + bb*4096}")
    ra = [tmp + i for i in range(4)]
    a.e(f"v_xor_b32 v{ra[0]}, v{g}, v{l15}")
    a.e(f"v_lshlrev_b32 v{ra[0]}, 4, v{ra[0]}")
    a.e(f"v_lshl_add_u32 v{ra[0]}, v{l15}, 8, v{ra[0]}")
    a.e(f"v_add_u32 v{ra[0]}, {lds_base}, v{ra[0]}")
    for t in range(1, 4): a.e(f"v_xor_b32 v{ra[t]}, {64*t}, v{ra[0]}")
    if bar is True:
        a.e("s_waitcnt lgkmcnt(0)")
        a.e("s_barrier")
    else: bar(tmp + 8)
    for sig in range(2):
        for bb in range(2):
            for t in range(4):
                r = xr(sig, bb, t)
                a.e(f"ds_read_b128 v[{r}:{r+3}], v{ra[t]} offset:{sig*8192 + bb*4096}")
    a.e(f"v_lshlrev_b32 v{vo}, 8, v{l15}")
    a.e(f"v_lshl_add_u32 v{vo}, v{g}, 4, v{vo}")
    a.e(f"s_lshl_b32 s4, s{sw}, 12")
    a.e(f"s_add_u32 s4, s4, s3")
    a.e(f"s_add_u32 s4, s4, {Z2_OFF}")
    for sig in range(2):
        for bb in range(2):
            a.e(f"s_waitcnt lgkmcnt({12 - 4*(sig*2+bb)})")
            for t in range(4):
                for ro in range(2):
                    mfma(a, dr(sig, bb, ro), xr(sig, bb, t), K1[t][ro], t == 0)
    for sig in range(2):
        for bb in range(2):
            o = O + (sig*2 + bb)*4
            for j in range(4):
                a.e(f"v_cvt_pk_bf16_f32 v{o+j}, v{dr(sig,bb,0)+j}, v{dr(sig,bb,1)+j}")
            a.e(f"buffer_store_dwordx4 v[{o}:{o+3}], v{vo}, s[{S_WS}:{S_WS+3}], s4 offen offset:{bb*128+sig*64}{SC}")

def fin_body(a, V, sw, lds_base, NSPLIT=4, SCL="", SC=""):
    L = lane_consts(a, V)
    l15, g, l15f, g4f = L
    zd = V.get(16); vo = V.get(); t0 = V.get(); t1 = V.get(); t2 = V.get(); wa = V.get(4); dl = V.get()
    a.e(f"v_lshrrev_b32 v{vo}, 2, v1")
    a.e(f"v_lshlrev_b32 v{vo}, 14, v{vo}")
    a.e(f"v_and_b32 v{t0}, 2, v1")
    a.e(f"v_lshl_add_u32 v{vo}, v{t0}, 5, v{vo}")
    a.e(f"v_and_b32 v{t0}, 1, v1")
    a.e(f"v_lshl_add_u32 v{vo}, v{t0}, 4, v{vo}")
    a.e(f"s_lshr_b32 s3, s2, 1")
    a.e(f"s_lshl_b32 s3, s3, 7")
    a.e(f"s_and_b32 s4, s2, 1")
    a.e(f"s_lshl_b32 s4, s4, 5")
    a.e(f"s_add_u32 s3, s3, s4")
    a.e(f"s_add_u32 s3, s3, {Z2_OFF}")
    a.e(f"s_lshl_b32 s4, s{sw}, 20")
    a.e(f"s_add_u32 s3, s3, s4")
    for n in range(4):
        a.e(f"buffer_load_dwordx4 v[{zd+4*n}:{zd+4*n+3}], v{vo}, s[{S_WS}:{S_WS+3}], s3 offen{SCL}")
        a.e(f"s_add_u32 s3, s3, {16*16384}")
    pd = V.get(16*NSPLIT); b2 = V.get(8); gv = V.get(2); po = V.get(); oo = V.get()
    a.e(f"v_lshlrev_b32 v{po}, 10, v{l15}")
    a.e(f"v_lshl_add_u32 v{po}, v{g}, 4, v{po}")
    a.e(f"s_lshl_b32 s20, s2, 3")
    a.e(f"s_lshl_b32 s4, s{sw}, 1")
    a.e(f"s_add_u32 s20, s20, s4")
    a.e(f"s_lshr_b32 s4, s20, 4")
    a.e(f"s_lshl_b32 s4, s4, 15")
    a.e(f"s_and_b32 s5, s20, 15")
    a.e(f"s_lshl_b32 s5, s5, 6")
    a.e(f"s_add_u32 s4, s4, s5")
    a.e(f"s_add_u32 s4, s4, {P_OFF}")
    def pdr(j, db, ks): return pd + ((j*2 + db)*NSPLIT + ks)*4
    for db in range(2):
        for ks in range(NSPLIT):
            a.e(f"s_add_u32 s5, s4, {db*16384 + ks*(4<<20)}")
            for j in range(2):
                r = pdr(j, db, ks)
                a.e(f"buffer_load_dwordx4 v[{r}:{r+3}], v{po}, s[{S_WS}:{S_WS+3}], s5 offen offset:{64*j}{SCL}")
    srd(a, S_R1, P_B2, 2048)
    srd(a, S_R2, P_OUT, 2048*1024*2)
    a.e(f"v_lshlrev_b32 v{oo}, 6, v{l15}")
    a.e(f"v_lshl_add_u32 v{oo}, v{g}, 4, v{oo}")
    for db in range(2):
        a.e(f"buffer_load_dwordx4 v[{b2+4*db}:{b2+4*db+3}], v{oo}, s[{S_R1}:{S_R1+3}], 0 offen offset:{1024*db}")
    a.e(f"s_lshl_b32 s5, s20, 2")
    a.e(f"s_add_u32 s5, s5, {G_OFF}")
    a.e(f"v_mov_b32 v{t0}, 0")
    a.e(f"buffer_load_dwordx2 v[{gv}:{gv+1}], v{t0}, s[{S_WS}:{S_WS+3}], s5 offen{SCL}")
    NL = 4*NSPLIT + 3
    a.e(f"v_lshrrev_b32 v{t0}, 2, v1")
    a.e(f"s_lshl_b32 s6, s{sw}, 6")
    a.e(f"v_add_u32 v{t0}, s6, v{t0}")
    a.e(f"v_sub_u32 v{t1}, 512, v{t0}")
    a.e(f"v_and_b32 v{t2}, 2, v1")
    a.e(f"v_cmp_ne_u32 vcc, 0, v{t2}")
    a.e(f"v_cndmask_b32 v{t0}, v{t0}, v{t1}, vcc")
    a.e(f"v_mov_b32 v{dl}, 64")
    a.e(f"v_mov_b32 v{t1}, -64")
    a.e(f"v_cndmask_b32 v{dl}, v{dl}, v{t1}, vcc")
    a.e(f"v_lshlrev_b32 v{t0}, 2, v{t0}")
    a.e(f"v_and_b32 v{t2}, 1, v1")
    a.e(f"v_lshlrev_b32 v{t2}, 13, v{t2}")
    a.e(f"v_add_u32 v{t2}, {lds_base}, v{t2}")
    a.e(f"v_add_u32 v{wa+1}, v{t0}, v{t2}")
    a.e(f"v_mov_b32 v{t1}, 1024")
    a.e(f"v_cmp_eq_u32 vcc, 2048, v{t0}")
    a.e(f"v_cndmask_b32 v{t1}, v{t0}, v{t1}, vcc")
    a.e(f"v_add_u32 v{wa}, v{t1}, v{t2}")
    a.e(f"v_add_u32 v{wa+1}, v{dl}, v{wa+1}")
    a.e(f"v_add_u32 v{wa+2}, v{dl}, v{wa+1}")
    a.e(f"v_add_u32 v{wa+3}, v{dl}, v{wa+2}")
    K = row_consts(a, V, L, True)
    xd = zd; D1 = V.get(16); P = V.get(8); D2 = V.get(16); tmp = V.get(16); b2f = V.get(16); ra = V.get()
    for n in range(4):
        a.e(f"s_waitcnt vmcnt({NL + 3 - n})")
        a.e(f"ds_write2st64_b32 v{wa+n}, v{zd+4*n}, v{zd+4*n+1} offset0:0 offset1:8")
        a.e(f"ds_write2st64_b32 v{wa+n}, v{zd+4*n+2}, v{zd+4*n+3} offset0:16 offset1:24")
    a.e(f"v_lshlrev_b32 v{ra}, 9, v{g}")
    a.e(f"v_lshl_add_u32 v{ra}, v{l15}, 2, v{ra}")
    a.e(f"s_lshl_b32 s6, s{sw}, 12")
    a.e(f"s_add_u32 s6, s6, {lds_base}")
    a.e(f"v_add_u32 v{ra}, s6, v{ra}")
    a.e(f"v_add_u32 v{t0}, 2048, v{ra}")
    a.e("s_waitcnt lgkmcnt(0)")
    a.e("s_barrier")
    for j in range(2):
        ad = ra if j == 0 else t0
        for bb in range(2):
            r = xd + 8*j + 4*bb
            a.e(f"ds_read2_b32 v[{r}:{r+1}], v{ad} offset0:{16*bb} offset1:{16*bb+32}")
            a.e(f"ds_read2_b32 v[{r+2}:{r+3}], v{ad} offset0:{16*bb+64} offset1:{16*bb+96}")
    a.e(f"s_waitcnt vmcnt(0)")
    for i in range(8):
        a.e(f"v_lshlrev_b32 v{b2f+2*i}, 16, v{b2+i}")
        a.e(f"v_and_b32 v{b2f+2*i+1}, 0xffff0000, v{b2+i}")
    og = V.get(2)
    a.e(f"v_sub_f32 v{og}, 1.0, v{gv}")
    a.e(f"v_sub_f32 v{og+1}, 1.0, v{gv+1}")
    a.e(f"v_cvt_pk_bf16_f32 v{t1}, v{og}, v{og+1}")
    a.e(f"v_lshlrev_b32 v{og}, 16, v{t1}")
    a.e(f"v_and_b32 v{og+1}, 0xffff0000, v{t1}")
    a.e(f"s_lshl_b32 s4, s20, 11")
    def pr(x): return f"v[{x}:{x+1}]"
    for j in range(2):
        a.e(f"s_waitcnt lgkmcnt({4 - 4*j})")
        row_fft(a, K, xd + 8*j, D1, P, D2, tmp)
        for db in range(2):
            for i in range(4):
                for ks in range(NSPLIT):
                    src = pdr(j, db, ks) + i
                    u = tmp + 8 + 2*(ks & 1)
                    a.e(f"v_lshlrev_b32 v{u}, 16, v{src}")
                    a.e(f"v_and_b32 v{u+1}, 0xffff0000, v{src}")
                    prev = b2f + 8*db + 2*i if ks == 0 else tmp + 2*i
                    a.e(f"v_pk_add_f32 {pr(tmp+2*i)}, {pr(u)}, {pr(prev)}")
            o = pdr(j, db, 0)
            for i in range(4):
                a.e(f"v_mul_f32 v{tmp+2*i}, v{og+j}, v{tmp+2*i}")
                a.e(f"v_mul_f32 v{tmp+2*i+1}, v{og+j}, v{tmp+2*i+1}")
                a.e(f"v_fmac_f32 v{tmp+2*i}, v{gv+j}, v{D2+8*db+i}")
                a.e(f"v_fmac_f32 v{tmp+2*i+1}, v{gv+j}, v{D2+8*db+4+i}")
                a.e(f"v_cvt_pk_bf16_f32 v{o+i}, v{tmp+2*i}, v{tmp+2*i+1}")
            a.e(f"buffer_store_dwordx4 v[{o}:{o+3}], v{oo}, s[{S_R2}:{S_R2+3}], s4 offen offset:{2048*j + 1024*db}{SC}")

def fin_body2(a, V, sw, lds_base, NSPLIT, SCL, SC, bar, sig, poll):
    L = lane_consts(a, V)
    l15, g, l15f, g4f = L
    zd = V.get(16); vo = V.get(); t0 = V.get(); t1 = V.get(); t2 = V.get(); wa = V.get(4); dl = V.get()
    a.e(f"v_lshrrev_b32 v{vo}, 2, v1")
    a.e(f"v_lshlrev_b32 v{vo}, 14, v{vo}")
    a.e(f"v_and_b32 v{t0}, 2, v1")
    a.e(f"v_lshl_add_u32 v{vo}, v{t0}, 5, v{vo}")
    a.e(f"v_and_b32 v{t0}, 1, v1")
    a.e(f"v_lshl_add_u32 v{vo}, v{t0}, 4, v{vo}")
    a.e(f"s_lshr_b32 s3, s2, 1")
    a.e(f"s_lshl_b32 s3, s3, 7")
    a.e(f"s_and_b32 s4, s2, 1")
    a.e(f"s_lshl_b32 s4, s4, 5")
    a.e(f"s_add_u32 s3, s3, s4")
    a.e(f"s_add_u32 s3, s3, {Z2_OFF}")
    a.e(f"s_lshl_b32 s4, s{sw}, 20")
    a.e(f"s_add_u32 s3, s3, s4")
    for n in range(4):
        a.e(f"buffer_load_dwordx4 v[{zd+4*n}:{zd+4*n+3}], v{vo}, s[{S_WS}:{S_WS+3}], s3 offen{SCL}")
        a.e(f"s_add_u32 s3, s3, {16*16384}")
    pd = V.get(16*NSPLIT); b2 = V.get(8); gv = V.get(2); po = V.get(); oo = V.get()
    a.e(f"v_lshlrev_b32 v{po}, 10, v{l15}")
    a.e(f"v_lshl_add_u32 v{po}, v{g}, 4, v{po}")
    a.e(f"s_lshl_b32 s20, s2, 3")
    a.e(f"s_lshl_b32 s4, s{sw}, 1")
    a.e(f"s_add_u32 s20, s20, s4")
    a.e(f"s_lshr_b32 s4, s20, 4")
    a.e(f"s_lshl_b32 s4, s4, 15")
    a.e(f"s_and_b32 s5, s20, 15")
    a.e(f"s_lshl_b32 s5, s5, 6")
    a.e(f"s_add_u32 s4, s4, s5")
    a.e(f"s_add_u32 s4, s4, {P_OFF}")
    def pdr(j, db, ks): return pd + ((j*2 + db)*NSPLIT + ks)*4
    a.e(f"s_mov_b32 s21, s4")
    srd(a, S_R1, P_B2, 2048)
    srd(a, S_R2, P_OUT, 2048*1024*2)
    a.e(f"v_lshlrev_b32 v{oo}, 6, v{l15}")
    a.e(f"v_lshl_add_u32 v{oo}, v{g}, 4, v{oo}")
    for db in range(2):
        a.e(f"buffer_load_dwordx4 v[{b2+4*db}:{b2+4*db+3}], v{oo}, s[{S_R1}:{S_R1+3}], 0 offen offset:{1024*db}")
    a.e(f"s_lshl_b32 s5, s20, 2")
    a.e(f"s_add_u32 s5, s5, {G_OFF}")
    a.e(f"v_mov_b32 v{t0}, 0")
    a.e(f"buffer_load_dwordx2 v[{gv}:{gv+1}], v{t0}, s[{S_WS}:{S_WS+3}], s5 offen{SCL}")
    NL = 3
    a.e(f"v_lshrrev_b32 v{t0}, 2, v1")
    a.e(f"s_lshl_b32 s6, s{sw}, 6")
    a.e(f"v_add_u32 v{t0}, s6, v{t0}")
    a.e(f"v_sub_u32 v{t1}, 512, v{t0}")
    a.e(f"v_and_b32 v{t2}, 2, v1")
    a.e(f"v_cmp_ne_u32 vcc, 0, v{t2}")
    a.e(f"v_cndmask_b32 v{t0}, v{t0}, v{t1}, vcc")
    a.e(f"v_mov_b32 v{dl}, 64")
    a.e(f"v_mov_b32 v{t1}, -64")
    a.e(f"v_cndmask_b32 v{dl}, v{dl}, v{t1}, vcc")
    a.e(f"v_lshlrev_b32 v{t0}, 2, v{t0}")
    a.e(f"v_and_b32 v{t2}, 1, v1")
    a.e(f"v_lshlrev_b32 v{t2}, 13, v{t2}")
    a.e(f"v_add_u32 v{t2}, {lds_base}, v{t2}")
    a.e(f"v_add_u32 v{wa+1}, v{t0}, v{t2}")
    a.e(f"v_mov_b32 v{t1}, 1024")
    a.e(f"v_cmp_eq_u32 vcc, 2048, v{t0}")
    a.e(f"v_cndmask_b32 v{t1}, v{t0}, v{t1}, vcc")
    a.e(f"v_add_u32 v{wa}, v{t1}, v{t2}")
    a.e(f"v_add_u32 v{wa+1}, v{dl}, v{wa+1}")
    a.e(f"v_add_u32 v{wa+2}, v{dl}, v{wa+1}")
    a.e(f"v_add_u32 v{wa+3}, v{dl}, v{wa+2}")
    K = row_consts(a, V, L, True)
    xd = zd; D1 = V.get(16); P = V.get(8); D2 = V.get(32); tmp = V.get(16); b2f = V.get(16); ra = V.get()
    sig(tmp, 7)
    for n in range(4):
        a.e(f"s_waitcnt vmcnt({NL + 3 - n})")
        a.e(f"ds_write2st64_b32 v{wa+n}, v{zd+4*n}, v{zd+4*n+1} offset0:0 offset1:8")
        a.e(f"ds_write2st64_b32 v{wa+n}, v{zd+4*n+2}, v{zd+4*n+3} offset0:16 offset1:24")
    a.e(f"v_lshlrev_b32 v{ra}, 9, v{g}")
    a.e(f"v_lshl_add_u32 v{ra}, v{l15}, 2, v{ra}")
    a.e(f"s_lshl_b32 s6, s{sw}, 12")
    a.e(f"s_add_u32 s6, s6, {lds_base}")
    a.e(f"v_add_u32 v{ra}, s6, v{ra}")
    a.e(f"v_add_u32 v{t0}, 2048, v{ra}")
    bar(tmp)
    for j in range(2):
        ad = ra if j == 0 else t0
        for bb in range(2):
            r = xd + 8*j + 4*bb
            a.e(f"ds_read2_b32 v[{r}:{r+1}], v{ad} offset0:{16*bb} offset1:{16*bb+32}")
            a.e(f"ds_read2_b32 v[{r+2}:{r+3}], v{ad} offset0:{16*bb+64} offset1:{16*bb+96}")
    a.e(f"s_waitcnt vmcnt(0)")
    for i in range(8):
        a.e(f"v_lshlrev_b32 v{b2f+2*i}, 16, v{b2+i}")
        a.e(f"v_and_b32 v{b2f+2*i+1}, 0xffff0000, v{b2+i}")
    og = V.get(2)
    a.e(f"v_sub_f32 v{og}, 1.0, v{gv}")
    a.e(f"v_sub_f32 v{og+1}, 1.0, v{gv+1}")
    a.e(f"v_cvt_pk_bf16_f32 v{t1}, v{og}, v{og+1}")
    a.e(f"v_lshlrev_b32 v{og}, 16, v{t1}")
    a.e(f"v_and_b32 v{og+1}, 0xffff0000, v{t1}")
    a.e(f"s_lshl_b32 s4, s20, 11")
    def pr(x): return f"v[{x}:{x+1}]"
    for j in range(2):
        a.e(f"s_waitcnt lgkmcnt({4 - 4*j})")
        row_fft(a, K, xd + 8*j, D1, P, D2 + 16*j, tmp)
    poll(tmp)
    for j in range(2):
        for db in range(2):
            for ks in range(NSPLIT):
                a.e(f"s_add_u32 s5, s21, {db*16384 + ks*(4<<20)}")
                r = pdr(j, db, ks)
                a.e(f"buffer_load_dwordx4 v[{r}:{r+3}], v{po}, s[{S_WS}:{S_WS+3}], s5 offen offset:{64*j}{SCL}")
    for j in range(2):
        for db in range(2):
            idx = j*2 + db
            a.e(f"s_waitcnt vmcnt({(3 - idx)*NSPLIT + idx})")
            for i in range(4):
                for ks in range(NSPLIT):
                    src = pdr(j, db, ks) + i
                    u = tmp + 8 + 2*(ks & 1)
                    a.e(f"v_lshlrev_b32 v{u}, 16, v{src}")
                    a.e(f"v_and_b32 v{u+1}, 0xffff0000, v{src}")
                    prev = b2f + 8*db + 2*i if ks == 0 else tmp + 2*i
                    a.e(f"v_pk_add_f32 {pr(tmp+2*i)}, {pr(u)}, {pr(prev)}")
            o = pdr(j, db, 0)
            for i in range(4):
                a.e(f"v_mul_f32 v{tmp+2*i}, v{og+j}, v{tmp+2*i}")
                a.e(f"v_mul_f32 v{tmp+2*i+1}, v{og+j}, v{tmp+2*i+1}")
                a.e(f"v_fmac_f32 v{tmp+2*i}, v{gv+j}, v{D2+16*j+8*db+i}")
                a.e(f"v_fmac_f32 v{tmp+2*i+1}, v{gv+j}, v{D2+16*j+8*db+4+i}")
                a.e(f"v_cvt_pk_bf16_f32 v{o+i}, v{tmp+2*i}, v{tmp+2*i+1}")
            a.e(f"buffer_store_dwordx4 v[{o}:{o+3}], v{oo}, s[{S_R2}:{S_R2+3}], s4 offen offset:{2048*j + 1024*db}{SC}")

def small_kernel(a, name, body, lds, nv=256, ST=False):
    a.begin_kernel(name)
    Lend = a.newlabel("Lend")
    a.e(f"s_cmp_ge_u32 s2, 256")
    a.e(f"s_cbranch_scc1 {Lend}")
    load_ptrs(a)
    a.e("v_lshrrev_b32 v2, 6, v0")
    a.e("v_and_b32 v1, 63, v0")
    a.e("v_readfirstlane_b32 s28, v2")
    a.e("s_waitcnt lgkmcnt(0)")
    stamp_init(a, ST); stamp(a, 0, ST)
    srd(a, S_WS, P_WS, WS_USED)
    V = VA(2, 248)
    body(a, V, 28)
    stamp(a, 1, ST)
    if ST: a.e("s_waitcnt vmcnt(0)")
    stamp(a, 2, ST)
    stamp_flush(a, P_WS, ST)
    a.label(Lend)
    a.e("s_endpgm")
    a.end_kernel(name, 256 if ST else max(V.n, 8))
    a.launch(name, 256, 256, lds)
    return V.n
```

```python
import sys, math
from asmlib import *
from gemmgen import *
import gemmgen
from fftgen import *
from gen_g1 import gelu_pairs

FLAG_OFF = 47 << 20
SCR = 135168
SYNC = SCR + 16384
LDS_TOTAL = SYNC + 64
S_DBG = 100
SPIN_MAX = 1 << 18

class Sync:
    def __init__(self): self.nbar = 0; self.nsig = 0
    def cbar(self, a, vt):
        self.nbar += 1
        L = a.newlabel("Lcb")
        a.e("s_waitcnt lgkmcnt(0)")
        a.e(f"v_mov_b32 v{vt}, {SYNC}")
        a.e(f"v_mov_b32 v{vt+1}, 1")
        a.e("s_mov_b64 exec, 1")
        a.e(f"ds_add_u32 v{vt}, v{vt+1}")
        a.label(L)
        a.e(f"ds_read_b32 v{vt+1}, v{vt}")
        a.e("s_waitcnt lgkmcnt(0)")
        a.e(f"v_readfirstlane_b32 s7, v{vt+1}")
        a.e(f"s_cmp_ge_u32 s7, {4*self.nbar}")
        a.e(f"s_cbranch_scc0 {L}")
        a.e("s_mov_b64 exec, -1")
    def cbar_alt(self, a, vt, k):
        L = a.newlabel("Lcb")
        a.e("s_waitcnt lgkmcnt(0)")
        a.e(f"v_mov_b32 v{vt}, {SYNC + 60}")
        a.e(f"v_mov_b32 v{vt+1}, 1")
        a.e("s_mov_b64 exec, 1")
        a.e(f"ds_add_u32 v{vt}, v{vt+1}")
        a.label(L)
        a.e(f"ds_read_b32 v{vt+1}, v{vt}")
        a.e("s_waitcnt lgkmcnt(0)")
        a.e(f"v_readfirstlane_b32 s7, v{vt+1}")
        a.e(f"s_cmp_ge_u32 s7, {4*k}")
        a.e(f"s_cbranch_scc0 {L}")
        a.e("s_mov_b64 exec, -1")
    def signal(self, a, vt, emit):
        self.nsig += 1
        L = a.newlabel("Lsg")
        a.e(f"v_mov_b32 v{vt}, {SYNC + 4*self.nsig}")
        a.e(f"v_mov_b32 v{vt+1}, 1")
        a.e("s_mov_b64 exec, 1")
        a.e(f"ds_add_rtn_u32 v{vt+1}, v{vt}, v{vt+1}")
        a.e("s_waitcnt lgkmcnt(0)")
        a.e(f"v_readfirstlane_b32 s7, v{vt+1}")
        a.e(f"s_cmp_eq_u32 s7, 3")
        a.e(f"s_cbranch_scc0 {L}")
        emit()
        a.label(L)
        a.e("s_mov_b64 exec, -1")

def dbg_add(a, vt, off):
    a.e(f"v_mov_b32 v{vt}, {off}")
    a.e(f"v_mov_b32 v{vt+1}, 1")
    a.e(f"global_atomic_add v{vt}, v{vt+1}, s[{P_DBG}:{P_DBG+1}] sc1")

def poll_dbg(a, vt, off, target):
    L = a.newlabel("Lpd"); Lo = a.newlabel("Lpo")
    a.e(f"v_mov_b32 v{vt}, {off}")
    a.e(f"s_mov_b32 s6, 0")
    a.label(L)
    a.e(f"global_load_dword v{vt+1}, v{vt}, s[{P_DBG}:{P_DBG+1}] sc1")
    a.e("s_waitcnt vmcnt(0)")
    a.e(f"v_readfirstlane_b32 s7, v{vt+1}")
    a.e(f"s_cmp_ge_u32 s7, {target}")
    a.e(f"s_cbranch_scc1 {Lo}")
    a.e("s_sleep 2")
    a.e("s_add_u32 s6, s6, 1")
    a.e(f"s_cmp_lt_u32 s6, {SPIN_MAX}")
    a.e(f"s_cbranch_scc1 {L}")
    a.label(Lo)

def poll_flags(a, vt, s_off, n, keep=0):
    L = a.newlabel("Lpf"); Lo = a.newlabel("Lpo")
    a.e(f"v_and_b32 v{vt}, {n-1}, v1")
    a.e(f"v_lshlrev_b32 v{vt}, 2, v{vt}")
    a.e(f"s_mov_b32 s6, 0")
    a.label(L)
    a.e(f"buffer_load_dword v{vt+1}, v{vt}, s[{S_WS}:{S_WS+3}], s{s_off} offen sc1")
    a.e("s_waitcnt vmcnt(0)")
    a.e(f"v_cmp_ne_u32 vcc, 1, v{vt+1}")
    a.e(f"s_cbranch_vccz {Lo}")
    a.e("s_sleep 1")
    a.e("s_add_u32 s6, s6, 1")
    a.e(f"s_cmp_lt_u32 s6, {SPIN_MAX}")
    a.e(f"s_cbranch_scc1 {L}")
    a.label(Lo)

def issue_part(a, c, vs, srd_, soff, sreg, slot, extra_soff, SC=""):
    for j, v in enumerate(vs):
        if j % 4 == 0:
            a.e(f"s_add_u32 m0, s{sreg}, {slot * c.SLOT + (j // 4) * 4096}")
            a.e("s_nop 0")
        a.e(f"buffer_load_dwordx4 v{v}, s[{srd_}:{srd_+3}], s{soff} offen offset:{(j%4)*1024}{SC} lds")
    a.e(f"s_add_u32 s{soff}, s{soff}, {extra_soff}")

def loader_loop(a, c, vA, vB, first_issued, lastbar_pre=None):
    NS, NK, ND = c.NSLOT, c.NK, c.NDMA
    a.e(f"s_waitcnt vmcnt({min(63, c.wait0)})")
    a.e("s_barrier")
    for s in range(first_issued, NS):
        loader_issue(a, c, vA, vB)
    nloop = NK - NS
    a.e(f"s_mov_b32 s{S_CNT}, {nloop}")
    L = a.newlabel("Lld")
    a.label(L)
    a.e(f"s_waitcnt vmcnt({min(63, ND * (NS - 2))})")
    a.e("s_barrier")
    loader_issue(a, c, vA, vB)
    a.e(f"s_sub_u32 s{S_CNT}, s{S_CNT}, 1")
    a.e(f"s_cmp_lg_u32 s{S_CNT}, 0")
    a.e(f"s_cbranch_scc1 {L}")
    for i in range(NS - 1):
        a.e(f"s_waitcnt vmcnt({min(63, ND * (NS - 2 - i))})")
        a.e("s_barrier")
    if lastbar_pre: lastbar_pre()
    a.e("s_barrier")

def consumer_loop(a, c, R):
    nm = c.MB * c.NB
    adv = [f"s_add_u32 s{S_SLOT}, s{S_SLOT}, {c.SLOT}",
           f"s_cmp_eq_u32 s{S_SLOT}, {c.SLOT * c.NSLOT}",
           f"s_cselect_b32 s{S_TMP}, s{S_TMP+6}, s{S_TMP+7}",
           f"s_cselect_b32 s{S_SLOT}, 0, s{S_SLOT}"]
    a.e(f"s_mov_b32 s{S_TMP+6}, {-c.SLOT * (c.NSLOT - 1) & 0xffffffff}")
    a.e(f"s_mov_b32 s{S_TMP+7}, {c.SLOT}")
    upd = [f"v_add_u32 v{r}, s{S_TMP}, v{r}" for r in R.aA + R.aB]
    a.e("s_barrier")
    c.stampf(0)
    for r in frag_reads(c, R, 0, 0): a.e(r)
    a.e(f"s_mov_b32 s{S_CNT}, {c.NK - 1}")
    a.e("s_waitcnt lgkmcnt(0)")
    L = a.newlabel("Lcons")
    a.lines.append(".p2align 6")
    a.label(L)
    barpos = nm - 3
    interleave(a, c, mfmas(c, R, 0), frag_reads(c, R, 1, 1) + adv + upd,
               tail=[(barpos, ["s_waitcnt lgkmcnt(0)", "s_barrier"])])
    interleave(a, c, mfmas(c, R, 1), frag_reads(c, R, 0, 0) + [f"s_sub_u32 s{S_CNT}, s{S_CNT}, 1", f"s_cmp_lg_u32 s{S_CNT}, 0"],
               tail=[(nm - 1, ["s_waitcnt lgkmcnt(0)"])])
    a.e(f"s_cbranch_scc1 {L}")
    interleave(a, c, mfmas(c, R, 0), frag_reads(c, R, 1, 1), tail=[(barpos, ["s_waitcnt lgkmcnt(0)", "s_barrier"])])
    interleave(a, c, mfmas(c, R, 1), [])
    c.stampf(1)

def map_g1(a):
    a.e(f"""
    s_and_b32 s3, s2, 1
    s_lshl_b32 s3, s3, 3
    s_bfe_u32 s4, s2, 0x30003
    s_add_u32 s3, s3, s4
    s_lshl_b32 s{S_M0}, s3, 7
    s_bfe_u32 s3, s2, 0x20001
    s_lshl_b32 s3, s3, 2
    s_lshr_b32 s4, s2, 6
    s_add_u32 s3, s3, s4
    s_mul_i32 s{S_N0}, s3, 224
    s_mov_b32 s{S_K0}, 0
    """)
def map_g2(a):
    a.e(f"""
    s_and_b32 s3, s2, 3
    s_lshl_b32 s3, s3, 2
    s_bfe_u32 s4, s2, 0x20003
    s_add_u32 s3, s3, s4
    s_lshl_b32 s{S_M0}, s3, 7
    s_lshr_b32 s3, s2, 5
    s_lshl_b32 s{S_N0}, s3, 7
    s_bfe_u32 s3, s2, 0x10002
    s_mul_i32 s{S_K0}, s3, 1792
    """)

def build(name, ST=False, NS2=4, PF=(), PFS=128):
    a = Asm()
    SC = " sc1"
    c1 = GemmCfg(128, 224, 1024, 3, 2048, 7168)
    c2 = GemmCfg(128, 128, 1792, NS2, 112*1024, 2048)
    c2.a_blocked = True; c2.a_off = H_OFF
    assert c1.SLOT*c1.NSLOT <= SCR and c2.SLOT*c2.NSLOT <= SCR
    sy = Sync()
    a.begin_kernel(name)
    Lend = a.newlabel("Lend"); Lload = a.newlabel("Lload")
    a.e(f"s_cmp_ge_u32 s2, 256")
    a.e(f"s_cbranch_scc1 {Lend}")
    load_ptrs(a)
    a.e("v_lshrrev_b32 v2, 6, v0")
    a.e("v_and_b32 v1, 63, v0")
    a.e(f"v_readfirstlane_b32 s{S_WAVE}, v2")
    a.e(f"v_and_b32 v2, 15, v0")
    a.e(f"v_lshlrev_b32 v2, 2, v2")
    a.e(f"v_mov_b32 v3, 0")
    a.e(f"ds_write_b32 v2, v3 offset:{SYNC - 131072}" if False else f"v_add_u32 v2, {SYNC}, v2")
    a.e(f"ds_write_b32 v2, v3")
    map_g1(a)
    a.e("s_waitcnt lgkmcnt(0)")
    stamp_init(a, ST); stamp(a, 0, ST)
    srd(a, S_WS, P_WS, WS_USED)
    a.e(f"s_cmp_ge_u32 s{S_WAVE}, 4")
    a.e(f"s_cbranch_scc1 {Lload}")
    a.e("s_barrier")
    BT = 242
    srd(a, S_R1, P_B1, 3584*2)
    a.e(f"s_lshr_b32 s3, s{S_WAVE}, 1")
    a.e(f"s_lshl_b32 s4, s3, 7")
    a.e(f"s_add_u32 s4, s4, s{S_N0}")
    a.e(f"s_lshl_b32 s4, s4, 1")
    a.e(f"s_lshl_b32 s5, s3, 4")
    a.e(f"s_add_u32 s5, s5, s{S_N0}")
    a.e(f"s_add_u32 s5, s5, 96")
    a.e(f"s_lshl_b32 s5, s5, 1")
    a.e(f"v_lshrrev_b32 v2, 4, v1")
    a.e(f"v_lshlrev_b32 v2, 3, v2")
    for nb in range(7):
        if nb < 6: a.e(f"buffer_load_dwordx2 v[{BT+2*nb}:{BT+2*nb+1}], v2, s[{S_R1}:{S_R1+3}], s4 offen offset:{32*nb}")
        else: a.e(f"buffer_load_dwordx2 v[{BT+2*nb}:{BT+2*nb+1}], v2, s[{S_R1}:{S_R1+3}], s5 offen")
    a.e(f"""
    s_lshr_b32 s3, s{S_M0}, 6
    s_bfe_u32 s4, s2, 0x10002
    s_add_u32 s3, s3, s4
    s_lshl_b32 s3, s3, 7
    s_bfe_u32 s4, s2, 0x10001
    s_lshl_b32 s4, s4, 2
    s_lshr_b32 s5, s2, 6
    s_add_u32 s4, s4, s5
    s_lshl_b32 s4, s4, 2
    s_add_u32 s3, s3, s4
    s_add_u32 s100, s3, {FLAG_OFF}
    s_and_b32 s3, s2, 3
    s_lshl_b32 s3, s3, 2
    s_bfe_u32 s4, s2, 0x20003
    s_add_u32 s3, s3, s4
    s_lshl_b32 s3, s3, 7
    s_lshr_b32 s4, s2, 5
    s_lshl_b32 s4, s4, 1
    s_bfe_u32 s5, s2, 0x10002
    s_add_u32 s4, s4, s5
    s_lshl_b32 s4, s4, 2
    s_add_u32 s3, s3, s4
    s_add_u32 s101, s3, {FLAG_OFF + 8192}
    v_mov_b32 v2, 0
    s_mov_b64 exec, 1
    buffer_store_dword v2, v2, s[{S_WS}:{S_WS+3}], s100 offen sc1
    buffer_store_dword v2, v2, s[{S_WS}:{S_WS+3}], s101 offen sc1
    s_mov_b64 exec, -1
    """)
    V = VA(2, 240)
    def pf():
        n = 0
        st = PFS
        a.e(f"s_lshl_b32 s24, s2, 2")
        a.e(f"s_add_u32 s24, s24, s{S_WAVE}")
        a.e(f"v_mul_u32_u24 v240, {st}, v1")
        for nm, ptr, kb in (("x", P_X, 4), ("w1", P_W1, 7), ("w2", P_W2, 7)):
            if nm not in PF: continue
            srd(a, 8, ptr, kb << 20)
            a.e(f"s_mul_i32 s25, s24, {kb*1024}")
            a.e(f"s_add_u32 s10, s25, {kb*1024}")
            for i in range(-(-kb*1024 // (64*st))):
                a.e(f"buffer_load_dword v241, v240, s[8:11], s25 offen")
                a.e(f"s_add_u32 s25, s25, {64*st}")
                n += 1
        if "touch" in PF:
            a.e(f"s_lshr_b32 s25, s{S_M0}, 4")
            a.e(f"s_lshl_b32 s26, s{S_WAVE}, 1")
            a.e(f"s_add_u32 s25, s25, s26")
            a.e(f"s_mul_i32 s25, s25, 112")
            a.e(f"s_lshr_b32 s26, s{S_N0}, 5")
            a.e(f"s_add_u32 s25, s25, s26")
            a.e(f"s_lshl_b32 s25, s25, 10")
            a.e(f"s_add_u32 s25, s25, {H_OFF}")
            a.e(f"v_min_u32 v240, 55, v1")
            a.e(f"v_lshlrev_b32 v240, 7, v240")
            for i in range(2):
                a.e(f"buffer_load_dword v241, v240, s[{S_WS}:{S_WS+3}], s25 offen sc1")
                a.e(f"s_add_u32 s25, s25, {112*1024}")
                n += 1
            a.e(f"""
            s_and_b32 s25, s2, 3
            s_lshl_b32 s25, s25, 2
            s_bfe_u32 s26, s2, 0x20003
            s_add_u32 s25, s25, s26
            s_lshl_b32 s25, s25, 3
            s_lshl_b32 s26, s{S_WAVE}, 1
            s_add_u32 s25, s25, s26
            s_lshl_b32 s25, s25, 5
            s_lshr_b32 s26, s2, 5
            s_lshl_b32 s26, s26, 2
            s_add_u32 s25, s25, s26
            s_lshl_b32 s25, s25, 10
            s_bfe_u32 s26, s2, 0x10002
            s_lshl_b32 s26, s26, 22
            s_add_u32 s25, s25, s26
            s_add_u32 s25, s25, {P_OFF}
            v_and_b32 v240, 31, v1
            v_lshlrev_b32 v240, 7, v240
            v_lshrrev_b32 v239, 5, v1
            v_lshl_add_u32 v240, v239, 15, v240
            buffer_load_dword v241, v240, s[{S_WS}:{S_WS+3}], s25 offen sc1
            s_lshl_b32 s25, s24, 12
            s_add_u32 s25, s25, {Z2_OFF}
            v_and_b32 v240, 31, v1
            v_lshlrev_b32 v240, 7, v240
            buffer_load_dword v241, v240, s[{S_WS}:{S_WS+3}], s25 offen sc1
            """)
            srd(a, 8, P_OUT, 4 << 20)
            a.e(f"s_lshl_b32 s25, s24, 12")
            a.e(f"buffer_load_dword v241, v240, s[8:11], s25 offen sc1")
            n += 3
        return n
    rf_body(a, V, S_WAVE, SCR, SC=SC, bar=lambda vt: sy.cbar(a, vt), pf=pf)
    stamp(a, 1, ST)
    R = ConsRegs(c1, 8)
    T = R.end
    consumer_setup(a, c1, R, T, T+1)
    for nb in range(c1.NB):
        for mb in range(c1.MB):
            d = R.accreg(c1, mb, nb)
            a.e(f"v_lshlrev_b32 v{d}, 16, v{BT+2*nb}")
            a.e(f"v_and_b32 v{d+1}, 0xffff0000, v{BT+2*nb}")
            a.e(f"v_lshlrev_b32 v{d+2}, 16, v{BT+2*nb+1}")
            a.e(f"v_and_b32 v{d+3}, 0xffff0000, v{BT+2*nb+1}")
    a.e("s_waitcnt vmcnt(0)")
    sy.signal(a, T, lambda: dbg_add(a, T, 0))
    c1.stampf = lambda i: stamp(a, 2 + i, ST)
    consumer_loop(a, c1, R)
    kA, kB, one = T, T+2, T+4
    A_ = 2*math.sqrt(2/math.pi)*math.log2(math.e)
    a.e(f"v_mov_b32 v{kA}, {f32(-A_)}"); a.e(f"v_mov_b32 v{kA+1}, {f32(-A_)}")
    a.e(f"v_mov_b32 v{kB}, {f32(-A_*0.044715)}"); a.e(f"v_mov_b32 v{kB+1}, {f32(-A_*0.044715)}")
    a.e(f"v_mov_b32 v{one}, 1.0"); a.e(f"v_mov_b32 v{one+1}, 1.0")
    a.e(f"""
    s_lshr_b32 s3, s{S_WAVE}, 1
    s_and_b32 s4, s{S_WAVE}, 1
    s_lshl_b32 s4, s4, 2
    s_lshr_b32 s5, s{S_M0}, 4
    s_add_u32 s4, s4, s5
    s_mul_i32 s4, s4, 112
    s_lshr_b32 s5, s{S_N0}, 5
    s_add_u32 s4, s4, s5
    s_lshl_b32 s4, s4, 10
    s_add_u32 s4, s4, {H_OFF}
    s_lshl_b32 s6, s3, 12
    s_add_u32 s6, s6, s4
    s_lshl_b32 s7, s3, 5
    s_add_u32 s7, s7, s4
    s_add_u32 s7, s7, 3072
    v_and_b32 v4, 15, v1
    v_lshlrev_b32 v4, 6, v4
    v_lshrrev_b32 v5, 4, v1
    v_lshlrev_b32 v3, 3, v5
    v_add3_u32 v3, v3, v4, s7
    v_and_b32 v2, 1, v5
    v_lshlrev_b32 v2, 5, v2
    v_lshrrev_b32 v5, 1, v5
    v_lshlrev_b32 v5, 4, v5
    v_add3_u32 v2, v2, v5, v4
    v_add_u32 v2, s6, v2
    """)
    tmp = R.fa[0]; pk_ = tmp + 32
    for mb in range(c1.MB):
        a.e(f"s_mov_b32 s5, {mb*112*1024}")
        for p in range(0, c1.NB, 2):
            nbs = [p, p+1] if p+1 < c1.NB else [p]
            regs = []
            for nb in nbs:
                d = R.accreg(c1, mb, nb); regs += [d, d+2]
            gelu_pairs(a, regs, tmp, kA, kB, one)
            q = pk_ + 4*((mb*4 + p//2) % 8)
            for i, r in enumerate(regs):
                a.e(f"v_cvt_pk_bf16_f32 v{q+i}, v{r}, v{r+1}")
            if len(nbs) == 2:
                a.e(f"v_permlane16_swap_b32 v{q}, v{q+2}")
                a.e(f"v_permlane16_swap_b32 v{q+1}, v{q+3}")
                a.e(f"buffer_store_dwordx4 v[{q}:{q+3}], v2, s[{S_WS}:{S_WS+3}], s5 offen offset:{512*p}{SC}")
            else:
                a.e(f"buffer_store_dwordx2 v[{q}:{q+1}], v3, s[{S_WS}:{S_WS+3}], s5 offen{SC}")
    stamp(a, 4, ST)
    def sig_h(vt):
        a.e("s_waitcnt vmcnt(20)")
        def em():
            a.e(f"v_mov_b32 v{vt}, 0"); a.e(f"v_mov_b32 v{vt+1}, 1")
            a.e(f"buffer_store_dword v{vt+1}, v{vt}, s[{S_WS}:{S_WS+3}], s100 offen sc1")
        sy.signal(a, vt, em)
    V = VA(2, 248)
    cp_body(a, V, S_WAVE, SCR, SCL=SC, SC=SC, bar=lambda vt: sy.cbar(a, vt), hook=sig_h, sy=sy)
    stamp(a, 5, ST)
    map_g2(a)
    R = ConsRegs(c2, 8)
    T = R.end
    consumer_setup(a, c2, R, T, T+1)
    for i in range(c2.MB*c2.NB*4): a.e(f"v_mov_b32 v{R.acc+i}, 0")
    a.e("s_waitcnt vmcnt(0)")
    sy.signal(a, T, lambda: dbg_add(a, T, 128))
    c2.stampf = lambda i: (stamp(a, 6, ST) if i == 1 else None)
    consumer_loop(a, c2, R)
    a.e(f"""
    s_and_b32 s4, s{S_WAVE}, 1
    s_lshl_b32 s4, s4, 2
    s_lshr_b32 s5, s{S_M0}, 4
    s_add_u32 s4, s4, s5
    s_lshl_b32 s4, s4, 5
    s_lshr_b32 s5, s{S_N0}, 5
    s_add_u32 s4, s4, s5
    s_and_b32 s5, s{S_WAVE}, 2
    s_add_u32 s4, s4, s5
    s_lshl_b32 s4, s4, 10
    s_bfe_u32 s5, s2, 0x10002
    s_lshl_b32 s5, s5, 22
    s_add_u32 s4, s4, s5
    s_add_u32 s4, s4, {P_OFF}
    v_and_b32 v4, 15, v1
    v_lshlrev_b32 v4, 6, v4
    v_lshrrev_b32 v5, 4, v1
    v_and_b32 v2, 1, v5
    v_lshlrev_b32 v2, 5, v2
    v_lshrrev_b32 v5, 1, v5
    v_lshlrev_b32 v5, 4, v5
    v_add3_u32 v2, v2, v5, v4
    v_add_u32 v2, s4, v2
    """)
    pk_ = R.fa[0]
    for mb in range(c2.MB):
        a.e(f"s_mov_b32 s5, {mb*32*1024}")
        for p in range(0, c2.NB, 2):
            q = pk_ + 4*(mb*2 + p//2)
            for i, nb in enumerate((p, p+1)):
                d = R.accreg(c2, mb, nb)
                a.e(f"v_cvt_pk_bf16_f32 v{q+2*i}, v{d}, v{d+1}")
                a.e(f"v_cvt_pk_bf16_f32 v{q+2*i+1}, v{d+2}, v{d+3}")
            a.e(f"v_permlane16_swap_b32 v{q}, v{q+2}")
            a.e(f"v_permlane16_swap_b32 v{q+1}, v{q+3}")
            a.e(f"buffer_store_dwordx4 v[{q}:{q+3}], v2, s[{S_WS}:{S_WS+3}], s5 offen offset:{512*p}{SC}")
    def sig_p(vt, n):
        a.e(f"s_waitcnt vmcnt({n})")
        def em():
            a.e(f"v_mov_b32 v{vt}, 0"); a.e(f"v_mov_b32 v{vt+1}, 1")
            a.e(f"buffer_store_dword v{vt+1}, v{vt}, s[{S_WS}:{S_WS+3}], s101 offen sc1")
        sy.signal(a, vt, em)
    def poll_p(vt):
        a.e(f"s_lshr_b32 s5, s2, 4")
        a.e(f"s_lshl_b32 s5, s5, 7")
        a.e(f"s_add_u32 s5, s5, {FLAG_OFF + 8192}")
        poll_flags(a, vt, 5, 16)
    V = VA(2, 248)
    fin_body2(a, V, S_WAVE, SCR, 2, SC, SC, bar=lambda vt: sy.cbar(a, vt), sig=sig_p, poll=poll_p)
    stamp(a, 7, ST)
    stamp_flush(a, P_WS, ST)
    a.e("s_endpgm")
    a.label(Lload)
    a.e(f"s_sub_u32 s{S_WAVE}, s{S_WAVE}, 4")
    srd(a, S_SRDA, P_X, 2048*1024*2)
    srd(a, S_SRDB, P_W1, 1024*3584*2)
    vA, vB = loader_setup(a, c1, 4)
    loader_issue(a, c1, vA, vB)
    a.e("s_barrier")
    loader_issue(a, c1, vA, vB)
    c1.wait0 = c1.NDMA
    stamp(a, 1, ST)
    vA2 = vB2 = None
    def pre1():
        nonlocal vA2, vB2
        map_g2(a)
        srd(a, S_SRDB, P_W2, 1024*3584*2)
        vA2, vB2 = loader_setup(a, c2, 32)
        poll_dbg(a, 60, 0, 256)
    loader_loop(a, c1, vA, vB, 2, lastbar_pre=pre1)
    stamp(a, 3, ST)
    for s in range(c2.NSLOT):
        issue_part(a, c2, vB2, S_SRDB, S_SOFFB, S_TMP+5, s, 64*c2.pitchB)
    a.e(f"s_lshr_b32 s5, s{S_M0}, 6")
    a.e(f"s_bfe_u32 s4, s2, 0x10002")
    a.e(f"s_add_u32 s5, s5, s4")
    a.e(f"s_lshl_b32 s5, s5, 7")
    a.e(f"s_add_u32 s5, s5, {FLAG_OFF}")
    poll_flags(a, 60, 5, 8)
    stamp(a, 4, ST)
    a.e(f"s_mov_b32 s{S_SRDA}, s{S_WS}"); a.e(f"s_mov_b32 s{S_SRDA+1}, s{S_WS+1}")
    a.e(f"s_mov_b32 s{S_SRDA+2}, {H_OFF + 2048*3584*2}")
    for s in range(c2.NSLOT):
        issue_part(a, c2, vA2, S_SRDA, S_SOFFA, S_TMP+4, s, 2048)
    c2.wait0 = c2.NA * (c2.NSLOT - 1)
    stamp(a, 5, ST)
    loader_loop2(a, c2, vA2, vB2, lastbar_pre=lambda: poll_dbg(a, 60, 128, 256))
    stamp(a, 6, ST)
    stamp_flush(a, P_WS, ST)
    a.label(Lend)
    a.e("s_endpgm")
    a.end_kernel(name, 256)
    a.launches.append(f"; @launch grid=(256,1,1) block=(512,1,1) lds={LDS_TOTAL}")
    return a

def loader_loop2(a, c, vA, vB, lastbar_pre):
    NS, NK, ND, NA = c.NSLOT, c.NK, c.NDMA, c.NA
    a.e(f"s_waitcnt vmcnt({NA * (NS - 1)})")
    a.e("s_barrier")
    peel = NS - 2
    for t in range(peel):
        a.e(f"s_waitcnt vmcnt({min(63, NA * (NS - 2 - t) + ND * t)})")
        a.e("s_barrier")
        loader_issue(a, c, vA, vB)
    nloop = NK - NS - peel
    a.e(f"s_mov_b32 s{S_CNT}, {nloop}")
    L = a.newlabel("Lld")
    a.label(L)
    a.e(f"s_waitcnt vmcnt({min(63, ND * (NS - 2))})")
    a.e("s_barrier")
    loader_issue(a, c, vA, vB)
    a.e(f"s_sub_u32 s{S_CNT}, s{S_CNT}, 1")
    a.e(f"s_cmp_lg_u32 s{S_CNT}, 0")
    a.e(f"s_cbranch_scc1 {L}")
    for i in range(NS - 1):
        a.e(f"s_waitcnt vmcnt({min(63, ND * (NS - 2 - i))})")
        a.e("s_barrier")
    lastbar_pre()
    a.e("s_barrier")

NAME = "gated_mix__spectral_gfnet__dense_activation_gelu__prompt_kernel"
hdr = open("gated_mix__spectral_gfnet__dense_activation_gelu__prompt.s.ref").read().split("; Override launch")[0]
if __name__ == "__main__":
    open("f1.s", "w").write(build(NAME).text(hdr))
    open("f1_st.s", "w").write(build(NAME, ST=True).text(hdr))
    open("f1_pf128_st.s", "w").write(build(NAME, ST=True, PF=("x", "w1", "w2"), PFS=128).text(hdr))
    open("f1_pf64_st.s", "w").write(build(NAME, ST=True, PF=("x", "w1", "w2"), PFS=64).text(hdr))
    open("f1_pft_st.s", "w").write(build(NAME, ST=True, PF=("x", "w1", "w2", "touch"), PFS=64).text(hdr))
    open("f1_pft.s", "w").write(build(NAME, PF=("x", "w1", "w2", "touch"), PFS=64).text(hdr))
    open("f1_pf64.s", "w").write(build(NAME, PF=("x", "w1", "w2"), PFS=64).text(hdr))
```

```python
from asmlib import *
import math
SGN2 = "0x80008000"

class VA:
    def __init__(self, base, limit=256): self.n = base; self.limit = limit
    def get(self, k=1, align=None):
        al = align or (4 if k >= 4 else (2 if k >= 2 else 1))
        self.n = (self.n + al - 1) // al * al
        r = self.n; self.n += k
        assert self.n <= self.limit, self.n
        return r

def mfma(a, d, A, B, first):
    c = "0" if first else f"v[{d}:{d+3}]"
    a.e(f"v_mfma_f32_16x16x32_bf16 v[{d}:{d+3}], v[{A}:{A+3}], v[{B}:{B+3}], {c}")

def angles(a, step, base, consts, cs):
    for K, (c, s) in zip(consts, cs):
        if K == 0: a.e(f"v_mov_b32 v{s}, v{base}")
        else: a.e(f"v_fmamk_f32 v{s}, v{step}, {f32(K)}, v{base}")
    for K, (c, s) in zip(consts, cs):
        a.e(f"v_cos_f32 v{c}, v{s}")
        a.e(f"v_sin_f32 v{s}, v{s}")

def rot(c, s, q):
    q %= 4
    return [(f"v{c}", f"v{s}"), (f"-v{s}", f"v{c}"), (f"-v{c}", f"-v{s}"), (f"v{s}", f"-v{c}")][q]

def pk(a, d, lohi): a.e(f"v_cvt_pk_bf16_f32 v{d}, {lohi[0]}, {lohi[1]}")

def twiddle_pack(a, re, im, tw, dst, tmp):
    for j in range(4):
        c, s = tw + 2*j, tw + 2*j + 1
        a.e(f"v_mul_f32 v{tmp+2*j}, v{re+j}, v{c}")
        a.e(f"v_mul_f32 v{tmp+2*j+1}, v{im+j}, v{c}")
    for j in range(4):
        c, s = tw + 2*j, tw + 2*j + 1
        a.e(f"v_fmac_f32 v{tmp+2*j}, v{im+j}, v{s}")
        a.e(f"v_fma_f32 v{tmp+2*j+1}, -v{re+j}, v{s}, v{tmp+2*j+1}")
    for j in range(4):
        a.e(f"v_cvt_pk_bf16_f32 v{dst+j}, v{tmp+2*j}, v{tmp+2*j+1}")

def lane_consts(a, V):
    l15 = V.get(); g = V.get(); l15f = V.get(); g4f = V.get()
    a.e(f"v_and_b32 v{l15}, 15, v1")
    a.e(f"v_lshrrev_b32 v{g}, 4, v1")
    a.e(f"v_cvt_f32_u32 v{l15f}, v{l15}")
    a.e(f"v_lshlrev_b32 v{g4f}, 2, v{g}")
    a.e(f"v_cvt_f32_u32 v{g4f}, v{g4f}")
    return l15, g, l15f, g4f

def row_consts(a, V, L, inverse):
    l15, g, l15f, g4f = L
    K = {}
    K["F1re"] = V.get(4); K["F1im"] = V.get(4); K["TW"] = V.get(16)
    K["G"] = [[[V.get(4) for ro in range(2)] for bb in range(2)] for db in range(2)]
    mark = V.n
    st = V.get(); ba = V.get(); cs = [(V.get(), V.get()) for _ in range(4)]; msk = V.get()
    a.e(f"v_mul_f32 v{st}, {f32(1/16)}, v{l15f}")
    a.e(f"v_mul_f32 v{ba}, v{g4f}, v{st}")
    angles(a, st, ba, [0, 1, 2, 3], cs)
    for i, (c, s) in enumerate(cs):
        pk(a, K["F1re"] + i, rot(c, s, 0)); pk(a, K["F1im"] + i, rot(c, s, 1))
    if inverse:
        a.e(f"v_lshlrev_b32 v{msk}, 26, v1")
        a.e(f"v_and_b32 v{msk}, 0x80000000, v{msk}")
        for i in range(4):
            a.e(f"v_xor_b32 v{K['F1re']+i}, v{msk}, v{K['F1re']+i}")
            a.e(f"v_xor_b32 v{K['F1im']+i}, v{msk}, v{K['F1im']+i}")
    a.e(f"v_mul_f32 v{st}, {f32(1/512)}, v{l15f}")
    a.e(f"v_mul_f32 v{ba}, v{g4f}, v{st}")
    angles(a, st, ba, [16*bb + j for bb in range(2) for j in range(4)], [(K["TW"] + 2*i, K["TW"] + 2*i + 1) for i in range(8)])
    a.e(f"v_mul_f32 v{st}, {f32(1/32)}, v{l15f}")
    a.e(f"v_mul_f32 v{ba}, v{g4f}, v{st}")
    angles(a, st, ba, [0, 1, 2, 3], cs)
    a.e(f"v_and_b32 v{msk}, 1, v1")
    a.e(f"v_mul_u32_u24 v{msk}, 0x8000, v{msk}")
    a.e(f"v_lshl_or_b32 v{msk}, v{msk}, 16, v{msk}")
    for db in range(2):
        negim = inverse or db == 1
        for j, (c, s) in enumerate(cs):
            q = 2 * j * db
            pk(a, K["G"][db][0][0] + j, rot(c, s, q))
            pk(a, K["G"][db][0][1] + j, rot(c, s, q + 1 + (2 if negim else 0)))
        for ro in range(2):
            for j in range(4):
                a.e(f"v_xor_b32 v{K['G'][db][1][ro]+j}, v{msk}, v{K['G'][db][0][ro]+j}")
    V.n = mark
    return K

def row_fft(a, K, data, D1, P, D2, tmp):
    for bb in range(2):
        mfma(a, D1 + 8*bb, data + 4*bb, K["F1re"], True)
        mfma(a, D1 + 8*bb + 4, data + 4*bb, K["F1im"], True)
    for bb in range(2):
        twiddle_pack(a, D1 + 8*bb, D1 + 8*bb + 4, K["TW"] + 8*bb, P + 4*bb, tmp)
    for bb in range(2):
        for db in range(2):
            for ro in range(2):
                mfma(a, D2 + 8*db + 4*ro, P + 4*bb, K["G"][db][bb][ro], bb == 0)

def rf_body(a, V, sw, lds_base, SC="", bar=True, pf=None, pf2=None, st=lambda i: None):
    xd = V.get(16); gw = V.get(8)
    vo = V.get()
    srd(a, S_R1, P_X, 2048*1024*2)
    srd(a, S_R2, P_GATE, 2048)
    a.e(f"s_lshr_b32 s3, s2, 4")
    a.e(f"s_lshl_b32 s3, s3, 7")
    a.e(f"s_and_b32 s4, s2, 15")
    a.e(f"s_lshl_b32 s4, s4, 1")
    a.e(f"s_add_u32 s3, s3, s4")
    a.e(f"s_lshl_b32 s4, s{sw}, 5")
    a.e(f"s_add_u32 s20, s3, s4")
    a.e(f"s_lshl_b32 s3, s20, 11")
    a.e(f"s_add_u32 s4, s3, 2048")
    L = lane_consts(a, V)
    l15, g, l15f, g4f = L
    a.e(f"v_lshlrev_b32 v{vo}, 9, v{g}")
    a.e(f"v_lshl_add_u32 v{vo}, v{l15}, 2, v{vo}")
    for j in range(2):
        for bb in range(2):
            for i in range(4):
                a.e(f"buffer_load_dword v{xd+8*j+4*bb+i}, v{vo}, s[{S_R1}:{S_R1+3}], s{3+j} offen offset:{128*i+64*bb}")
    for bb in range(2):
        for i in range(4):
            a.e(f"buffer_load_dword v{gw+4*bb+i}, v{vo}, s[{S_R2}:{S_R2+3}], 0 offen offset:{128*i+64*bb}")
    st(1)
    srd(a, S_R1, P_WR, 2048*513*2)
    srd(a, S_R2, P_WI, 2048*513*2)
    wd = V.get(20); we = V.get(20); wo = V.get(4); wdl = V.get(); t0 = V.get(); t1 = V.get(); t2 = V.get()
    a.e(f"s_lshr_b32 s5, s2, 2")
    a.e(f"s_and_b32 s6, s2, 3")
    a.e(f"s_lshl_b32 s6, s6, 7")
    a.e(f"s_add_u32 s5, s5, s6")
    a.e(f"v_and_b32 v{t0}, 1, v1")
    a.e(f"v_lshlrev_b32 v{t0}, 10, v{t0}")
    a.e(f"v_add_u32 v{t0}, s5, v{t0}")
    a.e(f"v_and_b32 v{t1}, 2, v1")
    a.e(f"v_cmp_ne_u32 vcc, 0, v{t1}")
    a.e(f"v_lshrrev_b32 v{t1}, 2, v1")
    a.e(f"s_lshl_b32 s6, s{sw}, 6")
    a.e(f"v_add_u32 v{t1}, s6, v{t1}")
    a.e(f"v_sub_u32 v{t2}, 512, v{t1}")
    a.e(f"v_cndmask_b32 v{t1}, v{t1}, v{t2}, vcc")
    a.e(f"v_lshlrev_b32 v{t1}, 1, v{t1}")
    a.e(f"v_mov_b32 v{wdl}, 32")
    a.e(f"v_mov_b32 v{t2}, -32")
    a.e(f"v_cndmask_b32 v{wdl}, v{wdl}, v{t2}, vcc")
    rowb = V.get(4)
    for i in range(4):
        a.e(f"v_add_u32 v{t2}, {512*(i>>1) + 64*(i&1)}, v{t0}")
        a.e(f"v_sub_u32 v{wo+i}, 2048, v{t2}")
        a.e(f"v_and_b32 v{wo+i}, 2047, v{wo+i}")
        a.e(f"v_cndmask_b32 v{t2}, v{t2}, v{wo+i}, vcc")
        a.e(f"v_mul_u32_u24 v{rowb+i}, 1026, v{t2}")
        a.e(f"v_add_u32 v{wo+i}, v{rowb+i}, v{t1}")
    for n in range(4):
        for i in range(4):
            a.e(f"buffer_load_ushort v{wd+4*n+i}, v{wo+i}, s[{S_R1}:{S_R1+3}], 0 offen")
            a.e(f"buffer_load_ushort v{we+4*n+i}, v{wo+i}, s[{S_R2}:{S_R2+3}], 0 offen")
            if n < 3: a.e(f"v_add_u32 v{wo+i}, v{wdl}, v{wo+i}")
    a.e(f"v_bfe_u32 v{t1}, v1, 2, 1")
    a.e(f"v_lshlrev_b32 v{t1}, 8, v{t1}")
    a.e(f"v_add_u32 v{t1}, 256, v{t1}")
    a.e(f"v_sub_u32 v{t2}, 512, v{t1}")
    a.e(f"v_cndmask_b32 v{t1}, v{t1}, v{t2}, vcc")
    a.e(f"v_lshlrev_b32 v{t1}, 1, v{t1}")
    for i in range(4):
        a.e(f"v_add_u32 v{wo+i}, v{rowb+i}, v{t1}")
        a.e(f"buffer_load_ushort v{wd+16+i}, v{wo+i}, s[{S_R1}:{S_R1+3}], 0 offen")
        a.e(f"buffer_load_ushort v{we+16+i}, v{wo+i}, s[{S_R2}:{S_R2+3}], 0 offen")
    NW = 40
    NPF = pf() if pf else 0
    a.mark("stop")
    NW += NPF
    st(2)
    K = row_consts(a, V, L, False)
    D1 = V.get(16); P = V.get(8); D2 = V.get(16); tmp = V.get(16); ob = V.get(16); la = V.get()
    gf = D1; acc = V.get(2)
    a.e(f"v_lshlrev_b32 v{la}, 6, v{l15}")
    a.e(f"v_lshl_add_u32 v{la}, v{g}, 4, v{la}")
    a.e(f"s_lshl_b32 s6, s{sw}, 11")
    a.e(f"s_add_u32 s6, s6, {lds_base}")
    a.e(f"v_add_u32 v{la}, s6, v{la}")
    a.mark("delay 1")
    st(3)
    a.e(f"s_waitcnt vmcnt({NW + 8})")
    st(4)
    for j in range(2):
        row_fft(a, K, xd + 8*j, D1, P, D2, tmp)
        for db in range(2):
            for jj in range(4):
                a.e(f"v_cvt_pk_bf16_f32 v{ob+8*j+4*db+jj}, v{D2+8*db+jj}, v{D2+8*db+4+jj}")
            a.e(f"ds_write_b128 v{la}, v[{ob+8*j+4*db}:{ob+8*j+4*db+3}] offset:{j*8192 + db*1024}")
    a.e(f"s_waitcnt vmcnt({NW})")
    if pf2: NPF += pf2()
    for i in range(8):
        a.e(f"v_lshlrev_b32 v{gf+2*i}, 16, v{gw+i}")
        a.e(f"v_and_b32 v{gf+2*i+1}, 0xffff0000, v{gw+i}")
    a.e(f"v_mov_b32 v{t0}, 0x3f803f80")
    for j in range(2):
        for i in range(8):
            a.e(f"v_lshlrev_b32 v{tmp+2*i}, 16, v{xd+8*j+i}")
            a.e(f"v_and_b32 v{tmp+2*i+1}, 0xffff0000, v{xd+8*j+i}")
        for i in range(8):
            a.e(f"v_pk_mul_f32 v[{tmp+2*i}:{tmp+2*i+1}], v[{tmp+2*i}:{tmp+2*i+1}], v[{gf+2*i}:{gf+2*i+1}]")
        for i in range(8):
            a.e(f"v_cvt_pk_bf16_f32 v{tmp+2*i}, v{tmp+2*i}, v{tmp+2*i+1}")
        a.e(f"v_mov_b32 v{acc+j}, 0")
        for i in range(8):
            a.e(f"v_dot2_f32_bf16 v{acc+j}, v{tmp+2*i}, v{t0}, v{acc+j}")
        a.e("s_nop 2")
    for ctl in ("row_shr:1 bound_ctrl:0", "row_shr:2 bound_ctrl:0", "row_shr:4 bound_ctrl:0", "row_shr:8 bound_ctrl:0",
                "row_bcast:15 row_mask:0xa", "row_bcast:31 row_mask:0xc"):
        for j in range(2):
            a.e(f"v_add_f32_dpp v{acc+j}, v{acc+j}, v{acc+j} {ctl}")
    a.e(f"v_cvt_pk_bf16_f32 v{t1}, v{acc}, v{acc+1}")
    a.e(f"v_lshlrev_b32 v{acc}, 16, v{t1}")
    a.e(f"v_and_b32 v{acc+1}, 0xffff0000, v{t1}")
    for j in range(2):
        a.e(f"v_mul_f32 v{acc+j}, {f32(-math.log2(math.e))}, v{acc+j}")
    for j in range(2): a.e(f"v_exp_f32 v{acc+j}, v{acc+j}")
    for j in range(2): a.e(f"v_add_f32 v{acc+j}, 1.0, v{acc+j}")
    for j in range(2): a.e(f"v_rcp_f32 v{acc+j}, v{acc+j}")
    a.e(f"v_cvt_pk_bf16_f32 v{t1}, v{acc}, v{acc+1}")
    a.e(f"v_lshlrev_b32 v{acc}, 16, v{t1}")
    a.e(f"v_and_b32 v{acc+1}, 0xffff0000, v{t1}")
    a.e(f"s_lshl_b32 s6, s2, 2")
    a.e(f"s_add_u32 s6, s6, s{sw}")
    a.e(f"s_lshl_b32 s6, s6, 7")
    a.e(f"s_add_u32 s6, s6, {G_OFF}")
    a.e(f"v_mov_b32 v{t1}, 0")
    a.mark("nocut_begin")
    a.e(f"s_mov_b64 s[22:23], exec")
    a.e(f"s_lshl_b64 exec, 1, 63")
    a.e(f"buffer_store_dwordx2 v[{acc}:{acc+1}], v{t1}, s[{S_WS}:{S_WS+3}], s6 offen{SC}")
    a.e(f"s_mov_b64 exec, s[22:23]")
    a.mark("nocut_end")
    a.e(f"s_lshr_b32 s5, s2, 6")
    a.e(f"s_lshl_b32 s5, s5, 13")
    a.e(f"s_and_b32 s6, s2, 3")
    a.e(f"s_lshl_b32 s6, s6, 11")
    a.e(f"s_add_u32 s5, s5, s6")
    a.e(f"s_bfe_u32 s6, s2, 0x40002")
    a.e(f"s_lshl_b32 s6, s6, 7")
    a.e(f"s_add_u32 s5, s5, s6")
    a.e(f"s_add_u32 s5, s5, {WT_OFF}")
    a.e(f"s_lshl_b32 s6, s{sw}, 20")
    a.e(f"s_add_u32 s6, s6, s5")
    so = V.get()
    a.e(f"v_lshrrev_b32 v{so}, 3, v1")
    a.e(f"v_lshlrev_b32 v{so}, 15, v{so}")
    a.e(f"v_and_b32 v{t1}, 7, v1")
    a.e(f"v_lshl_add_u32 v{so}, v{t1}, 4, v{so}")
    st(5)
    a.e(f"s_waitcnt vmcnt({1 + NPF})")
    st(6)
    for i in range(20):
        a.e(f"v_lshl_or_b32 v{wd+i}, v{we+i}, 16, v{wd+i}")
    for n in range(4):
        a.e(f"buffer_store_dwordx4 v[{wd+4*n}:{wd+4*n+3}], v{so}, s[{S_WS}:{S_WS+3}], s6 offen{SC}")
        a.e(f"s_add_u32 s6, s6, {16*16384}")
    a.e(f"s_add_u32 s5, s5, {256*16384}")
    a.mark("cond_begin")
    a.e(f"s_cmp_eq_u32 s{sw}, 0")
    a.e(f"s_cselect_b64 exec, 0xff, 0")
    Ls = a.newlabel("Lskip")
    a.e(f"s_cbranch_execz {Ls}")
    a.e(f"buffer_store_dwordx4 v[{wd+16}:{wd+19}], v{so}, s[{S_WS}:{S_WS+3}], s5 offen{SC}")
    a.label(Ls)
    a.e(f"s_mov_b64 exec, -1")
    a.mark("cond_end")
    if bar is True:
        a.e("s_waitcnt lgkmcnt(0)")
        a.e("s_barrier")
    elif bar == "sync": a.mark("sync")
    else: bar(tmp)
    a.e(f"v_lshrrev_b32 v{t0}, 2, v1")
    a.e(f"s_lshl_b32 s6, s{sw}, 6")
    a.e(f"v_add_u32 v{t0}, s6, v{t0}")
    a.e(f"v_sub_u32 v{t1}, 512, v{t0}")
    a.e(f"v_and_b32 v{t2}, 1, v1")
    a.e(f"v_cmp_ne_u32 vcc, 0, v{t2}")
    a.e(f"v_cndmask_b32 v{t0}, v{t0}, v{t1}, vcc")
    a.e(f"v_mov_b32 v{wdl}, 64")
    a.e(f"v_mov_b32 v{t1}, -64")
    a.e(f"v_cndmask_b32 v{wdl}, v{wdl}, v{t1}, vcc")
    a.e(f"v_lshlrev_b32 v{t0}, 2, v{t0}")
    a.e(f"v_and_b32 v{t2}, 2, v1")
    a.e(f"v_lshlrev_b32 v{t2}, 12, v{t2}")
    a.e(f"v_add_u32 v{t2}, {lds_base}, v{t2}")
    a.e(f"v_add_u32 v{wo+1}, v{t0}, v{t2}")
    a.e(f"v_mov_b32 v{t1}, 1024")
    a.e(f"v_cmp_eq_u32 vcc, 2048, v{t0}")
    a.e(f"v_cndmask_b32 v{t1}, v{t0}, v{t1}, vcc")
    a.e(f"v_add_u32 v{wo}, v{t1}, v{t2}")
    a.e(f"v_add_u32 v{wo+1}, v{wdl}, v{wo+1}")
    a.e(f"v_add_u32 v{wo+2}, v{wdl}, v{wo+1}")
    a.e(f"v_add_u32 v{wo+3}, v{wdl}, v{wo+2}")
    for n in range(4):
        a.e(f"ds_read2st64_b32 v[{ob+4*n}:{ob+4*n+1}], v{wo+n} offset0:0 offset1:8")
        a.e(f"ds_read2st64_b32 v[{ob+4*n+2}:{ob+4*n+3}], v{wo+n} offset0:16 offset1:24")
    a.e(f"s_lshl_b32 s5, s2, 7")
    a.e(f"s_add_u32 s5, s5, {Z1_OFF}")
    a.e(f"s_lshl_b32 s6, s{sw}, 20")
    a.e(f"s_add_u32 s6, s6, s5")
    for n in range(4):
        a.e(f"s_waitcnt lgkmcnt({6 - 2*n})")
        a.e(f"buffer_store_dwordx4 v[{ob+4*n}:{ob+4*n+3}], v{so}, s[{S_WS}:{S_WS+3}], s6 offen{SC}")
        a.e(f"s_add_u32 s6, s6, {16*16384}")


def rfx_body(a, V, sw, lds_base, SC="", bar=True, pf=None, pf2=None, st=lambda i: None, u=2):
    xd = V.get(16); gw = V.get(8)
    vo = V.get()
    srd(a, S_R1, P_X, 2048*1024*2)
    srd(a, S_R2, P_GATE, 2048)
    a.e(f"s_lshr_b32 s3, s{u}, 4")
    a.e(f"s_lshl_b32 s3, s3, 7")
    a.e(f"s_and_b32 s4, s{u}, 15")
    a.e(f"s_lshl_b32 s4, s4, 1")
    a.e(f"s_add_u32 s3, s3, s4")
    a.e(f"s_lshl_b32 s4, s{sw}, 5")
    a.e(f"s_add_u32 s20, s3, s4")
    a.e(f"s_lshl_b32 s3, s20, 11")
    a.e(f"s_add_u32 s4, s3, 2048")
    L = lane_consts(a, V)
    l15, g, l15f, g4f = L
    a.e(f"v_lshlrev_b32 v{vo}, 9, v{g}")
    a.e(f"v_lshl_add_u32 v{vo}, v{l15}, 2, v{vo}")
    for j in range(2):
        for bb in range(2):
            for i in range(4):
                a.e(f"buffer_load_dword v{xd+8*j+4*bb+i}, v{vo}, s[{S_R1}:{S_R1+3}], s{3+j} offen offset:{128*i+64*bb}")
    for bb in range(2):
        for i in range(4):
            a.e(f"buffer_load_dword v{gw+4*bb+i}, v{vo}, s[{S_R2}:{S_R2+3}], 0 offen offset:{128*i+64*bb}")
    st(1)
    wo = V.get(4); wdl = V.get(); t0 = V.get(); t1 = V.get(); t2 = V.get()
    NW = 0
    NPF = pf() if pf else 0
    a.mark("stop")
    NW += NPF
    st(2)
    K = row_consts(a, V, L, False)
    D1 = V.get(16); P = V.get(8); D2 = V.get(16); tmp = V.get(16); ob = V.get(16); la = V.get()
    gf = D1; acc = V.get(2)
    a.e(f"v_lshlrev_b32 v{la}, 6, v{l15}")
    a.e(f"v_lshl_add_u32 v{la}, v{g}, 4, v{la}")
    a.e(f"s_lshl_b32 s6, s{sw}, 11")
    a.e(f"s_add_u32 s6, s6, {lds_base}")
    a.e(f"v_add_u32 v{la}, s6, v{la}")
    a.mark("delay 1")
    st(3)
    a.e(f"s_waitcnt vmcnt({NW + 8})")
    st(4)
    for j in range(2):
        row_fft(a, K, xd + 8*j, D1, P, D2, tmp)
        for db in range(2):
            for jj in range(4):
                a.e(f"v_cvt_pk_bf16_f32 v{ob+8*j+4*db+jj}, v{D2+8*db+jj}, v{D2+8*db+4+jj}")
            a.e(f"ds_write_b128 v{la}, v[{ob+8*j+4*db}:{ob+8*j+4*db+3}] offset:{j*8192 + db*1024}")
    a.e(f"s_waitcnt vmcnt({NW})")
    if pf2: NPF += pf2()
    for i in range(8):
        a.e(f"v_lshlrev_b32 v{gf+2*i}, 16, v{gw+i}")
        a.e(f"v_and_b32 v{gf+2*i+1}, 0xffff0000, v{gw+i}")
    a.e(f"v_mov_b32 v{t0}, 0x3f803f80")
    for j in range(2):
        for i in range(8):
            a.e(f"v_lshlrev_b32 v{tmp+2*i}, 16, v{xd+8*j+i}")
            a.e(f"v_and_b32 v{tmp+2*i+1}, 0xffff0000, v{xd+8*j+i}")
        for i in range(8):
            a.e(f"v_pk_mul_f32 v[{tmp+2*i}:{tmp+2*i+1}], v[{tmp+2*i}:{tmp+2*i+1}], v[{gf+2*i}:{gf+2*i+1}]")
        for i in range(8):
            a.e(f"v_cvt_pk_bf16_f32 v{tmp+2*i}, v{tmp+2*i}, v{tmp+2*i+1}")
        a.e(f"v_mov_b32 v{acc+j}, 0")
        for i in range(8):
            a.e(f"v_dot2_f32_bf16 v{acc+j}, v{tmp+2*i}, v{t0}, v{acc+j}")
        a.e("s_nop 2")
    for ctl in ("row_shr:1 bound_ctrl:0", "row_shr:2 bound_ctrl:0", "row_shr:4 bound_ctrl:0", "row_shr:8 bound_ctrl:0",
                "row_bcast:15 row_mask:0xa", "row_bcast:31 row_mask:0xc"):
        for j in range(2):
            a.e(f"v_add_f32_dpp v{acc+j}, v{acc+j}, v{acc+j} {ctl}")
    a.e(f"v_cvt_pk_bf16_f32 v{t1}, v{acc}, v{acc+1}")
    a.e(f"v_lshlrev_b32 v{acc}, 16, v{t1}")
    a.e(f"v_and_b32 v{acc+1}, 0xffff0000, v{t1}")
    for j in range(2):
        a.e(f"v_mul_f32 v{acc+j}, {f32(-math.log2(math.e))}, v{acc+j}")
    for j in range(2): a.e(f"v_exp_f32 v{acc+j}, v{acc+j}")
    for j in range(2): a.e(f"v_add_f32 v{acc+j}, 1.0, v{acc+j}")
    for j in range(2): a.e(f"v_rcp_f32 v{acc+j}, v{acc+j}")
    a.e(f"v_cvt_pk_bf16_f32 v{t1}, v{acc}, v{acc+1}")
    a.e(f"v_lshlrev_b32 v{acc}, 16, v{t1}")
    a.e(f"v_and_b32 v{acc+1}, 0xffff0000, v{t1}")
    a.e(f"s_lshl_b32 s6, s{u}, 2")
    a.e(f"s_add_u32 s6, s6, s{sw}")
    a.e(f"s_lshl_b32 s6, s6, 7")
    a.e(f"s_add_u32 s6, s6, {G_OFF}")
    a.e(f"v_mov_b32 v{t1}, 0")
    a.mark("nocut_begin")
    a.e(f"s_mov_b64 s[22:23], exec")
    a.e(f"s_lshl_b64 exec, 1, 63")
    a.e(f"buffer_store_dwordx2 v[{acc}:{acc+1}], v{t1}, s[{S_WS}:{S_WS+3}], s6 offen{SC}")
    a.e(f"s_mov_b64 exec, s[22:23]")
    a.mark("nocut_end")
    so = V.get()
    a.e(f"v_lshrrev_b32 v{so}, 3, v1")
    a.e(f"v_lshlrev_b32 v{so}, 15, v{so}")
    a.e(f"v_and_b32 v{t1}, 7, v1")
    a.e(f"v_lshl_add_u32 v{so}, v{t1}, 4, v{so}")
    if bar is True:
        a.e("s_waitcnt lgkmcnt(0)")
        a.e("s_barrier")
    elif bar == "sync": a.mark("sync")
    else: bar(tmp)
    a.e(f"v_lshrrev_b32 v{t0}, 2, v1")
    a.e(f"s_lshl_b32 s6, s{sw}, 6")
    a.e(f"v_add_u32 v{t0}, s6, v{t0}")
    a.e(f"v_sub_u32 v{t1}, 512, v{t0}")
    a.e(f"v_and_b32 v{t2}, 1, v1")
    a.e(f"v_cmp_ne_u32 vcc, 0, v{t2}")
    a.e(f"v_cndmask_b32 v{t0}, v{t0}, v{t1}, vcc")
    a.e(f"v_mov_b32 v{wdl}, 64")
    a.e(f"v_mov_b32 v{t1}, -64")
    a.e(f"v_cndmask_b32 v{wdl}, v{wdl}, v{t1}, vcc")
    a.e(f"v_lshlrev_b32 v{t0}, 2, v{t0}")
    a.e(f"v_and_b32 v{t2}, 2, v1")
    a.e(f"v_lshlrev_b32 v{t2}, 12, v{t2}")
    a.e(f"v_add_u32 v{t2}, {lds_base}, v{t2}")
    a.e(f"v_add_u32 v{wo+1}, v{t0}, v{t2}")
    a.e(f"v_mov_b32 v{t1}, 1024")
    a.e(f"v_cmp_eq_u32 vcc, 2048, v{t0}")
    a.e(f"v_cndmask_b32 v{t1}, v{t0}, v{t1}, vcc")
    a.e(f"v_add_u32 v{wo}, v{t1}, v{t2}")
    a.e(f"v_add_u32 v{wo+1}, v{wdl}, v{wo+1}")
    a.e(f"v_add_u32 v{wo+2}, v{wdl}, v{wo+1}")
    a.e(f"v_add_u32 v{wo+3}, v{wdl}, v{wo+2}")
    for n in range(4):
        a.e(f"ds_read2st64_b32 v[{ob+4*n}:{ob+4*n+1}], v{wo+n} offset0:0 offset1:8")
        a.e(f"ds_read2st64_b32 v[{ob+4*n+2}:{ob+4*n+3}], v{wo+n} offset0:16 offset1:24")
    a.e(f"s_lshl_b32 s5, s{u}, 7")
    a.e(f"s_add_u32 s5, s5, {Z1_OFF}")
    a.e(f"s_lshl_b32 s6, s{sw}, 20")
    a.e(f"s_add_u32 s6, s6, s5")
    for n in range(4):
        a.e(f"s_waitcnt lgkmcnt({6 - 2*n})")
        a.e(f"buffer_store_dwordx4 v[{ob+4*n}:{ob+4*n+3}], v{so}, s[{S_WS}:{S_WS+3}], s6 offen{SC}")
        a.e(f"s_add_u32 s6, s6, {16*16384}")


def wprep_body(a, V, sw, lds, SC="", mid=lambda: None, NT=" nt", u=2, ldsw=None):
    srd(a, S_R1, P_WR, 2048*513*2)
    srd(a, S_R2, P_WI, 2048*513*2)
    wd = V.get(16); we = V.get(16); xd = V.get(4); xe = V.get(4); c0 = V.get(); c1 = V.get(); t0 = V.get(); t1 = V.get(); so = V.get()
    a.e(f"s_lshl_b32 s26, s{sw}, 7")
    a.e(f"v_lshl_add_u32 v{c0}, v1, 1, s26")
    a.e(f"v_sub_u32 v{c1}, 1024, v{c0}")
    a.e(f"s_mul_i32 s26, s{u}, {8*1026}")
    for r in range(8):
        a.e(f"s_lshl_b32 s27, s{u}, 3")
        a.e(f"s_sub_u32 s27, {2048 - r}, s27")
        a.e(f"s_and_b32 s27, s27, 2047")
        a.e(f"s_mul_i32 s27, s27, 1026")
        a.e(f"buffer_load_ushort v{wd+2*r}, v{c0}, s[{S_R1}:{S_R1+3}], s26 offen{NT}")
        a.e(f"buffer_load_ushort v{we+2*r}, v{c0}, s[{S_R2}:{S_R2+3}], s26 offen{NT}")
        a.e(f"buffer_load_ushort v{wd+2*r+1}, v{c1}, s[{S_R1}:{S_R1+3}], s27 offen{NT}")
        a.e(f"buffer_load_ushort v{we+2*r+1}, v{c1}, s[{S_R2}:{S_R2+3}], s27 offen{NT}")
        a.e(f"s_add_u32 s26, s26, 1026")
    a.e(f"v_and_b32 v{t0}, 3, v1")
    a.e(f"v_lshlrev_b32 v{t0}, 1, v{t0}")
    a.e(f"s_lshl_b32 s27, s{u}, 3")
    a.e(f"v_add_u32 v{t0}, s27, v{t0}")
    a.e(f"v_bfe_u32 v{t1}, v1, 2, 1")
    a.e(f"v_lshlrev_b32 v{t1}, 9, v{t1}")
    for k in range(2):
        a.e(f"v_add_u32 v{c0}, {k}, v{t0}")
        a.e(f"v_sub_u32 v{c1}, 2048, v{c0}")
        a.e(f"v_and_b32 v{c1}, 2047, v{c1}")
        a.e(f"v_mul_u32_u24 v{c0}, 1026, v{c0}")
        a.e(f"v_mul_u32_u24 v{c1}, 1026, v{c1}")
        a.e(f"v_add_u32 v{c0}, v{c0}, v{t1}")
        a.e(f"v_sub_u32 v{c1}, v{c1}, v{t1}")
        a.e(f"v_add_u32 v{c1}, 512, v{c1}")
        a.e(f"buffer_load_ushort v{xd+2*k}, v{c0}, s[{S_R1}:{S_R1+3}], 0 offen offset:512")
        a.e(f"buffer_load_ushort v{xe+2*k}, v{c0}, s[{S_R2}:{S_R2+3}], 0 offen offset:512")
        a.e(f"buffer_load_ushort v{xd+2*k+1}, v{c1}, s[{S_R1}:{S_R1+3}], 0 offen")
        a.e(f"buffer_load_ushort v{xe+2*k+1}, v{c1}, s[{S_R2}:{S_R2+3}], 0 offen")
    mid()
    a.e(f"s_lshl_b32 s26, s{sw if ldsw is None else ldsw}, 12")
    a.e(f"s_add_u32 s26, s26, {lds}")
    a.e(f"v_lshl_add_u32 v{t0}, v1, 6, s26")
    a.e(f"v_lshl_add_u32 v{t1}, v1, 4, s26")
    a.e(f"v_lshrrev_b32 v{so}, 3, v1")
    a.e(f"v_lshlrev_b32 v{so}, 15, v{so}")
    a.e(f"v_and_b32 v{c0}, 7, v1")
    a.e(f"v_lshl_add_u32 v{so}, v{c0}, 4, v{so}")
    a.e(f"s_lshl_b32 s26, s{u}, 7")
    a.e(f"s_add_u32 s26, s26, {WT_OFF}")
    a.e(f"s_lshl_b32 s27, s{sw}, 20")
    a.e(f"s_add_u32 s27, s27, s26")
    a.e(f"s_waitcnt vmcnt(8)")
    for i in range(16):
        a.e(f"v_lshl_or_b32 v{wd+i}, v{we+i}, 16, v{wd+i}")
    for q in range(4):
        a.e(f"ds_write_b128 v{t0}, v[{wd+4*q}:{wd+4*q+3}] offset:{16*q}")
    a.e("s_waitcnt lgkmcnt(0)")
    for n in range(4):
        a.e(f"ds_read_b128 v[{we+4*n}:{we+4*n+3}], v{t1} offset:{1024*n}")
    a.e(f"s_waitcnt vmcnt(0)")
    for i in range(4):
        a.e(f"v_lshl_or_b32 v{xd+i}, v{xe+i}, 16, v{xd+i}")
    for n in range(4):
        a.e(f"s_waitcnt lgkmcnt({3-n})")
        a.e(f"buffer_store_dwordx4 v[{we+4*n}:{we+4*n+3}], v{so}, s[{S_WS}:{S_WS+3}], s27 offen{SC}")
        a.e(f"s_add_u32 s27, s27, {16*16384}")
    a.e(f"s_add_u32 s26, s26, {256*16384}")
    a.mark("cond_begin")
    a.e(f"s_cmp_eq_u32 s{sw}, 0")
    a.e(f"s_cselect_b64 exec, 0xff, 0")
    Ls = a.newlabel("Lskip")
    a.e(f"s_cbranch_execz {Ls}")
    a.e(f"buffer_store_dwordx4 v[{xd}:{xd+3}], v{so}, s[{S_WS}:{S_WS+3}], s26 offen{SC}")
    a.label(Ls)
    a.e(f"s_mov_b64 exec, -1")
    a.mark("cond_end")

def cp_body2(a, V, sw, lds_base, SCL="", SC="", p_s=2, z2_off=Z2_OFF, dump=False, pre_loads=None):
    L = lane_consts(a, V)
    l15, g, l15f, g4f = L
    X = V.get(64)
    Wd = V.get(16)
    vo = V.get(); vw = V.get()
    a.e(f"v_lshrrev_b32 v{vo}, 2, v1")
    a.e(f"v_lshlrev_b32 v{vo}, 7, v{vo}")
    a.e(f"v_and_b32 v{vw}, 3, v1")
    a.e(f"v_lshl_add_u32 v{vo}, v{vw}, 4, v{vo}")
    a.e(f"s_lshr_b32 s3, s{p_s}, 1")
    a.e(f"s_lshl_b32 s3, s3, 15")
    a.e(f"s_and_b32 s4, s{p_s}, 1")
    a.e(f"s_lshl_b32 s4, s4, 6")
    a.e(f"s_add_u32 s3, s3, s4")
    a.e(f"s_lshl_b32 s4, s{sw}, 13")
    a.e(f"s_add_u32 s20, s3, s4")
    a.e(f"s_add_u32 s20, s20, {Z1_OFF}")
    a.e(f"s_add_u32 s21, s20, 4096")
    xa = V.get()
    a.e(f"v_and_b32 v{xa}, 1, v1")
    a.e(f"v_lshlrev_b32 v{xa}, 13, v{xa}")
    a.e(f"v_lshrrev_b32 v{vw}, 5, v1")
    a.e(f"v_lshl_add_u32 v{xa}, v{vw}, 12, v{xa}")
    a.e(f"v_bfe_u32 v{vw}, v1, 1, 4")
    a.e(f"v_lshl_add_u32 v{xa}, v{vw}, 4, v{xa}")
    a.e(f"s_lshl_b32 s4, s{sw}, 10")
    a.e(f"s_add_u32 s4, s4, {lds_base}")
    a.e(f"v_add_u32 v{xa}, s4, v{xa}")
    a.e(f"v_lshlrev_b32 v{vw}, 11, v{g}")
    a.e(f"v_bfe_u32 v{Wd}, v1, 3, 1")
    a.e(f"v_lshl_add_u32 v{vw}, v{Wd}, 7, v{vw}")
    a.e(f"v_and_b32 v{Wd}, 7, v1")
    a.e(f"v_lshl_add_u32 v{vw}, v{Wd}, 3, v{vw}")
    a.e(f"s_lshl_b32 s4, s{sw}, 8")
    a.e(f"s_add_u32 s4, s4, s3")
    a.e(f"s_add_u32 s4, s4, {WT_OFF}")
    def xr(sig, bb, t): return X + ((sig*2 + bb)*4 + t)*4
    def wload(dst, soff):
        for blk in range(4):
            if blk: a.e(f"s_add_u32 s22, s{soff}, {8192*blk}")
            for e in range(2):
                r = dst + 2*(2*blk + e)
                a.e(f"buffer_load_dwordx2 v[{r}:{r+1}], v{vw}, s[{S_WS}:{S_WS+3}], s{22 if blk else soff} offen offset:{1024*e}{SCL}")
    def loads():
        for n in range(4):
            a.e(f"buffer_load_dwordx4 v[{X+4*n}:{X+4*n+3}], v{vo}, s[{S_WS}:{S_WS+3}], s{20 + (n>>1)} offen offset:{2048*(n&1)}{SCL}")
        wload(Wd, 4)
    if not pre_loads: loads()
    K1 = [[V.get(4) for ro in range(2)] for t in range(4)]
    TW = V.get(16)
    K2 = [[V.get(4) for bb in range(2)] for blk in range(4)]
    D = V.get(32); P = V.get(16); tmp = V.get(16)
    st = V.get(); ba = V.get(); cf = V.get(); msk = V.get()
    cs = [(tmp + 2*i, tmp + 2*i + 1) for i in range(8)]
    a.e(f"s_lshl_b32 s5, s{sw}, 4")
    a.e(f"v_add_u32 v{cf}, s5, v{l15}")
    a.e(f"v_cvt_f32_u32 v{cf}, v{cf}")
    a.e(f"v_and_b32 v{msk}, 1, v1")
    a.e(f"v_mul_u32_u24 v{msk}, 0x8000, v{msk}")
    a.e(f"v_lshl_or_b32 v{msk}, v{msk}, 16, v{msk}")
    a.e(f"v_mul_f32 v{st}, {f32(1/64)}, v{cf}")
    a.e(f"v_mul_f32 v{ba}, v{g4f}, v{st}")
    angles(a, st, ba, [16*t + i for t in range(2) for i in range(4)], cs)
    for t in range(2):
        for i in range(4):
            c, s = cs[4*t + i]
            pk(a, K1[t][0] + i, rot(c, s, 0)); pk(a, K1[t][1] + i, rot(c, s, 1))
        for ro in range(2):
            for i in range(4):
                a.e(f"v_xor_b32 v{K1[t+2][ro]+i}, v{msk}, v{K1[t][ro]+i}")
    a.e(f"v_mul_f32 v{st}, {f32(1/2048)}, v{cf}")
    a.e(f"v_mul_f32 v{ba}, v{g4f}, v{st}")
    angles(a, st, ba, [16*bb + j for bb in range(2) for j in range(4)], [(TW + 2*i, TW + 2*i + 1) for i in range(8)])
    m2 = V.get()
    a.e(f"v_lshrrev_b32 v{st}, 1, v{l15}")
    a.e(f"v_cvt_f32_u32 v{st}, v{st}")
    a.e(f"v_mul_f32 v{st}, {f32(1/32)}, v{st}")
    a.e(f"v_and_b32 v{ba}, 1, v1")
    a.e(f"v_cvt_f32_u32 v{ba}, v{ba}")
    a.e(f"v_mul_f32 v{ba}, {f32(0.25)}, v{ba}")
    a.e(f"v_fmac_f32 v{ba}, v{g4f}, v{st}")
    angles(a, st, ba, [0, 1, 2, 3], cs[:4])
    a.e(f"v_bfe_u32 v{m2}, v1, 1, 1")
    a.e(f"v_mul_u32_u24 v{m2}, 0x8000, v{m2}")
    a.e(f"v_lshl_or_b32 v{m2}, v{m2}, 16, v{m2}")
    for blk in range(4):
        for j in range(4):
            c, s = cs[j]
            pk(a, K2[blk][0] + j, rot(c, s, j * blk))
        for j in range(4):
            a.e(f"v_xor_b32 v{K2[blk][1]+j}, v{m2}, v{K2[blk][0]+j}")
    if pre_loads:
        pre_loads(); loads()
    a.mark("delay 1")
    def dr(sig, bb, ro): return D + ((sig*2 + bb)*2 + ro)*4
    for n in range(4):
        a.e(f"s_waitcnt vmcnt({11 - n})")
        a.e(f"ds_write_b128 v{xa}, v[{X+4*n}:{X+4*n+3}] offset:{256*n}")
    a.e(f"v_lshlrev_b32 v{xa}, 4, v1")
    a.e(f"v_add_u32 v{xa}, {lds_base}, v{xa}")
    a.mark("sync")
    for f in range(16):
        a.e(f"ds_read_b128 v[{X+4*f}:{X+4*f+3}], v{xa} offset:{1024*f}")
    for sig in range(2):
        for bb in range(2):
            a.e(f"s_waitcnt lgkmcnt({12 - 4*(sig*2+bb)})")
            for t in range(4):
                for ro in range(2):
                    mfma(a, dr(sig, bb, ro), xr(sig, bb, t), K1[t][ro], t == 0)
    for sig in range(2):
        for bb in range(2):
            twiddle_pack(a, dr(sig, bb, 0), dr(sig, bb, 1), TW + 8*bb, P + (sig*2 + bb)*4, tmp)
    def fr(sig, blk): return D + (sig*4 + blk)*4
    for sig in range(2):
        for bb in range(2):
            for blk in range(4):
                mfma(a, fr(sig, blk), K2[blk][bb], P + (sig*2 + bb)*4, bb == 0)
    def pr(x): return f"v[{x}:{x+1}]"
    def unp(d, s_):
        a.e(f"v_lshlrev_b32 v{d}, 16, v{s_}")
        a.e(f"v_and_b32 v{d+1}, 0xffff0000, v{s_}")
    class special:
        def __enter__(self_):
            self_.L = a.newlabel("Lns")
            a.mark("cond_begin")
            a.e(f"s_cmp_lg_u32 s{p_s}, 0")
            a.e(f"s_cbranch_scc1 {self_.L}")
        def __exit__(self_, *e):
            a.label(self_.L)
            a.mark("cond_end")
    E1 = X + 32; E2 = X + 48; RS = X + 32
    with special():
        a.e(f"s_add_u32 s6, s4, {256*16384}")
        wload(E1, 6)
        a.e(f"s_add_u32 s6, s6, 64")
        wload(E2, 6)
        a.mark("condmark")
        for i in range(32):
            a.e(f"v_xor_b32 v{X+i}, 0x80000000, v{X+i}")
    a.mark("delay 1")
    with special():
        a.mark("condwait")
        for i8 in range(8):
            G = fr(1, i8 >> 1) + 2*(i8 & 1); u0 = tmp + 4*(i8 & 1); rr = u0 + 2
            unp(u0, E1 + 2*i8)
            a.e(f"v_mul_f32 v{rr}, v{u0}, v{G}")
            a.e(f"v_mul_f32 v{rr+1}, v{u0}, v{G+1}")
            a.e(f"v_fma_f32 v{rr}, -v{u0+1}, v{G+1}, v{rr}")
            a.e(f"v_fmac_f32 v{rr+1}, v{u0+1}, v{G}")
            a.e(f"v_pk_add_f32 {pr(rr)}, {pr(rr)}, {pr(rr)}")
            a.e(f"v_cvt_pk_bf16_f32 v{RS+i8}, v{rr}, -v{rr+1}")
    with special():
        for bb in range(2):
            for t in range(4):
                for ro in range(2):
                    mfma(a, dr(1, bb, ro), xr(0, bb, t), K1[t][ro], t == 0)
        for bb in range(2):
            twiddle_pack(a, dr(1, bb, 0), dr(1, bb, 1), TW + 8*bb, P + bb*4, tmp)
        a.e("s_nop 1")
        for bb in range(2):
            for blk in range(4):
                mfma(a, fr(1, blk), K2[blk][bb], P + bb*4, bb == 0)
        a.e("s_nop 7")
    a.e(f"s_waitcnt vmcnt(0)")
    for half in range(2):
        with special():
            for i8 in range(4*half, 4*half + 4):
                u0, u1, S = tmp, tmp + 2, tmp + 4
                unp(u0, Wd + 2*i8); unp(u1, E2 + 2*i8 + 1)
                a.e(f"v_pk_add_f32 {pr(S)}, {pr(u0)}, {pr(u1)} neg_hi:[0,1]")
                a.e(f"v_mul_f32 v{S}, 0.5, v{S}"); a.e(f"v_mul_f32 v{S+1}, 0.5, v{S+1}")
                a.e(f"v_cvt_pk_bf16_f32 v{Wd+2*i8}, v{S}, v{S+1}")
                unp(u0, Wd + 2*i8 + 1); unp(u1, E2 + 2*i8)
                a.e(f"v_pk_add_f32 {pr(S)}, {pr(u0)}, {pr(u1)} neg_hi:[0,1]")
                a.e(f"v_mul_f32 v{S}, 0.5, v{S}"); a.e(f"v_mul_f32 v{S+1}, 0.5, v{S+1}")
                a.e(f"v_cvt_pk_bf16_f32 v{Wd+2*i8+1}, v{S}, v{S+1}")
            a.e("s_nop 1")
    K3 = [[[X + ((bb*2 + u)*2 + ro)*4 for ro in range(2)] for u in range(2)] for bb in range(2)]
    a.e(f"v_mul_f32 v{st}, {f32(1/32)}, v{l15f}")
    a.e(f"v_mul_f32 v{ba}, 0.5, v{g4f}")
    a.e(f"v_mul_f32 v{ba}, v{ba}, v{st}")
    angles(a, st, ba, [0, 1, 8, 9], cs[:4])
    for bb in range(2):
        for sl in range(4):
            c, s = cs[sl]
            q = 2 * bb * (sl & 1)
            pk(a, K3[bb][0][0] + sl, rot(c, s, q)); pk(a, K3[bb][0][1] + sl, rot(c, s, q + 1))
        for ro in range(2):
            for sl in range(4):
                a.e(f"v_xor_b32 v{K3[bb][1][ro]+sl}, v{msk}, v{K3[bb][0][ro]+sl}")
    h = 0.5 / (2048 * 512)
    a.e(f"v_cvt_f32_u32 v{cf}, s5")
    a.e(f"v_add_f32 v{cf}, v{cf}, v{g4f}")
    for bb in range(2):
        a.e(f"v_add_f32 v{st}, {f32(16.0*bb)}, v{l15f}")
        a.e(f"v_mul_f32 v{st}, {f32(1/2048)}, v{st}")
        a.e(f"v_mul_f32 v{ba}, v{cf}, v{st}")
        angles(a, st, ba, [0, 1, 2, 3], [(TW + 8*bb + 2*i, TW + 8*bb + 2*i + 1) for i in range(4)])
    for i in range(16):
        a.e(f"v_mul_f32 v{TW+i}, {f32(h)}, v{TW+i}")
    sc = X + 40
    w = X + 44
    a.e(f"v_cvt_f32_u32 v{st}, s{p_s}")
    a.e(f"v_mul_f32 v{st}, {f32(1/1024)}, v{st}")
    a.e(f"v_sin_f32 v{sc}, v{st}")
    a.e(f"v_cos_f32 v{sc+2}, v{st}")
    a.e(f"v_sin_f32 v{sc+1}, v{st}")
    a.e(f"v_cos_f32 v{sc+3}, v{st}")
    for i8 in range(8):
        F = fr(0, i8 >> 1) + 2*(i8 & 1); G = fr(1, i8 >> 1) + 2*(i8 & 1)
        o = w + 14*(i8 & 1) if False else w
        wp, wq, S, Df, a1, a2, be, zp, rr = [w + 2*k for k in range(9)]
        a.e(f"v_lshlrev_b32 v{wp}, 16, v{Wd+2*i8}")
        a.e(f"v_and_b32 v{wp+1}, 0xffff0000, v{Wd+2*i8}")
        a.e(f"v_lshlrev_b32 v{wq}, 16, v{Wd+2*i8+1}")
        a.e(f"v_and_b32 v{wq+1}, 0xffff0000, v{Wd+2*i8+1}")
        a.e(f"v_pk_add_f32 {pr(S)}, {pr(wp)}, {pr(wq)} neg_hi:[0,1]")
        a.e(f"v_pk_add_f32 {pr(Df)}, {pr(wp)}, {pr(wq)} neg_lo:[0,1]")
        a.e(f"v_pk_fma_f32 {pr(a1)}, {pr(Df)}, {pr(sc)}, {pr(S)} neg_lo:[1,0,0] neg_hi:[1,0,0]")
        a.e(f"v_pk_fma_f32 {pr(a2)}, {pr(Df)}, {pr(sc)}, {pr(S)}")
        a.e(f"v_pk_mul_f32 {pr(be)}, {pr(Df)}, {pr(sc+2)}")
        a.e(f"v_mul_f32 v{zp}, v{a1}, v{F}")
        a.e(f"v_mul_f32 v{zp+1}, v{a1}, v{F+1}")
        a.e(f"v_mul_f32 v{rr}, v{a2}, v{G}")
        a.e(f"v_mul_f32 v{rr+1}, v{a2}, v{G+1}")
        a.e(f"v_fma_f32 v{zp}, -v{a1+1}, v{F+1}, v{zp}")
        a.e(f"v_fmac_f32 v{zp+1}, v{a1+1}, v{F}")
        a.e(f"v_fma_f32 v{rr}, -v{a2+1}, v{G+1}, v{rr}")
        a.e(f"v_fmac_f32 v{rr+1}, v{a2+1}, v{G}")
        a.e(f"v_fma_f32 v{zp}, -v{be}, v{G+1}, v{zp}")
        a.e(f"v_fmac_f32 v{zp+1}, v{be}, v{G}")
        a.e(f"v_fmac_f32 v{rr}, v{be}, v{F+1}")
        a.e(f"v_fma_f32 v{rr+1}, -v{be}, v{F}, v{rr+1}")
        a.e(f"v_fma_f32 v{zp}, -v{be+1}, v{G}, v{zp}")
        a.e(f"v_fma_f32 v{zp+1}, -v{be+1}, v{G+1}, v{zp+1}")
        a.e(f"v_fmac_f32 v{rr}, v{be+1}, v{F}")
        a.e(f"v_fmac_f32 v{rr+1}, v{be+1}, v{F+1}")
        a.e(f"v_cvt_pk_bf16_f32 v{P+i8}, v{zp}, -v{zp+1}")
        a.e(f"v_cvt_pk_bf16_f32 v{P+8+i8}, v{rr}, -v{rr+1}")
    with special():
        for i8 in range(8):
            a.e(f"v_mov_b32 v{P+8+i8}, v{RS+i8}")
        a.e("s_nop 1")
    if dump:
        a.e(f"s_lshl_b32 s6, s2, 2"); a.e(f"s_add_u32 s6, s6, s{sw}"); a.e(f"s_lshl_b32 s6, s6, 14"); a.e(f"s_add_u32 s6, s6, {64 << 20}")
        a.e(f"v_lshlrev_b32 v{st}, 2, v1"); a.e(f"v_add_u32 v{st}, s6, v{st}")
        for i in range(16):
            a.e(f"global_store_dword v{st}, v{P+i}, s[{P_WS}:{P_WS+1}] offset:{i*256}")
        a.e(f"v_add_u32 v{st}, 4096, v{st}")
        for i in range(16):
            a.e(f"global_store_dword v{st}, v{D+i}, s[{P_WS}:{P_WS+1}] offset:{i*256}")
        a.e(f"v_add_u32 v{st}, 4096, v{st}")
        for i in range(16):
            a.e(f"global_store_dword v{st}, v{D+16+i}, s[{P_WS}:{P_WS+1}] offset:{i*256}")
        a.e(f"v_add_u32 v{st}, 4096, v{st}")
        for i in range(16):
            a.e(f"global_store_dword v{st}, v{Wd+i}, s[{P_WS}:{P_WS+1}] offset:{i*256}")
        a.e("s_waitcnt vmcnt(0)")
    for sig in range(2):
        for bb in range(2):
            for u in range(2):
                for ro in range(2):
                    mfma(a, dr(sig, bb, ro), P + sig*8 + 4*u, K3[bb][u][ro], u == 0)
    la = st
    a.e(f"s_lshl_b32 s6, s{sw}, 2")
    a.e(f"v_add_u32 v{la}, s6, v{g}")
    a.e(f"v_xor_b32 v{la}, v{la}, v{l15}")
    a.e(f"v_lshlrev_b32 v{la}, 4, v{la}")
    a.e(f"v_lshl_add_u32 v{la}, v{l15}, 8, v{la}")
    a.e(f"v_add_u32 v{la}, {lds_base}, v{la}")
    O = K2[0][0]
    a.mark("sync")
    for sig in range(2):
        for bb in range(2):
            o = O + (sig*2 + bb)*4
            twiddle_pack(a, dr(sig, bb, 0), dr(sig, bb, 1), TW + 8*bb, o, tmp)
            a.e(f"ds_write_b128 v{la}, v[{o}:{o+3}] offset:{sig*8192 + bb*4096}")
    ra = [tmp + i for i in range(4)]
    a.e(f"v_xor_b32 v{ra[0]}, v{g}, v{l15}")
    a.e(f"v_lshlrev_b32 v{ra[0]}, 4, v{ra[0]}")
    a.e(f"v_lshl_add_u32 v{ra[0]}, v{l15}, 8, v{ra[0]}")
    a.e(f"v_add_u32 v{ra[0]}, {lds_base}, v{ra[0]}")
    for t in range(1, 4): a.e(f"v_xor_b32 v{ra[t]}, {64*t}, v{ra[0]}")
    a.mark("sync")
    for sig in range(2):
        for bb in range(2):
            for t in range(4):
                r = xr(sig, bb, t)
                a.e(f"ds_read_b128 v[{r}:{r+3}], v{ra[t]} offset:{sig*8192 + bb*4096}")
    a.e(f"v_lshlrev_b32 v{vo}, 4, v1")
    a.e(f"s_lshl_b32 s4, s{sw}, 12")
    a.e(f"s_lshl_b32 s3, s{p_s}, 14")
    a.e(f"s_add_u32 s4, s4, s3")
    a.e(f"s_add_u32 s4, s4, {z2_off}")
    for sig in range(2):
        for bb in range(2):
            a.e(f"s_waitcnt lgkmcnt({12 - 4*(sig*2+bb)})")
            for t in range(4):
                for ro in range(2):
                    mfma(a, dr(sig, bb, ro), xr(sig, bb, t), K1[t][ro], t == 0)
    for sig in range(2):
        for bb in range(2):
            o = O + (sig*2 + bb)*4
            for j in range(4):
                a.e(f"v_cvt_pk_bf16_f32 v{o+j}, v{dr(sig,bb,0)+j}, v{dr(sig,bb,1)+j}")
            a.e(f"buffer_store_dwordx4 v[{o}:{o+3}], v{vo}, s[{S_WS}:{S_WS+3}], s4 offen offset:{bb*2048+sig*1024}{SC}")

def fin_body3(a, V, sw, lds_base, NSPLIT, SCL, SC, poll, z2_off=Z2_OFF, p_off=P_OFF, pre_loads=None, sig=None):
    L = lane_consts(a, V)
    l15, g, l15f, g4f = L
    if pre_loads:
        K = row_consts(a, V, L, True)
        pre_loads()
    zd = V.get(16); vo = V.get(); t0 = V.get(); t1 = V.get(); t2 = V.get(); wa = V.get(4); dl = V.get()
    a.e(f"v_lshrrev_b32 v{vo}, 2, v1")
    a.e(f"v_lshlrev_b32 v{vo}, 14, v{vo}")
    a.e(f"v_and_b32 v{t0}, 2, v1")
    a.e(f"v_lshl_add_u32 v{vo}, v{t0}, 9, v{vo}")
    a.e(f"v_and_b32 v{t0}, 1, v1")
    a.e(f"v_lshl_add_u32 v{vo}, v{t0}, 4, v{vo}")
    a.e(f"s_lshr_b32 s3, s2, 6")
    a.e(f"s_lshl_b32 s3, s3, 12")
    a.e(f"s_bfe_u32 s4, s2, 0x10002")
    a.e(f"s_lshl_b32 s4, s4, 11")
    a.e(f"s_add_u32 s3, s3, s4")
    a.e(f"s_and_b32 s4, s2, 3")
    a.e(f"s_lshl_b32 s4, s4, 8")
    a.e(f"s_add_u32 s3, s3, s4")
    a.e(f"s_bfe_u32 s4, s2, 0x30003")
    a.e(f"s_lshl_b32 s4, s4, 5")
    a.e(f"s_add_u32 s3, s3, s4")
    a.e(f"s_add_u32 s3, s3, {z2_off}")
    a.e(f"s_lshl_b32 s4, s{sw}, 20")
    a.e(f"s_add_u32 s3, s3, s4")
    for n in range(4):
        a.e(f"buffer_load_dwordx4 v[{zd+4*n}:{zd+4*n+3}], v{vo}, s[{S_WS}:{S_WS+3}], s3 offen{SCL}")
        a.e(f"s_add_u32 s3, s3, {16*16384}")
    pd = V.get(16*NSPLIT); b2 = V.get(8); gv = V.get(2); po = V.get(); oo = V.get()
    a.e(f"v_lshlrev_b32 v{po}, 10, v{l15}")
    a.e(f"v_lshl_add_u32 v{po}, v{g}, 4, v{po}")
    a.e(f"s_lshr_b32 s20, s2, 3")
    a.e(f"s_lshl_b32 s20, s20, 6")
    a.e(f"s_and_b32 s4, s2, 7")
    a.e(f"s_lshl_b32 s4, s4, 2")
    a.e(f"s_add_u32 s20, s20, s4")
    a.e(f"s_lshr_b32 s4, s{sw}, 1")
    a.e(f"s_lshl_b32 s4, s4, 5")
    a.e(f"s_add_u32 s20, s20, s4")
    a.e(f"s_and_b32 s4, s{sw}, 1")
    a.e(f"s_lshl_b32 s4, s4, 1")
    a.e(f"s_add_u32 s20, s20, s4")
    a.e(f"s_lshr_b32 s4, s20, 4")
    a.e(f"s_lshl_b32 s4, s4, 15")
    a.e(f"s_and_b32 s5, s20, 15")
    a.e(f"s_lshl_b32 s5, s5, 6")
    a.e(f"s_add_u32 s4, s4, s5")
    a.e(f"s_add_u32 s4, s4, {p_off}")
    def pdr(j, db, ks): return pd + ((j*2 + db)*NSPLIT + ks)*4
    a.e(f"s_mov_b32 s21, s4")
    srd(a, S_R1, P_B2, 2048)
    srd(a, S_R2, P_OUT, 2048*1024*2)
    a.e(f"v_lshlrev_b32 v{oo}, 6, v{l15}")
    a.e(f"v_lshl_add_u32 v{oo}, v{g}, 4, v{oo}")
    for db in range(2):
        a.e(f"buffer_load_dwordx4 v[{b2+4*db}:{b2+4*db+3}], v{oo}, s[{S_R1}:{S_R1+3}], 0 offen offset:{1024*db}")
    a.e(f"s_lshr_b32 s5, s20, 7")
    a.e(f"s_lshl_b32 s5, s5, 4")
    a.e(f"s_bfe_u32 s6, s20, 0x40001")
    a.e(f"s_add_u32 s5, s5, s6")
    a.e(f"s_lshl_b32 s5, s5, 2")
    a.e(f"s_bfe_u32 s6, s20, 0x20005")
    a.e(f"s_add_u32 s5, s5, s6")
    a.e(f"s_lshl_b32 s5, s5, 7")
    a.e(f"s_add_u32 s5, s5, {G_OFF}")
    a.e(f"v_mov_b32 v{t0}, 0")
    a.e(f"buffer_load_dwordx2 v[{gv}:{gv+1}], v{t0}, s[{S_WS}:{S_WS+3}], s5 offen{SCL}")
    NL = 3
    a.e(f"v_lshrrev_b32 v{t0}, 2, v1")
    a.e(f"s_lshl_b32 s6, s{sw}, 6")
    a.e(f"v_add_u32 v{t0}, s6, v{t0}")
    a.e(f"v_sub_u32 v{t1}, 512, v{t0}")
    a.e(f"v_and_b32 v{t2}, 2, v1")
    a.e(f"v_cmp_ne_u32 vcc, 0, v{t2}")
    a.e(f"v_cndmask_b32 v{t0}, v{t0}, v{t1}, vcc")
    a.e(f"v_mov_b32 v{dl}, 64")
    a.e(f"v_mov_b32 v{t1}, -64")
    a.e(f"v_cndmask_b32 v{dl}, v{dl}, v{t1}, vcc")
    a.e(f"v_lshlrev_b32 v{t0}, 2, v{t0}")
    a.e(f"v_and_b32 v{t2}, 1, v1")
    a.e(f"v_lshlrev_b32 v{t2}, 13, v{t2}")
    a.e(f"v_add_u32 v{t2}, {lds_base}, v{t2}")
    a.e(f"v_add_u32 v{wa+1}, v{t0}, v{t2}")
    a.e(f"v_mov_b32 v{t1}, 1024")
    a.e(f"v_cmp_eq_u32 vcc, 2048, v{t0}")
    a.e(f"v_cndmask_b32 v{t1}, v{t0}, v{t1}, vcc")
    a.e(f"v_add_u32 v{wa}, v{t1}, v{t2}")
    a.e(f"v_add_u32 v{wa+1}, v{dl}, v{wa+1}")
    a.e(f"v_add_u32 v{wa+2}, v{dl}, v{wa+1}")
    a.e(f"v_add_u32 v{wa+3}, v{dl}, v{wa+2}")
    if not pre_loads: K = row_consts(a, V, L, True)
    xd = zd; D1 = V.get(16); P = V.get(8); D2 = V.get(32); tmp = V.get(16); b2f = V.get(16); ra = V.get()
    a.mark('delay 1')
    if sig:
        a.e('s_waitcnt vmcnt(0)'); sig(tmp)
    for n in range(4):
        a.e(f"s_waitcnt vmcnt({NL + 3 - n})")
        a.e(f"ds_write2st64_b32 v{wa+n}, v{zd+4*n}, v{zd+4*n+1} offset0:0 offset1:8")
        a.e(f"ds_write2st64_b32 v{wa+n}, v{zd+4*n+2}, v{zd+4*n+3} offset0:16 offset1:24")
    a.e(f"v_lshlrev_b32 v{ra}, 9, v{g}")
    a.e(f"v_lshl_add_u32 v{ra}, v{l15}, 2, v{ra}")
    a.e(f"s_lshl_b32 s6, s{sw}, 12")
    a.e(f"s_add_u32 s6, s6, {lds_base}")
    a.e(f"v_add_u32 v{ra}, s6, v{ra}")
    a.e(f"v_add_u32 v{t0}, 2048, v{ra}")
    a.mark('sync')
    for j in range(2):
        ad = ra if j == 0 else t0
        for bb in range(2):
            r = xd + 8*j + 4*bb
            a.e(f"ds_read2_b32 v[{r}:{r+1}], v{ad} offset0:{16*bb} offset1:{16*bb+32}")
            a.e(f"ds_read2_b32 v[{r+2}:{r+3}], v{ad} offset0:{16*bb+64} offset1:{16*bb+96}")
    a.e(f"s_waitcnt vmcnt(0)")
    for i in range(8):
        a.e(f"v_lshlrev_b32 v{b2f+2*i}, 16, v{b2+i}")
        a.e(f"v_and_b32 v{b2f+2*i+1}, 0xffff0000, v{b2+i}")
    og = V.get(2)
    a.e(f"v_sub_f32 v{og}, 1.0, v{gv}")
    a.e(f"v_sub_f32 v{og+1}, 1.0, v{gv+1}")
    a.e(f"v_cvt_pk_bf16_f32 v{t1}, v{og}, v{og+1}")
    a.e(f"v_lshlrev_b32 v{og}, 16, v{t1}")
    a.e(f"v_and_b32 v{og+1}, 0xffff0000, v{t1}")
    a.e(f"s_lshl_b32 s4, s20, 11")
    def pr(x): return f"v[{x}:{x+1}]"
    for j in range(2):
        a.e(f"s_waitcnt lgkmcnt({4 - 4*j})")
        row_fft(a, K, xd + 8*j, D1, P, D2 + 16*j, tmp)
    a.mark('stop')
    poll(tmp)
    for j in range(2):
        for db in range(2):
            for ks in range(NSPLIT):
                a.e(f"s_add_u32 s5, s21, {db*16384 + ks*(4<<20)}")
                r = pdr(j, db, ks)
                a.e(f"buffer_load_dwordx4 v[{r}:{r+3}], v{po}, s[{S_WS}:{S_WS+3}], s5 offen offset:{64*j}{SCL}")
    for j in range(2):
        for db in range(2):
            idx = j*2 + db
            a.e(f"s_waitcnt vmcnt({(3 - idx)*NSPLIT + idx})")
            for i in range(4):
                for ks in range(NSPLIT):
                    src = pdr(j, db, ks) + i
                    u = tmp + 8 + 2*(ks & 1)
                    a.e(f"v_lshlrev_b32 v{u}, 16, v{src}")
                    a.e(f"v_and_b32 v{u+1}, 0xffff0000, v{src}")
                    prev = b2f + 8*db + 2*i if ks == 0 else tmp + 2*i
                    a.e(f"v_pk_add_f32 {pr(tmp+2*i)}, {pr(u)}, {pr(prev)}")
            o = pdr(j, db, 0)
            for i in range(4):
                a.e(f"v_mul_f32 v{tmp+2*i}, v{og+j}, v{tmp+2*i}")
                a.e(f"v_mul_f32 v{tmp+2*i+1}, v{og+j}, v{tmp+2*i+1}")
                a.e(f"v_fmac_f32 v{tmp+2*i}, v{gv+j}, v{D2+16*j+8*db+i}")
                a.e(f"v_fmac_f32 v{tmp+2*i+1}, v{gv+j}, v{D2+16*j+8*db+4+i}")
                a.e(f"v_cvt_pk_bf16_f32 v{o+i}, v{tmp+2*i}, v{tmp+2*i+1}")
            a.e(f"buffer_store_dwordx4 v[{o}:{o+3}], v{oo}, s[{S_R2}:{S_R2+3}], s4 offen offset:{2048*j + 1024*db}{SC}")
```

```python
import sys, math
from asmlib import *
import gemmgen
gemmgen.S_TMP = 70
from gemmgen import *
from fft2 import *
from gen_g1 import gelu_pairs
from merge import Aux, Merger
S_TMP = 70
FLAG_OFF = 47 << 20
SCR = 135168
SYNC = SCR + 16384
LDS_TOTAL = SYNC + 64
SPIN_MAX = 1 << 18
T0, T1, T2, T3 = 78, 79, 80, 81
S_FH, S_FP, S_KI = 100, 101, 82

def lds_signal(a, vt, word, emit, st=7, base=None):
    L = a.newlabel("Lsg")
    a.mark("cond_begin")
    a.e(f"v_mov_b32 v{vt}, {(SYNC if base is None else base) + 4*word}")
    a.e(f"v_mov_b32 v{vt+1}, 1")
    a.e("s_mov_b64 exec, 1")
    a.e(f"ds_add_rtn_u32 v{vt+1}, v{vt}, v{vt+1}")
    a.e("s_waitcnt lgkmcnt(0)")
    a.e(f"v_readfirstlane_b32 s{st}, v{vt+1}")
    a.e(f"s_cmp_eq_u32 s{st}, 3")
    a.e(f"s_cbranch_scc0 {L}")
    emit()
    a.label(L)
    a.e("s_mov_b64 exec, -1")
    a.mark("cond_end")

def dbg_add(a, vt, off):
    a.e(f"v_mov_b32 v{vt}, {off}")
    a.e(f"v_mov_b32 v{vt+1}, 1")
    a.e(f"global_atomic_add v{vt}, v{vt+1}, s[{P_DBG}:{P_DBG+1}] sc1")

def flag_set(a, vt, sreg):
    a.e(f"v_mov_b32 v{vt}, 0"); a.e(f"v_mov_b32 v{vt+1}, 1")
    a.e(f"buffer_store_dword v{vt+1}, v{vt}, s[{S_WS}:{S_WS+3}], s{sreg} offen sc1")

def poll_dbg(a, vt, off, target, sa=6, sb=7):
    L = a.newlabel("Lpd"); Lo = a.newlabel("Lpo")
    a.mark("cond_begin")
    a.e(f"v_mov_b32 v{vt}, {off}")
    a.e(f"s_mov_b32 s{sa}, 0")
    a.label(L)
    a.e(f"global_load_dword v{vt+1}, v{vt}, s[{P_DBG}:{P_DBG+1}] sc1")
    a.e("s_waitcnt vmcnt(0)")
    a.e(f"v_readfirstlane_b32 s{sb}, v{vt+1}")
    a.e(f"s_cmp_ge_u32 s{sb}, {target}")
    a.e(f"s_cbranch_scc1 {Lo}")
    a.e("s_sleep 2")
    a.e(f"s_add_u32 s{sa}, s{sa}, 1")
    a.e(f"s_cmp_lt_u32 s{sa}, {SPIN_MAX}")
    a.e(f"s_cbranch_scc1 {L}")
    a.label(Lo)
    a.mark("cond_end")

def poll_dbg_async(a, vt, off, target, sa=6, sb=7):
    Lo = a.newlabel("Lpo")
    a.e(f"v_mov_b32 v{vt}, {off}")
    a.e(f"global_load_dword v{vt+1}, v{vt}, s[{P_DBG}:{P_DBG+1}] sc1")
    a.mark("delay 2")
    a.e("s_waitcnt vmcnt(0)")
    a.mark("cond_begin")
    a.e(f"v_readfirstlane_b32 s{sb}, v{vt+1}")
    a.e(f"s_cmp_ge_u32 s{sb}, {target}")
    a.e(f"s_cbranch_scc1 {Lo}")
    poll_dbg(a, vt, off, target, sa, sb)
    a.label(Lo)
    a.mark("cond_end")

def poll_flags(a, vt, s_off, n, sa=6):
    L = a.newlabel("Lpf"); Lo = a.newlabel("Lpo")
    a.mark("cond_begin")
    a.e(f"v_and_b32 v{vt}, {n-1}, v1")
    a.e(f"v_lshlrev_b32 v{vt}, 2, v{vt}")
    a.e(f"s_mov_b32 s{sa}, 0")
    a.label(L)
    a.e(f"buffer_load_dword v{vt+1}, v{vt}, s[{S_WS}:{S_WS+3}], s{s_off} offen sc1")
    a.e("s_waitcnt vmcnt(0)")
    a.e(f"v_cmp_ne_u32 vcc, 1, v{vt+1}")
    a.e(f"s_cbranch_vccz {Lo}")
    a.e("s_sleep 1")
    a.e(f"s_add_u32 s{sa}, s{sa}, 1")
    a.e(f"s_cmp_lt_u32 s{sa}, {SPIN_MAX}")
    a.e(f"s_cbranch_scc1 {L}")
    a.label(Lo)
    a.mark("cond_end")

def poll_lds(a, vt, word, target, sb):
    L = a.newlabel("Lpl")
    a.e(f"v_mov_b32 v{vt}, {SYNC + 4*word}")
    a.label(L)
    a.e(f"ds_read_b32 v{vt+1}, v{vt}")
    a.e("s_waitcnt lgkmcnt(0)")
    a.e(f"v_readfirstlane_b32 s{sb}, v{vt+1}")
    a.e(f"s_cmp_ge_u32 s{sb}, {target}")
    a.e(f"s_cbranch_scc0 {L}")

class CBar:
    def __init__(self, addr): self.n = 0; self.addr = addr
    def __call__(self, a, vt):
        self.n += 1
        L = a.newlabel("Lcb")
        a.e("s_waitcnt lgkmcnt(0)")
        a.e(f"v_mov_b32 v{vt}, {self.addr}")
        a.e(f"v_mov_b32 v{vt+1}, 1")
        a.e("s_mov_b64 exec, 1")
        a.e(f"ds_add_u32 v{vt}, v{vt+1}")
        a.label(L)
        a.e(f"ds_read_b32 v{vt+1}, v{vt}")
        a.e("s_waitcnt lgkmcnt(0)")
        a.e(f"v_readfirstlane_b32 s7, v{vt+1}")
        a.e(f"s_cmp_ge_u32 s7, {4*self.n}")
        a.e(f"s_cbranch_scc0 {L}")
        a.e("s_mov_b64 exec, -1")

def consumer_loop(a, c, R, split=0, npf=0, pfl=(), allpf=False, pfafter=None, defer=False):
    nm = c.MB * c.NB
    adv = [f"s_add_u32 s{S_SLOT}, s{S_SLOT}, {c.SLOT}",
           f"s_cmp_eq_u32 s{S_SLOT}, {c.SLOT * c.NSLOT}",
           f"s_cselect_b32 s{S_TMP}, s{S_TMP+6}, s{S_TMP+7}",
           f"s_cselect_b32 s{S_SLOT}, 0, s{S_SLOT}"]
    a.e(f"s_mov_b32 s{S_TMP+6}, {-c.SLOT * (c.NSLOT - 1) & 0xffffffff}")
    a.e(f"s_mov_b32 s{S_TMP+7}, {c.SLOT}")
    upd = [f"v_add_u32 v{r}, s{S_TMP}, v{r}" for r in R.aA + R.aB]
    a.e("s_barrier")
    c.stampf(0)
    for r in frag_reads(c, R, 0, 0): a.e(r)
    a.e("s_waitcnt lgkmcnt(0)")
    barpos = nm - 3
    parts = [(c.NK - 1, "s_waitcnt lgkmcnt(0)", pfl if allpf else [])]
    if pfafter is not None:
        parts = [(pfafter, "s_waitcnt lgkmcnt(0)", []), (c.NK - 1 - pfafter, "s_waitcnt lgkmcnt(0)", pfl)]
    if split:
        parts = [(split, "s_waitcnt lgkmcnt(0)", []), (1, "s_waitcnt vmcnt(0) lgkmcnt(0)", []), (npf, "s_waitcnt lgkmcnt(0)", pfl),
                 (c.NK - 2 - split - npf, "s_waitcnt lgkmcnt(0)", [])]
    for cnt, w, extra in parts:
        if cnt == 0: continue
        a.e(f"s_mov_b32 s{S_CNT}, {cnt}")
        L = a.newlabel("Lcons")
        a.lines.append(".p2align 6")
        a.label(L)
        interleave(a, c, mfmas(c, R, 0), frag_reads(c, R, 1, 1) + adv + upd,
                   tail=[(barpos, [w, "s_barrier"])])
        interleave(a, c, mfmas(c, R, 1), frag_reads(c, R, 0, 0) + list(extra) + [f"s_sub_u32 s{S_CNT}, s{S_CNT}, 1", f"s_cmp_lg_u32 s{S_CNT}, 0"],
                   tail=[(nm - 1, ["s_waitcnt lgkmcnt(0)"])])
        a.e(f"s_cbranch_scc1 {L}")
    interleave(a, c, mfmas(c, R, 0), frag_reads(c, R, 1, 1), tail=[(barpos, ["s_waitcnt lgkmcnt(0)", "s_barrier"])])
    if defer:
        c.stampf(1)
        return mfmas(c, R, 1, last=True)
    interleave(a, c, mfmas(c, R, 1), [])
    c.stampf(1)

def map_g1(a):
    a.e(f"""
    s_and_b32 s{T0}, s2, 1
    s_lshl_b32 s{T0}, s{T0}, 3
    s_bfe_u32 s{T1}, s2, 0x30003
    s_add_u32 s{T0}, s{T0}, s{T1}
    s_lshl_b32 s{S_M0}, s{T0}, 7
    s_bfe_u32 s{T0}, s2, 0x20001
    s_lshl_b32 s{T0}, s{T0}, 2
    s_lshr_b32 s{T1}, s2, 6
    s_add_u32 s83, s{T0}, s{T1}
    s_mul_i32 s{S_N0}, s83, 224
    s_mov_b32 s{S_K0}, 0
    """)
def map_g2(a):
    a.e(f"""
    s_and_b32 s{T0}, s83, 7
    s_lshl_b32 s{S_N0}, s{T0}, 7
    s_lshr_b32 s{T0}, s83, 3
    s_mul_i32 s{S_K0}, s{T0}, 1792
    """)

def dma_units(c, vs, srd_, soff, sreg, slot, tag, pre=()):
    out = []
    for j, v in enumerate(vs):
        u = []
        if j == 0: u += [(p, None) for p in pre]
        if j % 4 == 0:
            u.append((f"s_add_u32 m0, s{sreg}, {slot * c.SLOT + (j // 4) * 4096}", None))
        u.append((f"buffer_load_dwordx4 v{v}, s[{srd_}:{srd_+3}], s{soff} offen offset:{(j%4)*1024} lds", tag))
        out.append(u)
    return out

def build(name, ST=False, NS2=4, B1=110, B2=260, W2_N=8, WST_AT=4, ARR_AT=7, SPLIT=2, CPD=1, PRIO=0, DBG=0, PFAT=2, CPREL=9, FINREL=15, CPF=True, CODE_END=0x7f00):
    STL = ST and DBG not in (1, 2, 3)
    STF = ST
    a = Asm()
    SC = " sc1"
    c1 = GemmCfg(128, 224, 1024, 3, 2048, 7168)
    c2 = GemmCfg(128, 128, 1792, NS2, 112*1024, 2048)
    c2.a_blocked = True; c2.a_off = H_OFF
    assert c1.SLOT*c1.NSLOT <= SCR and c2.SLOT*c2.NSLOT <= SCR
    a.begin_kernel(name)
    Lend = a.newlabel("Lend"); Lload = a.newlabel("Lload")
    a.e(f"s_cmp_ge_u32 s2, 256")
    a.e(f"s_cbranch_scc1 {Lend}")
    load_ptrs(a)
    if CPF:
        a.e("s_getpc_b64 s[4:5]")
        a.e("v_lshlrev_b32 v3, 7, v0")
        a.e(f"v_min_u32 v3, {CODE_END}, v3")
        a.e("global_load_dword v255, v3, s[4:5]")
    a.e("v_lshrrev_b32 v2, 6, v0")
    a.e("v_and_b32 v1, 63, v0")
    a.e(f"v_readfirstlane_b32 s{S_WAVE}, v2")
    map_g1(a)
    a.e("s_waitcnt lgkmcnt(0)")
    stamp_init(a, ST); stamp(a, 0, ST)
    srd(a, S_WS, P_WS, WS_USED)
    a.e(f"s_cmp_ge_u32 s{S_WAVE}, 4")
    a.e(f"s_cbranch_scc1 {Lload}")
    if PRIO == 1: a.e("s_setprio 2")
    a.e(f"""
    v_and_b32 v2, 15, v1
    v_lshlrev_b32 v2, 2, v2
    v_add_u32 v2, {SYNC}, v2
    v_mov_b32 v3, 0
    ds_write_b32 v2, v3
    s_lshr_b32 s3, s{S_M0}, 6
    s_lshr_b32 s4, s83, 3
    s_add_u32 s3, s3, s4
    s_lshl_b32 s3, s3, 7
    s_and_b32 s5, s83, 7
    s_lshl_b32 s6, s5, 2
    s_add_u32 s3, s3, s6
    s_add_u32 s{S_FH}, s3, {FLAG_OFF}
    s_lshl_b32 s5, s5, 1
    s_add_u32 s5, s5, s4
    s_lshl_b32 s5, s5, 2
    s_add_u32 s5, s5, s{S_M0}
    s_add_u32 s{S_FP}, s5, {FLAG_OFF + 8192}
    v_mov_b32 v2, 0
    s_mov_b64 exec, 1
    buffer_store_dword v2, v2, s[{S_WS}:{S_WS+3}], s{S_FH} offen sc1
    buffer_store_dword v2, v2, s[{S_WS}:{S_WS+3}], s{S_FP} offen sc1
    s_mov_b64 exec, -1
    """)
    BT = 242
    srd(a, S_R1, P_B1, 3584*2)
    a.e(f"""
    s_lshr_b32 s3, s{S_WAVE}, 1
    s_lshl_b32 s4, s3, 7
    s_add_u32 s4, s4, s{S_N0}
    s_lshl_b32 s4, s4, 1
    s_lshl_b32 s5, s3, 4
    s_add_u32 s5, s5, s{S_N0}
    s_add_u32 s5, s5, 96
    s_lshl_b32 s5, s5, 1
    v_lshrrev_b32 v2, 4, v1
    v_lshlrev_b32 v2, 3, v2
    """)
    for nb in range(7):
        if nb < 6: a.e(f"buffer_load_dwordx2 v[{BT+2*nb}:{BT+2*nb+1}], v2, s[{S_R1}:{S_R1+3}], s4 offen offset:{32*nb}")
        else: a.e(f"buffer_load_dwordx2 v[{BT+2*nb}:{BT+2*nb+1}], v2, s[{S_R1}:{S_R1+3}], s5 offen")
    def bar_hook():
        a.e("s_waitcnt lgkmcnt(0)")
        a.e("s_barrier")
        return pfx() if PFAT == 1 else 0
    def pfx():
        a.e(f"s_lshl_b32 s24, s2, 2")
        a.e(f"s_add_u32 s24, s24, s{S_WAVE}")
        a.e(f"v_lshlrev_b32 v240, 7, v1")
        for ptr, kb in ((P_W1, 7),):
            srd(a, 8, ptr, kb << 20)
            a.e(f"s_mul_i32 s25, s24, {kb*1024}")
            a.e(f"s_add_u32 s10, s25, {kb*1024}")
            a.e(f"buffer_load_dword v241, v240, s[8:11], s25 offen")
        return 1
    cbc = CBar(SYNC)
    rfx_body(a, VA(2, 240), S_WAVE, SCR, SC=SC, bar=lambda vt: cbc(a, vt), pf=bar_hook, pf2=pfx if PFAT == 2 else None, st=lambda i: stamp(a, i, DBG == 5))
    if DBG == 5:
        stamp(a, 7, True); ST = False
    R = ConsRegs(c1, 8)
    T = R.end
    consumer_setup(a, c1, R, T, T+1)
    for nb in range(c1.NB):
        for mb in range(c1.MB):
            d = R.accreg(c1, mb, nb)
            a.e(f"v_lshlrev_b32 v{d}, 16, v{BT+2*nb}")
            a.e(f"v_and_b32 v{d+1}, 0xffff0000, v{BT+2*nb}")
            a.e(f"v_lshlrev_b32 v{d+2}, 16, v{BT+2*nb+1}")
            a.e(f"v_and_b32 v{d+3}, 0xffff0000, v{BT+2*nb+1}")
    stamp(a, 1, ST)
    c1.stampf = lambda i: stamp(a, 2 + i, ST)
    srd(a, 8, P_W2, 7 << 20)
    a.e(f"s_mul_i32 s25, s24, 7168")
    a.e(f"v_mov_b32 v241, 0x7fffff00")
    a.e(f"v_cmp_gt_u32 vcc, {56 // W2_N}, v1")
    a.e(f"v_cndmask_b32 v240, v241, v240, vcc")
    consumer_loop(a, c1, R, split=SPLIT, npf=W2_N, pfl=["buffer_load_dword v241, v240, s[8:11], s25 offen", f"s_add_u32 s25, s25, {7168 // W2_N}"])
    kA, kB, one = T, T+2, T+4
    A_ = 2*math.sqrt(2/math.pi)*math.log2(math.e)
    a.e(f"v_mov_b32 v{kA}, {f32(-A_)}"); a.e(f"v_mov_b32 v{kA+1}, {f32(-A_)}")
    a.e(f"v_mov_b32 v{kB}, {f32(-A_*0.044715)}"); a.e(f"v_mov_b32 v{kB+1}, {f32(-A_*0.044715)}")
    a.e(f"v_mov_b32 v{one}, 1.0"); a.e(f"v_mov_b32 v{one+1}, 1.0")
    a.e(f"""
    s_lshr_b32 s3, s{S_WAVE}, 1
    s_and_b32 s4, s{S_WAVE}, 1
    s_lshl_b32 s4, s4, 2
    s_lshr_b32 s5, s{S_M0}, 4
    s_add_u32 s4, s4, s5
    s_mul_i32 s4, s4, 112
    s_lshr_b32 s5, s{S_N0}, 5
    s_add_u32 s4, s4, s5
    s_lshl_b32 s4, s4, 10
    s_add_u32 s4, s4, {H_OFF}
    s_lshl_b32 s6, s3, 12
    s_add_u32 s6, s6, s4
    s_lshl_b32 s7, s3, 5
    s_add_u32 s7, s7, s4
    s_add_u32 s7, s7, 3072
    v_and_b32 v4, 15, v1
    v_lshlrev_b32 v4, 6, v4
    v_lshrrev_b32 v5, 4, v1
    v_lshlrev_b32 v3, 3, v5
    v_add3_u32 v3, v3, v4, s7
    v_and_b32 v2, 1, v5
    v_lshlrev_b32 v2, 5, v2
    v_lshrrev_b32 v5, 1, v5
    v_lshlrev_b32 v5, 4, v5
    v_add3_u32 v2, v2, v5, v4
    v_add_u32 v2, s6, v2
    """)
    tmp = R.fa[0]; pk_ = tmp + 32
    for mb in range(c1.MB):
        a.e(f"s_mov_b32 s5, {mb*112*1024}")
        for p in range(0, c1.NB, 2):
            nbs = [p, p+1] if p+1 < c1.NB else [p]
            regs = []
            for nb in nbs:
                d = R.accreg(c1, mb, nb); regs += [d, d+2]
            gelu_pairs(a, regs, tmp, kA, kB, one)
            q = pk_ + 4*((mb*4 + p//2) % 8)
            for i, r in enumerate(regs):
                a.e(f"v_cvt_pk_bf16_f32 v{q+i}, v{r}, v{r+1}")
            if len(nbs) == 2:
                a.e(f"v_permlane16_swap_b32 v{q}, v{q+2}")
                a.e(f"v_permlane16_swap_b32 v{q+1}, v{q+3}")
                a.e(f"buffer_store_dwordx4 v[{q}:{q+3}], v2, s[{S_WS}:{S_WS+3}], s5 offen offset:{512*p}{SC}")
            else:
                a.e(f"buffer_store_dwordx2 v[{q}:{q+1}], v3, s[{S_WS}:{S_WS+3}], s5 offen{SC}")
    stamp(a, 4, ST)
    map_g2(a)
    R = ConsRegs(c2, 8)
    T = R.end
    consumer_setup(a, c2, R, T, T+1)
    for i in range(c2.MB*c2.NB*4): a.e(f"v_mov_b32 v{R.acc+i}, 0")
    a.e("s_waitcnt vmcnt(0)")
    lds_signal(a, T, 1, lambda: flag_set(a, T, S_FH))
    c2.stampf = lambda i: stamp(a, 5 + i, ST)
    consumer_loop(a, c2, R)
    a.e(f"""
    s_and_b32 s4, s{S_WAVE}, 1
    s_lshl_b32 s4, s4, 2
    s_lshr_b32 s5, s{S_M0}, 4
    s_add_u32 s4, s4, s5
    s_lshl_b32 s4, s4, 5
    s_lshr_b32 s5, s{S_N0}, 5
    s_add_u32 s4, s4, s5
    s_and_b32 s5, s{S_WAVE}, 2
    s_add_u32 s4, s4, s5
    s_lshl_b32 s4, s4, 10
    s_lshr_b32 s5, s83, 3
    s_lshl_b32 s5, s5, 22
    s_add_u32 s4, s4, s5
    s_add_u32 s4, s4, {P_OFF}
    v_and_b32 v4, 15, v1
    v_lshlrev_b32 v4, 6, v4
    v_lshrrev_b32 v5, 4, v1
    v_and_b32 v2, 1, v5
    v_lshlrev_b32 v2, 5, v2
    v_lshrrev_b32 v5, 1, v5
    v_lshlrev_b32 v5, 4, v5
    v_add3_u32 v2, v2, v5, v4
    v_add_u32 v2, s4, v2
    """)
    pk_ = R.fa[0]
    for mb in range(c2.MB):
        a.e(f"s_mov_b32 s5, {mb*32*1024}")
        for p in range(0, c2.NB, 2):
            q = pk_ + 4*(mb*2 + p//2)
            for i, nb in enumerate((p, p+1)):
                d = R.accreg(c2, mb, nb)
                a.e(f"v_cvt_pk_bf16_f32 v{q+2*i}, v{d}, v{d+1}")
                a.e(f"v_cvt_pk_bf16_f32 v{q+2*i+1}, v{d+2}, v{d+3}")
            a.e(f"v_permlane16_swap_b32 v{q}, v{q+2}")
            a.e(f"v_permlane16_swap_b32 v{q+1}, v{q+3}")
            a.e(f"buffer_store_dwordx4 v[{q}:{q+3}], v2, s[{S_WS}:{S_WS+3}], s5 offen offset:{512*p}{SC}")
    a.e("s_waitcnt vmcnt(0)")
    lds_signal(a, T, 2, lambda: flag_set(a, T, S_FP))
    stamp(a, 7, ST)
    ST = STF
    stamp_flush(a, P_WS, ST)
    a.e("s_endpgm")
    a.label(Lload)
    a.e(f"s_sub_u32 s{S_WAVE}, s{S_WAVE}, 4")
    if PRIO == 2: a.e("s_setprio 2")
    AUXV = 16
    def poll_async(x, off):
        L1 = x.newlabel("Lpa"); L2 = x.newlabel("Lpb")
        x.mark("stop")
        x.mark("cond_begin")
        x.e(f"s_cmp_lg_u32 s{S_WAVE}, 0"); x.e(f"s_cbranch_scc1 {L1}")
        x.e(f"v_mov_b32 v13, {off}")
        x.e(f"global_load_dword v14, v13, s[{P_DBG}:{P_DBG+1}] sc1")
        x.mark("condmark")
        x.label(L1)
        x.mark("cond_end")
        x.mark("delay 1")
        x.mark("cond_begin")
        x.e(f"s_cmp_lg_u32 s{S_WAVE}, 0"); x.e(f"s_cbranch_scc1 {L2}")
        x.mark("condwait")
        x.e(f"v_readfirstlane_b32 s7, v14")
        x.e(f"s_cmp_ge_u32 s7, 256"); x.e(f"s_cbranch_scc1 {L2}")
        poll_dbg(x, 13, off, 256)
        x.label(L2)
        x.mark("cond_end")
        x.mark("sync")
    xw = Asm(); xw.nlabel = 1500
    wprep_body(xw, VA(AUXV + 4, AUXV + 68), S_WAVE, SCR, SC=SC, mid=lambda: xw.mark("stop"))
    WP = Aux(xw.lines)
    x = Asm(); x.nlabel = 2000
    cp_body2(x, VA(AUXV), S_WAVE, SCR, SCL=SC, SC=SC, p_s=19, pre_loads=lambda: poll_async(x, 0))
    x.mark("stop")
    def bump(lines, n):
        i = max(k for k, l in enumerate(lines) if l.startswith(";@sync") and any("condwait" in q for q in lines[max(0,k-40):k]) and "buffer_load" in "".join(lines[k:k+60]) and k < len(lines)//2) if False else None
        seen_sync = False
        for k, l in enumerate(lines):
            if l.startswith(";@sync"): seen_sync = True
            elif seen_sync and l.startswith(";@delay"):
                lines[k] = f";@delay {n}"; return
    bump(x.lines, CPD)
    CP = Aux(x.lines)
    x = Asm(); x.nlabel = 3000
    def poll_p(vt):
        Lq = x.newlabel("Lq")
        x.e(f"v_mov_b32 v{vt}, {SYNC + 8}")
        x.label(Lq)
        x.e("s_sleep 2")
        x.e(f"ds_read_b32 v{vt+1}, v{vt}")
        x.e("s_waitcnt lgkmcnt(0)")
        x.e(f"v_readfirstlane_b32 s7, v{vt+1}")
        x.e(f"s_cmp_ge_u32 s7, 4")
        x.e(f"s_cbranch_scc0 {Lq}")
        x.e(f"s_lshr_b32 s5, s2, 4")
        x.e(f"s_lshl_b32 s5, s5, 7")
        x.e(f"s_add_u32 s5, s5, {FLAG_OFF + 8192}")
        poll_flags(x, vt, 5, 16)
    fin_body3(x, VA(AUXV), S_WAVE, SCR, 2, SC, SC, poll_p, pre_loads=lambda: poll_async(x, 128))
    bump(x.lines, 5)
    FIN = Aux(x.lines)
    M = Merger(a)
    M.push(WP)
    srd(a, S_SRDA, P_X, 2048*1024*2)
    srd(a, S_SRDB, P_W1, 1024*3584*2)
    vA, vB = loader_setup(a, c1, 2)
    a.e(f"""
    s_and_b32 s19, s2, 7
    s_lshl_b32 s19, s19, 1
    s_bfe_u32 s{T0}, s2, 0x10003
    s_add_u32 s19, s19, s{T0}
    s_and_b32 s{T0}, s2, 0xf0
    s_add_u32 s19, s19, s{T0}
    """)
    def g1_units(s):
        return (dma_units(c1, vA, S_SRDA, S_SOFFA, S_TMP+4, s % 3, ("g1", s), pre=[f"s_mov_b32 s{S_SOFFA}, {128*s}"]) +
                dma_units(c1, vB, S_SRDB, S_SOFFB, S_TMP+5, s % 3, ("g1", s), pre=[f"s_mov_b32 s{S_SOFFB}, {64*7168*s}"]))
    def pf_unit(ptr, lo=0, hi=55):
        return [[(f"s_lshl_b32 s{T0}, s2, 2", None), (f"s_add_u32 s{T0}, s{T0}, s{S_WAVE}", None), (f"s_mul_i32 s{T0}, s{T0}, 7168", None),
                 (f"s_add_u32 s{T2}, s{ptr}, s{T0}", None), (f"s_addc_u32 s{T3}, s{ptr+1}, 0", None),
                 (f"v_add_u32 v15, {lo}, v1", None), (f"v_min_u32 v15, {hi}, v15", None), (f"v_lshlrev_b32 v15, 7, v15", None),
                 (f"global_load_dword v12{'' if False else ''}, v15, s[{T2}:{T3}]".replace("v12", "v14"), None)]]
    M.queue = [CP]
    a.e("s_barrier")
    M.run(0, g1_units(0) + g1_units(1) + g1_units(2))
    M.queue = [WP]
    M.run(10**9)
    stamp(a, 1, ST)
    M.queue = [CP]
    sched = [("pre", 0, M.run(3000))]
    M.queue = [WP, CP, FIN]
    M.wait_tag(("g1", 0))
    a.e("s_barrier")
    def arrive0(off):
        L = a.newlabel("Lar")
        a.e(f"s_cmp_lg_u32 s{S_WAVE}, 0"); a.e(f"s_cbranch_scc1 {L}")
        a.e("s_mov_b64 exec, 1")
        dbg_add(a, 13, off)
        a.e("s_mov_b64 exec, -1")
        a.label(L)
    for t in range(c1.NK):
        if t + 1 < c1.NK: M.wait_tag(("g1", t + 1), " lgkmcnt(0)")
        else: a.e("s_waitcnt lgkmcnt(0)")
        a.e("s_barrier"); M.tick()
        if DBG == 1 and t in (0, 1, 2, 3, 4, 5): stamp(a, 2 + t, ST)
        if DBG == 2 and t in (6, 8, 10, 12, 13, 15): stamp(a, 2 + (6, 8, 10, 12, 13, 15).index(t), ST)
        u = g1_units(t + 3) if t + 3 < c1.NK else []
        if t == ARR_AT: arrive0(0)
        if t == WST_AT:
            M.run(0, u); u = []
            M.release(); M.run(10**9)
        if t == CPREL: M.release()
        if t + 1 < c1.NK:
            used = M.run(B1, u); sched.append(("g1", t, used))
    stamp(a, 3, STL)
    map_g2(a)
    srd(a, S_SRDB, P_W2, 1024*3584*2)
    a.e(f"s_mov_b32 s{S_SRDA}, s{S_WS}"); a.e(f"s_mov_b32 s{S_SRDA+1}, s{S_WS+1}")
    a.e(f"s_mov_b32 s{S_SRDA+2}, {H_OFF + 2048*3584*2}")
    vA2, vB2 = loader_setup(a, c2, 2)
    a.e(f"s_and_b32 s{S_KI}, s83, 7")
    a.e(f"s_mul_i32 s{S_KI}, s{S_KI}, 7")
    a.e(f"s_add_u32 s{S_KI}, s{S_KI}, 1")
    a.e(f"s_lshr_b32 s{S_KI}, s{S_KI}, 1")
    def kidx(s, dst, sh):
        if s < 3: return [f"s_add_u32 s{T0}, s{S_KI}, {s}", f"s_lshl_b32 s{dst}, s{T0}, {sh}"]
        return [f"s_cmp_gt_u32 s{S_KI}, {s-3}", f"s_cselect_b32 s{T0}, {s-3}, {s}", f"s_lshl_b32 s{dst}, s{T0}, {sh}"]
    def g2A(s): return dma_units(c2, vA2, S_SRDA, S_SOFFA, S_TMP+4, s % NS2, ("g2", s), pre=kidx(s, S_SOFFA, 11))
    def g2B(s): return dma_units(c2, vB2, S_SRDB, S_SOFFB, S_TMP+5, s % NS2, ("g2b", s), pre=kidx(s, S_SOFFB, 17))
    M.run(0, sum((g2B(s) for s in range(NS2)), []))
    M.tick(); M.tick()
    cbl = CBar(SYNC + 28)
    while True:
        sched.append(("epi", 0, M.run(10**9, nodelay=True)))
        if CP.L[CP.p].startswith(";@stop"): break
        cbl(a, 13); M.tick()
    assert CP.L[CP.p].startswith(";@stop")
    stamp(a, 2, STL)
    poll_lds(a, 13, 1, 4, T0)
    stamp(a, 4, STL)
    M.run(0, sum((g2A(s) for s in range(3)), []))
    a.e(f"s_lshr_b32 s{T2}, s{S_M0}, 6")
    a.e(f"s_lshr_b32 s{T1}, s83, 3")
    a.e(f"s_add_u32 s{T2}, s{T2}, s{T1}")
    a.e(f"s_lshl_b32 s{T2}, s{T2}, 7")
    a.e(f"s_add_u32 s{T2}, s{T2}, {FLAG_OFF}")
    a.e(f"v_and_b32 v13, 7, v1")
    a.e(f"v_lshlrev_b32 v13, 2, v13")
    M.raw(f"buffer_load_dword v14, v13, s[{S_WS}:{S_WS+3}], s{T2} offen sc1", "fl")
    M.wait_tag(("g2", 0), " lgkmcnt(0)")
    a.e("s_barrier"); M.tick()
    assert NS2 == 4
    LB = a.newlabel("LslowH"); LJ = a.newlabel("LjoinH")
    M.wait_tag("fl")
    lds_signal(a, 10, 4, lambda: dbg_add(a, 10, 128), st=T1)
    M.release()
    a.e(f"v_cmp_ne_u32 s[{S_TMP+2}:{S_TMP+3}], 1, v14")
    a.e(f"s_cmp_lg_u64 s[{S_TMP+2}:{S_TMP+3}], 0")
    a.e(f"s_cbranch_scc1 {LB}")
    stamp(a, 5, STL)
    M.run(0, g2A(3))
    for t in range(2):
        M.wait_tag(("g2", t + 1))
        a.e("s_barrier")
        M.run(0, g2B(t + NS2) + g2A(t + NS2))
    a.e(f"s_branch {LJ}")
    a.label(LB)
    for t in range(2):
        a.e("s_barrier")
        for u in g2B(t + NS2):
            for l, _ in u: a.e(l)
    a.e(f"s_mov_b64 s[{S_TMP+2}:{S_TMP+3}], vcc")
    poll_flags(a, 13, T2, 8, sa=T0)
    a.e(f"s_mov_b64 vcc, s[{S_TMP+2}:{S_TMP+3}]")
    stamp(a, 5, STL)
    for s_ in (3, 4, 5):
        for u in g2A(s_):
            for l, _ in u: a.e(l)
    a.e("s_waitcnt vmcnt(0)")
    a.label(LJ)
    for t in range(2, c2.NK):
        if t + 1 < c2.NK: M.wait_tag(("g2", t + 1), " lgkmcnt(0)")
        else: a.e("s_waitcnt lgkmcnt(0)")
        a.e("s_barrier"); M.tick()
        if DBG == 3 and t in (2, 6, 10, 14, 18, 24): stamp(a, 2 + (2, 6, 10, 14, 18, 24).index(t), ST)
        u = (g2B(t + NS2) + g2A(t + NS2)) if t + NS2 < c2.NK else []
        if t == FINREL: M.release()
        if t + 1 < c2.NK:
            used = M.run(B2 if t < c2.NK - NS2 - 1 else 2*B2, u); sched.append(("g2", t, used))
    stamp(a, 6, STL)
    M.tick()
    sched.append(("post", 0, M.run(10**9, nodelay=True)))
    assert FIN.L[FIN.p].startswith(";@stop"), FIN.L[FIN.p-3:FIN.p+3]
    M.release()
    M.run(10**9)
    stamp(a, 7, STL)
    stamp_flush(a, P_WS, ST)
    a.label(Lend)
    a.e("s_endpgm")
    a.end_kernel(name, 256)
    a.launches.append(f"; @launch grid=(256,1,1) block=(512,1,1) lds={LDS_TOTAL}")
    a.sched = sched
    return a

NAME = "gated_mix__spectral_gfnet__dense_activation_gelu__prompt_kernel"
hdr = open("gated_mix__spectral_gfnet__dense_activation_gelu__prompt.s.ref").read().split("; Override launch")[0]
if __name__ == "__main__":
    a = build(NAME)
    print(a.sched)
    open("s5.s", "w").write(a.text(hdr))
    open("s5_st.s", "w").write(build(NAME, ST=True).text(hdr))
    for d in (1, 2, 3): open(f"s5_d{d}_st.s", "w").write(build(NAME, ST=True, DBG=d).text(hdr))
    open("s5_b_st.s", "w").write(build(NAME, ST=True, W2_N=4).text(hdr))
    open("s5_c_st.s", "w").write(build(NAME, ST=True, WST_AT=6, ARR_AT=9, CPREL=11, B1=200).text(hdr))
```

```python
import re
VR = re.compile(r'\bv\[(\d+):(\d+)\]|\bv(\d+)\b')
SR = re.compile(r'\bs\[(\d+):(\d+)\]|\bs(\d+)\b|\b(vcc|exec|m0)\b')
TRANS = ("v_exp_f32", "v_log_f32", "v_rcp_f32", "v_rsq_f32", "v_sqrt_f32", "v_sin_f32", "v_cos_f32")
def vregs(op):
    out = []
    for m in VR.finditer(op):
        if m.group(3) is not None: out.append(int(m.group(3)))
        else: out += list(range(int(m.group(1)), int(m.group(2)) + 1))
    return out
def sregs(op):
    out = []
    for m in SR.finditer(op):
        if m.group(4): out.append(m.group(4))
        elif m.group(3) is not None: out.append(int(m.group(3)))
        else: out += list(range(int(m.group(1)), int(m.group(2)) + 1))
    return out
def split_ops(rest):
    ops, depth, cur = [], 0, ""
    for ch in rest:
        if ch == '[': depth += 1
        if ch == ']': depth -= 1
        if ch == ',' and depth == 0: ops.append(cur.strip()); cur = ""
        else: cur += ch
    ops.append(cur.strip())
    return ops

import os
PKWS = int(os.environ.get('PKWS', '1'))
def fix(lines):
    out = []
    t = 0
    valu_w = {}; trans_w = {}; mfma_w = {}; mfma_c = {}; store_d = {}; valu_sw = {}; salu_m0 = -99; mfma_full = {}
    valu_exec = -99
    pk_w = {}
    snaps = {}; seen = set()
    for line in lines:
        s = line.split(';')[0].strip()
        if s.endswith(':') and s[:-1] in snaps:
            tb, sv = snaps.pop(s[:-1]); d = t - tb
            for cur, old in zip((valu_w, trans_w, store_d, valu_sw), sv[0]):
                for r, tw in old.items(): cur[r] = max(cur.get(r, -999), tw + d)
            for cur, old in zip((mfma_w, mfma_c), sv[1]):
                for r, (tw, ps) in old.items():
                    if r not in cur or cur[r][0] + cur[r][1] < tw + d + ps: cur[r] = (tw + d, ps)
            for r in list(mfma_full):
                if sv[2].get(r) != mfma_full[r]: del mfma_full[r]
            salu_m0 = max(salu_m0, sv[3] + d); valu_exec = max(valu_exec, sv[4] + d)
        if s.endswith(':'): seen.add(s[:-1])
        if not s or s.endswith(':') or s.startswith('.'):
            out.append(line); continue
        parts = s.split(None, 1)
        op = parts[0]; ops = split_ops(parts[1]) if len(parts) > 1 else []
        if op == "s_nop":
            out.append(line); t += int(ops[0], 0) + 1; continue
        need = 0
        def req(tw, ws):
            nonlocal need
            if tw is not None: need = max(need, tw + ws + 1 - t)
        is_mfma = op.startswith("v_mfma")
        is_valu = op.startswith("v_") and not is_mfma
        is_mem = op.startswith(("buffer_", "global_", "ds_", "flat_"))
        rd, wr, srd_, swr = [], [], [], []
        if is_mfma:
            wr = vregs(ops[0]); A = vregs(ops[1]); B = vregs(ops[2]); C = vregs(ops[3])
            passes = 8 if "32x32x16" in op else 4
            for r in A + B + C: req(valu_w.get(r), 2)
            for r in A + B:
                if r in mfma_w: req(mfma_w[r][0], mfma_w[r][1] + 4)
            same = C and all(mfma_full.get(r) == (tuple(C), passes) for r in C)
            if not same:
                for r in C:
                    if r in mfma_w: req(mfma_w[r][0], mfma_w[r][1] + 2)
            for r in wr:
                if r in mfma_w and mfma_full.get(r) != (tuple(wr), passes): req(mfma_w[r][0], mfma_w[r][1] + 2)
            req(valu_exec, 4)
        elif is_valu:
            dpp = "row_" in s or "quad_perm" in s or "wave_" in s
            if op.startswith(("v_cmp", "v_readlane", "v_readfirstlane")):
                swr = sregs(ops[0]); rd = sum((vregs(o) for o in ops[1:]), []); srd_ = sum((sregs(o) for o in ops[1:]), [])
                if op.startswith("v_cmpx"): swr.append("exec")
            elif op.startswith("v_permlane"):
                rd = vregs(ops[0]) + vregs(ops[1]); wr = rd
            else:
                wr = vregs(ops[0]); rd = sum((vregs(o) for o in ops[1:]), []); srd_ = sum((sregs(o) for o in ops[1:]), [])
                if op.startswith(("v_fmac", "v_pk_fmac", "v_dot2c", "v_writelane")) or dpp: rd = rd + wr
                if "_co_" in op: swr = sregs(ops[1]);
            for r in rd + wr:
                if r in mfma_w: req(mfma_w[r][0], mfma_w[r][1] + 4)
            for r in wr:
                if r in mfma_c: req(mfma_c[r][0], mfma_c[r][1] - 1)
                req(store_d.get(r), 2)
            if not op.startswith(TRANS):
                for r in rd: req(trans_w.get(r), 1)
            for r in rd + wr: req(pk_w.get(r), PKWS)
            if op.startswith("v_permlane") or dpp:
                for r in rd: req(valu_w.get(r), 2)
                req(valu_exec, 5)
            if op.startswith(("v_readlane", "v_readfirstlane")):
                for r in rd: req(valu_w.get(r), 1)
                req(valu_exec, 4)
            for r in srd_: req(valu_sw.get(r), 4 if op.startswith(("v_readlane", "v_writelane")) else 2)
            if op.startswith("v_cndmask") and len(ops) == 3: req(valu_sw.get("vcc"), 2)
        elif is_mem:
            allv = [vregs(o) for o in ops]
            is_load = ("_load" in op or op.startswith("ds_read") or "permute" in op or "swizzle" in op) and " lds" not in (" " + s)
            ret_atomic = "atomic" in op and (" sc0" in s)
            if is_load or ret_atomic or "_rtn_" in op: wr = allv[0]; rd = sum(allv[1:], [])
            else: rd = sum(allv, [])
            if is_load and "d16" in op: rd = rd + wr
            for r in rd + wr:
                if r in mfma_w: req(mfma_w[r][0], mfma_w[r][1] + 4)
            for r in rd: req(trans_w.get(r), 1)
            for r in wr: req(store_d.get(r), 1)
            if not op.startswith("ds_"):
                for o in ops:
                    for r in sregs(o): req(valu_sw.get(r), 5)
            if " lds" in (" " + s): req(salu_m0, 1)
        else:
            for o in ops:
                for r in sregs(o): req(valu_sw.get(r), 1)
        if need > 0:
            n = need
            while n > 0:
                k = min(n, 16); out.append(f"    s_nop {k-1}"); n -= k
            t += need
        out.append(line)
        if is_mfma:
            for r in wr:
                mfma_w[r] = (t, passes); mfma_full[r] = (tuple(wr), passes); valu_w.pop(r, None); trans_w.pop(r, None)
            for r in C: mfma_c[r] = (t, passes)
        elif is_valu:
            for r in wr:
                valu_w[r] = t; mfma_w.pop(r, None); mfma_full.pop(r, None)
                if op.startswith("v_pk_"): pk_w[r] = t
                else: pk_w.pop(r, None)
                if op.startswith(TRANS): trans_w[r] = t
                else: trans_w.pop(r, None)
            for r in swr:
                valu_sw[r] = t
                if r == "exec": valu_exec = t
        elif is_mem:
            for r in wr:
                mfma_w.pop(r, None); mfma_full.pop(r, None); valu_w.pop(r, None); trans_w.pop(r, None)
            if ("store" in op and ("x3" in op or "x4" in op)) or op in ("ds_write_b128", "ds_write_b96"):
                dat = allv[0] if op.startswith("buffer_") else allv[1]
                for r in dat: store_d[r] = t
        else:
            if ops and ops[0] == "m0": salu_m0 = t
            if ops:
                for r in sregs(ops[0]): valu_sw.pop(r, None)
        t += 1
        if op.startswith(("s_cbranch", "s_branch")) and ops[0] not in seen and ops[0] not in snaps:
            snaps[ops[0]] = (t, ([dict(valu_w), dict(trans_w), dict(store_d), dict(valu_sw)], [dict(mfma_w), dict(mfma_c)], dict(mfma_full), salu_m0, valu_exec))
    return out
```

```python
import re
SCC_READ = ("s_cbranch_scc", "s_cselect", "s_addc", "s_subb", "s_cmov")
SCC_NOWRITE = ("s_mov", "s_waitcnt", "s_nop", "s_barrier", "s_mul_i32", "s_load", "s_sleep", "s_branch", "s_cbranch", "s_memtime", "s_memrealtime", "s_setprio", "s_mul_hi", "s_getreg")
def cost(s):
    op = s.split()[0]
    if "mfma" in op: return 16
    if op in ("v_sin_f32", "v_cos_f32", "v_exp_f32", "v_rcp_f32"): return 12
    if op.startswith("v_"): return 8
    if op.startswith("ds_"): return 8
    if op.startswith(("buffer", "global")): return 24
    return 4
def is_vmem(s): return s.startswith(("buffer_", "global_")) and not s.startswith(("buffer_inv", "buffer_wbl2"))

class Aux:
    def __init__(self, lines):
        self.L = [l.strip() for l in lines if l.strip()]
        n = len(self.L)
        self.safe = [True] * (n + 1); self.cond = [False] * n
        depth = 0; cdepth = 0
        for i, s in enumerate(self.L):
            if s.startswith(";@nocut_begin"): depth += 1
            if s.startswith(";@cond_begin"): depth += 1; cdepth += 1
            self.cond[i] = cdepth > 0
            if depth > 0 and not s.startswith((";@nocut_begin", ";@cond_begin")) : self.safe[i] = False
            if depth > 1: self.safe[i] = False
            if s.startswith(";@nocut_end"): depth -= 1
            if s.startswith(";@cond_end"): depth -= 1; cdepth -= 1
        live = False
        for i in range(n - 1, -1, -1):
            s = self.L[i]
            if s.startswith(SCC_READ): live = True
            elif s.startswith("s_") and not s.startswith(SCC_NOWRITE): live = False
            if live: self.safe[i] = False
        self.p = 0; self.delay = 0
    def done(self): return self.p >= len(self.L)

class Merger:
    def __init__(self, a):
        self.a = a; self.n = 0; self.aux_pos = []; self.tag_last = {}; self.queue = []
    def push(self, aux): self.queue.append(aux)
    def raw(self, s, tag=None):
        self.a.e(s)
        if is_vmem(s.strip()):
            if tag is not None: self.tag_last[tag] = self.n
            self.n += 1
    def wait_tag(self, tag, extra=""):
        k = self.n - 1 - self.tag_last[tag]
        self.a.e(f"s_waitcnt vmcnt({min(63, k)}){extra}")
    def _emit_aux(self, x):
        s = x.L[x.p]; c = x.cond[x.p]; x.p += 1
        if s.startswith(";@condmark"): self.cmark = self.n; return 0
        if s.startswith(";@condwait"): self.a.e(f"s_waitcnt vmcnt({min(63, self.n - self.cmark)})"); return 4
        if s.startswith(";"): return 0
        if s.endswith(":"): self.a.label(s[:-1]); return 0
        m = re.match(r"s_waitcnt\s+(.*)", s)
        if m and not c:
            mv = re.search(r"vmcnt\((\d+)\)", s)
            if mv:
                N = int(mv.group(1)); rest = re.sub(r"vmcnt\(\d+\)", "", m.group(1)).strip()
                if N >= len(self.aux_pos): s = f"s_waitcnt {rest}" if rest else None
                else:
                    k = self.n - 1 - self.aux_pos[len(self.aux_pos) - N - 1]
                    s = f"s_waitcnt vmcnt({min(63, k)}) {rest}".strip()
            if s: self.a.e(s)
            return 4
        self.a.e(s)
        if is_vmem(s) and not c:
            self.aux_pos.append(self.n); self.n += 1
        return cost(s)
    def run(self, budget, units=(), spread=True, nodelay=False):
        units = list(units)
        gap = budget / max(1, len(units)) if spread else 0
        used = 0; nxt = 0
        def unit():
            for l, t in units.pop(0): self.raw(l, t)
        while True:
            x = self.queue[0] if self.queue else None
            if x is not None and x.done():
                self.queue.pop(0); continue
            blocked = x is None or x.delay > 0
            if not blocked and x.safe[x.p]:
                s = x.L[x.p]
                if s.startswith(";@sync"): x.p += 1; x.delay = 1; blocked = True
                elif s.startswith(";@delay") and nodelay: x.p += 1; continue
                elif s.startswith(";@delay"): x.p += 1; x.delay = int(s.split()[1]); blocked = True
                elif s.startswith(";@stop"): blocked = True
                elif used >= budget: blocked = True
            if blocked:
                while units: unit()
                return used
            if units and used >= nxt and x.safe[x.p]:
                unit(); nxt += gap
            used += self._emit_aux(x)
    def tick(self):
        if self.queue and self.queue[0].delay > 0: self.queue[0].delay -= 1
    def release(self):
        x = self.queue[0]
        assert x.L[x.p].startswith(";@stop"); x.p += 1
```

```python
import sys, math
from asmlib import *
import gemmgen
gemmgen.S_TMP = 70
from gemmgen import *
from fft2 import *
from gen_g1 import gelu_pairs
from gen_s5 import (S_TMP, FLAG_OFF, SCR, SYNC, LDS_TOTAL, T0, T1, T2, T3, S_FH, S_FP, S_KI, lds_signal, dbg_add, flag_set, poll_dbg,
                    poll_flags, poll_lds, CBar, consumer_loop, map_g1, map_g2, NAME, hdr)
S_U = 68

def inline(a, x, cb, vt):
    for l in x.lines:
        s = l.strip()
        if s.startswith(";@sync"): cb(a, vt)
        elif s.startswith(";@condwait"): a.e("s_waitcnt vmcnt(0)")
        elif s.startswith(";@"): pass
        else: a.lines.append(l)

class CBarS:
    def __init__(self, sreg): self.n = 0; self.s = sreg
    def __call__(self, a, vt):
        self.n += 1
        L = a.newlabel("Lcb")
        a.e("s_waitcnt lgkmcnt(0)")
        a.e(f"v_mov_b32 v{vt}, s{self.s}")
        a.e(f"v_mov_b32 v{vt+1}, 1")
        a.e("s_mov_b64 exec, 1")
        a.e(f"ds_add_u32 v{vt}, v{vt+1}")
        a.label(L)
        a.e(f"ds_read_b32 v{vt+1}, v{vt}")
        a.e("s_waitcnt lgkmcnt(0)")
        a.e(f"v_readfirstlane_b32 s7, v{vt+1}")
        a.e(f"s_cmp_ge_u32 s7, {4*self.n}")
        a.e(f"s_cbranch_scc0 {L}")
        a.e("s_mov_b64 exec, -1")

def issue(a, c, vs, srd_, soff, sreg, slot, pre=()):
    for p in pre: a.e(p)
    for j, v in enumerate(vs):
        if j % 4 == 0:
            a.e(f"s_add_u32 m0, s{sreg}, {slot * c.SLOT + (j // 4) * 4096}")
        a.e(f"buffer_load_dwordx4 v{v}, s[{srd_}:{srd_+3}], s{soff} offen offset:{(j%4)*1024} lds")

def build(name, ST=False, DBG=0, W1D=16, W2D=13, L2PF=0, EPRIO=0, PRECP=True, POFF=Z1_OFF, S0EARLY=False, W2MODE=0, NS2=5, RPG1=1, RPG2=2, PD2=0, SPN=4, CPMODE=0, WPA=0, EARLYA=False, OVL=True):
    assert not EARLYA or CPMODE == 1
    a = Asm()
    SC = " sc1"
    SYNC2 = SYNC if NS2 == 4 else 3*32768
    SCR2 = SCR if NS2 == 4 else 3*32768 + 16384
    c1 = GemmCfg(128, 224, 1024, 3, 2048, 7168)
    c2 = GemmCfg(128, 128, 1792, NS2, 112*1024, 2048)
    c2.a_blocked = True; c2.a_off = H_OFF
    c1.rpg = RPG1; c2.rpg = RPG2
    a.begin_kernel(name)
    Lend = a.newlabel("Lend"); Lload = a.newlabel("Lload"); LnoRF = a.newlabel("LnoRF")
    a.e(f"s_cmp_ge_u32 s2, 256")
    a.e(f"s_cbranch_scc1 {Lend}")
    load_ptrs(a)
    a.e("v_lshrrev_b32 v2, 6, v0")
    a.e("v_and_b32 v1, 63, v0")
    a.e(f"v_readfirstlane_b32 s{S_CNT}, v2")
    a.e(f"""
    v_and_b32 v2, 15, v1
    v_lshlrev_b32 v2, 2, v2
    v_add_u32 v2, {SYNC}, v2
    v_mov_b32 v3, 0
    ds_write_b32 v2, v3
    s_and_b32 s{S_WAVE}, s{S_CNT}, 3
    s_lshr_b32 s69, s{S_CNT}, 2
    s_and_b32 s{S_U}, s2, 0xfe
    s_xor_b32 s3, s69, 1
    s_add_u32 s{S_U}, s{S_U}, s3
    """)
    map_g1(a)
    a.e(f"""
    s_lshr_b32 s3, s{S_M0}, 6
    s_lshr_b32 s4, s83, 3
    s_add_u32 s3, s3, s4
    s_lshl_b32 s3, s3, 7
    s_add_u32 s82, s3, {FLAG_OFF}
    s_and_b32 s5, s83, 7
    s_lshl_b32 s6, s5, 2
    s_add_u32 s{S_FH}, s82, s6
    s_lshl_b32 s5, s5, 1
    s_add_u32 s5, s5, s4
    s_lshl_b32 s5, s5, 2
    s_add_u32 s5, s5, s{S_M0}
    s_add_u32 s{S_FP}, s5, {FLAG_OFF + 8192}
    s_waitcnt lgkmcnt(0)
    """)
    stamp_init(a, ST); stamp(a, 0, ST)
    srd(a, S_WS, P_WS, WS_USED)
    a.e("s_barrier")
    if S0EARLY:
        Ls0 = a.newlabel("Ls0")
        a.e("s_cmp_eq_u32 s69, 0"); a.e(f"s_cbranch_scc1 {Ls0}")
        srd(a, S_SRDA, P_X, 2048*1024*2)
        srd(a, S_SRDB, P_W1, 1024*3584*2)
        vA, vB = loader_setup(a, c1, 2)
        loader_issue(a, c1, vA, vB)
        a.label(Ls0)
    LwpA = a.newlabel("LwpA")
    a.e("s_bitcmp1_b32 s2, 0")
    a.e(f"s_cbranch_scc0 {LwpA if WPA else LnoRF}")
    if W2MODE == 1:
        srd(a, 8, P_W2, 7 << 20) if False else None
        a.e(f"s_lshr_b32 s24, s2, 1"); a.e(f"s_lshl_b32 s24, s24, 3"); a.e(f"s_lshl_b32 s25, s69, 2"); a.e(f"s_add_u32 s24, s24, s25"); a.e(f"s_add_u32 s24, s24, s{S_WAVE}")
        a.e(f"s_mul_i32 s24, s24, 7168")
        a.e(f"s_add_u32 s24, s{P_W2}, s24"); a.e(f"s_addc_u32 s25, s{P_W2+1}, 0")
        a.e("v_min_u32 v254, 55, v1"); a.e("v_lshlrev_b32 v254, 7, v254")
        W2LD = "global_load_dword v255, v254, s[24:25]"
    cbB = CBarS(24)
    V = VA(2, 250)
    xw = Asm(); xw.nlabel = 1500
    Lg1 = a.newlabel("Lgrp1"); Lgd = a.newlabel("Lgrpd")
    a.e("s_cmp_lg_u32 s69, 0")
    a.e(f"s_cbranch_scc1 {Lg1}")
    for g in range(2):
        if g == 1: a.label(Lg1)
        V = VA(2, 250); cb = CBar(SYNC + 32 + 4*g)
        base = 45056 + g*32768
        xw = Asm(); xw.nlabel = 1500 + 100*g
        Vw = VA(200, 250)
        wprep_body(xw, Vw, S_WAVE, base + 16384, SC=SC, mid=lambda: xw.mark("mid"), u=S_U)
        k = xw.lines.index(";@mid")
        def p1():
            a.lines += xw.lines[:k]; return 40
        def p2():
            a.lines += xw.lines[k+1:]
            if W2MODE == 1: a.e(W2LD)
            return 0
        rfx_body(a, VA(2, 200), S_WAVE, base, SC=SC, bar=lambda vt: cb(a, vt), pf=None if WPA else p1, pf2=None if WPA else p2, u=S_U)
        if g == 0: a.e(f"s_branch {Lgd}")
    if WPA:
        a.e(f"s_branch {Lgd}")
        a.label(LwpA)
        a.e(f"s_lshl_b32 s23, s69, 2"); a.e(f"s_add_u32 s23, s23, s{S_WAVE}")
        wprep_body(a, VA(20, 84), S_WAVE, 2*c1.SLOT, SC=SC, u=S_U, ldsw=23)
    a.label(Lgd)
    a.e("s_waitcnt lgkmcnt(0)")
    a.e("s_barrier")
    a.label(LnoRF)
    stamp(a, 1, ST)
    a.e(f"s_cmp_lg_u32 s69, 0")
    a.e(f"s_cbranch_scc1 {Lload}")
    BT = 242
    a.e(f"""
    v_mov_b32 v2, 0
    s_mov_b64 exec, 1
    buffer_store_dword v2, v2, s[{S_WS}:{S_WS+3}], s{S_FH} offen sc1
    buffer_store_dword v2, v2, s[{S_WS}:{S_WS+3}], s{S_FP} offen sc1
    s_mov_b64 exec, -1
    """)
    srd(a, S_R1, P_B1, 3584*2)
    a.e(f"""
    s_lshr_b32 s3, s{S_WAVE}, 1
    s_lshl_b32 s4, s3, 7
    s_add_u32 s4, s4, s{S_N0}
    s_lshl_b32 s4, s4, 1
    s_lshl_b32 s5, s3, 4
    s_add_u32 s5, s5, s{S_N0}
    s_add_u32 s5, s5, 96
    s_lshl_b32 s5, s5, 1
    v_lshrrev_b32 v2, 4, v1
    v_lshlrev_b32 v2, 3, v2
    """)
    for nb in range(7):
        if nb < 6: a.e(f"buffer_load_dwordx2 v[{BT+2*nb}:{BT+2*nb+1}], v2, s[{S_R1}:{S_R1+3}], s4 offen offset:{32*nb}")
        else: a.e(f"buffer_load_dwordx2 v[{BT+2*nb}:{BT+2*nb+1}], v2, s[{S_R1}:{S_R1+3}], s5 offen")
    a.e(f"""
    s_lshr_b32 s24, s2, 1
    s_lshl_b32 s24, s24, 2
    s_add_u32 s24, s24, s{S_WAVE}
    s_mul_i32 s25, s24, 896
    s_bitcmp1_b32 s2, 0
    s_cselect_b32 s8, s{P_W2}, s{P_W1}
    s_cselect_b32 s9, s{P_W2+1}, s{P_W1+1}
    s_mov_b32 s27, {0x70000000 if W2MODE >= 1 else 0}
    s_cselect_b32 s26, s27, {3*458752}
    s_add_u32 s25, s25, s26
    s_mov_b32 s10, {7 << 20}
    s_mov_b32 s11, 0x20000
    v_lshlrev_b32 v240, 7, v1
    v_mov_b32 v241, 0x7fffff00
    v_cmp_gt_u32 vcc, 7, v1
    v_cndmask_b32 v240, v241, v240, vcc
    """)
    pfl = ["buffer_load_dword v241, v240, s[8:11], s25 offen", f"s_add_u32 s25, s25, 458752"]
    if L2PF:
        PFA, PFB = 238, 239
        srd(a, 12, P_X, 4 << 20); srd(a, S_R2, P_W1, 7 << 20)
        a.e(f"""
        s_lshr_b32 s3, s2, 3
        s_lshl_b32 s3, s3, 2
        s_add_u32 s3, s3, s{S_WAVE}
        s_and_b32 s4, s2, 1
        s_lshl_b32 s4, s4, 10
        s_lshl_b32 s5, s3, 3
        s_add_u32 s4, s4, s5
        v_add_u32 v{PFA}, s4, v1
        v_lshlrev_b32 v{PFA}, 11, v{PFA}
        v_cmp_gt_u32 vcc, 8, v1
        v_cndmask_b32 v{PFA}, v241, v{PFA}, vcc
        s_lshr_b32 s4, s3, 1
        s_mul_i32 s4, s4, 7168
        s_bfe_u32 s5, s2, 0x20001
        s_mul_i32 s5, s5, 1792
        s_add_u32 s4, s4, s5
        s_and_b32 s5, s3, 1
        s_mul_i32 s5, s5, 896
        s_add_u32 s4, s4, s5
        v_lshlrev_b32 v{PFB}, 7, v1
        v_add_u32 v{PFB}, s4, v{PFB}
        v_cmp_gt_u32 vcc, 7, v1
        v_cndmask_b32 v{PFB}, v241, v{PFB}, vcc
        s_mov_b32 s26, {128*3}
        s_mov_b32 s27, {458752*3}
        """)
        l2 = [f"buffer_load_dword v241, v{PFA}, s[12:15], s26 offen", "s_add_u32 s26, s26, 128",
              f"buffer_load_dword v241, v{PFB}, s[{S_R2}:{S_R2+3}], s27 offen", "s_add_u32 s27, s27, 458752"]
    R = ConsRegs(c1, 8); T = R.end
    consumer_setup(a, c1, R, T, T+1)
    a.e("s_waitcnt vmcnt(0)")
    if L2PF:
        for i in range(L2PF - 3):
            for l in l2: a.e(l)
        pfl0 = pfl; pfl = pfl + l2
    Lsk = a.newlabel("Lskpf")
    for i in range(W1D - 3):
        if i == W2D:
            a.e("s_bitcmp1_b32 s2, 0"); a.e(f"s_cbranch_scc1 {Lsk}")
        for l in pfl[:2]: a.e(l)
    a.label(Lsk)
    for nb in range(c1.NB):
        for mb in range(c1.MB):
            d = R.accreg(c1, mb, nb)
            a.e(f"v_lshlrev_b32 v{d}, 16, v{BT+2*nb}")
            a.e(f"v_and_b32 v{d+1}, 0xffff0000, v{BT+2*nb}")
            a.e(f"v_lshlrev_b32 v{d+2}, 16, v{BT+2*nb+1}")
            a.e(f"v_and_b32 v{d+3}, 0xffff0000, v{BT+2*nb+1}")
    c1.stampf = lambda i: stamp(a, 2 + i, ST)
    last1 = consumer_loop(a, c1, R, split=0, npf=0, pfl=pfl, defer=OVL, allpf=(W2MODE < 4 and W1D < 16 or W2MODE == 0 and W2D < 13 or W2MODE == 0))
    if OVL:
        for l in last1[:8]: a.e(l)
    if EPRIO: a.e('s_setprio 3')
    if W2MODE == 2:
        a.e(f"""
        s_lshr_b32 s25, s24, 8
        s_mul_i32 s25, s25, {1792*2048}
        s_and_b32 s26, s24, 255
        s_mul_i32 s26, s26, 7168
        s_add_u32 s25, s25, s26
        s_and_b32 s26, s2, 1
        s_mul_i32 s26, s26, {896*2048}
        s_add_u32 s25, s25, s26
        s_mov_b32 s8, s{P_W2}
        s_mov_b32 s9, s{P_W2+1}
        v_min_u32 v240, 55, v1
        v_lshlrev_b32 v240, 7, v240
        buffer_load_dword v241, v240, s[8:11], s25 offen
        """)
    if W2MODE == 3:
        L3 = a.newlabel("Lw3")
        a.e("s_bitcmp1_b32 s2, 0"); a.e(f"s_cbranch_scc1 {L3}")
        a.e(f"""
        s_mul_i32 s25, s24, 14336
        s_mov_b32 s8, s{P_W2}
        s_mov_b32 s9, s{P_W2+1}
        v_min_u32 v240, 55, v1
        v_lshlrev_b32 v240, 7, v240
        buffer_load_dword v241, v240, s[8:11], s25 offen
        s_add_u32 s25, s25, 7168
        buffer_load_dword v241, v240, s[8:11], s25 offen
        """)
        a.label(L3)
    kA, kB, one = T, T+2, T+4
    A_ = 2*math.sqrt(2/math.pi)*math.log2(math.e)
    a.e(f"v_mov_b32 v{kA}, {f32(-A_)}"); a.e(f"v_mov_b32 v{kA+1}, {f32(-A_)}")
    a.e(f"v_mov_b32 v{kB}, {f32(-A_*0.044715)}"); a.e(f"v_mov_b32 v{kB+1}, {f32(-A_*0.044715)}")
    a.e(f"v_mov_b32 v{one}, 1.0"); a.e(f"v_mov_b32 v{one+1}, 1.0")
    a.e(f"""
    s_lshr_b32 s3, s{S_WAVE}, 1
    s_and_b32 s4, s{S_WAVE}, 1
    s_lshl_b32 s4, s4, 2
    s_lshr_b32 s5, s{S_M0}, 4
    s_add_u32 s4, s4, s5
    s_mul_i32 s4, s4, 112
    s_lshr_b32 s5, s{S_N0}, 5
    s_add_u32 s4, s4, s5
    s_lshl_b32 s4, s4, 10
    s_add_u32 s4, s4, {H_OFF}
    s_lshl_b32 s6, s3, 12
    s_add_u32 s6, s6, s4
    s_lshl_b32 s7, s3, 5
    s_add_u32 s7, s7, s4
    s_add_u32 s7, s7, 3072
    v_and_b32 v4, 15, v1
    v_lshlrev_b32 v4, 6, v4
    v_lshrrev_b32 v5, 4, v1
    v_lshlrev_b32 v3, 3, v5
    v_add3_u32 v3, v3, v4, s7
    v_and_b32 v2, 1, v5
    v_lshlrev_b32 v2, 5, v2
    v_lshrrev_b32 v5, 1, v5
    v_lshlrev_b32 v5, 4, v5
    v_add3_u32 v2, v2, v5, v4
    v_add_u32 v2, s6, v2
    """)
    if OVL:
        tmp = R.fa[0]; pk_ = R.fb[0]; npk = 7
        rest = list(last1[8:])
        for mb in range(4): a.e(f"s_mov_b32 s{20+mb}, {mb*112*1024}")
        order = [(mb, p) for p in range(0, c1.NB, 2) for mb in range(c1.MB)]
    else:
        tmp = R.fa[0]; pk_ = tmp + 32; npk = 8; rest = []
        for mb in range(4): a.e(f"s_mov_b32 s{20+mb}, {mb*112*1024}")
        order = [(mb, p) for mb in range(c1.MB) for p in range(0, c1.NB, 2)]
    for idx, (mb, p) in enumerate(order):
        e = Asm()
        nbs = [p, p+1] if p+1 < c1.NB else [p]
        regs = []
        for nb in nbs:
            d = R.accreg(c1, mb, nb); regs += [d, d+2]
        gelu_pairs(e, regs, tmp, kA, kB, one)
        q = pk_ + 4*(idx % npk)
        for i, r in enumerate(regs):
            e.e(f"v_cvt_pk_bf16_f32 v{q+i}, v{r}, v{r+1}")
        if len(nbs) == 2:
            e.e(f"v_permlane16_swap_b32 v{q}, v{q+2}")
            e.e(f"v_permlane16_swap_b32 v{q+1}, v{q+3}")
            e.e(f"buffer_store_dwordx4 v[{q}:{q+3}], v2, s[{S_WS}:{S_WS+3}], s{20+mb} offen offset:{512*p}{SC}")
        else:
            e.e(f"buffer_store_dwordx2 v[{q}:{q+1}], v3, s[{S_WS}:{S_WS+3}], s{20+mb} offen{SC}")
        for k, l in enumerate(e.lines):
            a.lines.append(l)
            if rest and k % 4 == 3: a.e(rest.pop(0))
    assert not rest
    if EPRIO: a.e('s_setprio 0')
    stamp(a, 4, ST)
    LnoCP = a.newlabel("LnoCP"); Lcpd = a.newlabel("Lcpd")
    a.e("s_bitcmp1_b32 s2, 0")
    a.e(f"s_cbranch_scc1 {LnoCP}")
    x = Asm(); x.nlabel = 2000
    if CPMODE == 1: a.lines = a.lines[:-2]
    def sigh():
        x.e("s_waitcnt vmcnt(0)")
        lds_signal(x, 250, 1, lambda: flag_set(x, 250, S_FH))
    cp_body2(x, VA(2, 248), S_WAVE, SCR, SCL=SC, SC=SC, p_s=S_U)
    kd = next(i for i, l in enumerate(x.lines) if l.startswith(";@delay"))
    rest = x.lines[kd+1:]; x.lines = x.lines[:kd]; sigh(); x.lines += rest
    if CPMODE == 0:
        inline(a, x, CBar(SYNC + 40), 250)
        a.e(f"s_branch {Lcpd}")
    a.label(LnoCP)
    a.e("s_waitcnt vmcnt(0)")
    lds_signal(a, 250, 1, lambda: flag_set(a, 250, S_FH))
    a.label(Lcpd)
    map_g2(a)
    R = ConsRegs(c2, 8); T = R.end
    consumer_setup(a, c2, R, T, T+1)
    for i in range(c2.MB*c2.NB*4): a.e(f"v_mov_b32 v{R.acc+i}, 0")
    a.e("s_waitcnt vmcnt(0)")
    c2.stampf = lambda i: stamp(a, 5 + i, ST)
    if PD2:
        PFA, PFB = 238, 239
        srd(a, 8, P_W2, 7 << 20)
        a.e(f"""
        s_lshr_b32 s3, s2, 3
        s_lshl_b32 s3, s3, 2
        s_add_u32 s3, s3, s{S_WAVE}
        s_and_b32 s4, s2, 1
        s_lshl_b32 s4, s4, 6
        s_lshr_b32 s5, s3, 1
        s_add_u32 s4, s4, s5
        s_mul_i32 s4, s4, {112*1024}
        s_lshl_b32 s5, s{S_K0}, 5
        s_add_u32 s4, s4, s5
        s_and_b32 s5, s3, 1
        s_lshl_b32 s5, s5, 10
        s_add_u32 s4, s4, s5
        s_add_u32 s4, s4, {H_OFF}
        v_lshlrev_b32 v{PFB}, 7, v1
        v_add_u32 v{PFA}, s4, v{PFB}
        v_mov_b32 v241, 0x7fffff00
        v_cmp_gt_u32 vcc, 8, v1
        v_cndmask_b32 v{PFA}, v241, v{PFA}, vcc
        s_lshr_b32 s4, s3, 1
        s_add_u32 s4, s4, s{S_K0}
        s_lshl_b32 s4, s4, 11
        s_bfe_u32 s5, s2, 0x10001
        s_lshl_b32 s5, s5, 10
        s_add_u32 s4, s4, s5
        s_and_b32 s5, s3, 1
        s_lshl_b32 s5, s5, 9
        s_add_u32 s4, s4, s5
        v_add_u32 v{PFB}, s4, v{PFB}
        v_cmp_gt_u32 vcc, 4, v1
        v_cndmask_b32 v{PFB}, v241, v{PFB}, vcc
        s_mov_b32 s26, {2048*PD2}
        s_mov_b32 s27, {131072*PD2}
        """)
        p2l = [f"buffer_load_dword v241, v{PFA}, s[{S_WS}:{S_WS+3}], s26 offen", "s_add_u32 s26, s26, 2048",
               f"buffer_load_dword v241, v{PFB}, s[8:11], s27 offen", "s_add_u32 s27, s27, 131072"]
        consumer_loop(a, c2, R, pfl=p2l, pfafter=3)
    else:
        last2 = consumer_loop(a, c2, R, defer=OVL)
        if OVL:
            for l in last2[:8]: a.e(l)
    a.e(f"""
    s_and_b32 s4, s{S_WAVE}, 1
    s_lshl_b32 s4, s4, 2
    s_lshr_b32 s5, s{S_M0}, 4
    s_add_u32 s4, s4, s5
    s_lshl_b32 s4, s4, 5
    s_lshr_b32 s5, s{S_N0}, 5
    s_add_u32 s4, s4, s5
    s_and_b32 s5, s{S_WAVE}, 2
    s_add_u32 s4, s4, s5
    s_lshl_b32 s4, s4, 10
    s_lshr_b32 s5, s83, 3
    s_lshl_b32 s5, s5, 22
    s_add_u32 s4, s4, s5
    s_add_u32 s4, s4, {POFF}
    v_and_b32 v4, 15, v1
    v_lshlrev_b32 v4, 6, v4
    v_lshrrev_b32 v5, 4, v1
    v_and_b32 v2, 1, v5
    v_lshlrev_b32 v2, 5, v2
    v_lshrrev_b32 v5, 1, v5
    v_lshlrev_b32 v5, 4, v5
    v_add3_u32 v2, v2, v5, v4
    v_add_u32 v2, s4, v2
    """)
    pk_ = T + 8
    for mb in range(4): a.e(f"s_mov_b32 s{20+mb}, {mb*32*1024}")
    rest = []
    if OVL:
        rest = list(last2[8:])
    for idx, (mb, p) in enumerate([(mb, p) for p in range(0, c2.NB, 2) for mb in range(c2.MB)]):
        q = pk_ + 4*idx
        for i, nb in enumerate((p, p+1)):
            d = R.accreg(c2, mb, nb)
            if rest: a.e(rest.pop(0))
            a.e(f"v_cvt_pk_bf16_f32 v{q+2*i}, v{d}, v{d+1}")
            a.e(f"v_cvt_pk_bf16_f32 v{q+2*i+1}, v{d+2}, v{d+3}")
        a.e(f"v_permlane16_swap_b32 v{q}, v{q+2}")
        a.e(f"v_permlane16_swap_b32 v{q+1}, v{q+3}")
        a.e(f"buffer_store_dwordx4 v[{q}:{q+3}], v2, s[{S_WS}:{S_WS+3}], s{20+mb} offen offset:{512*p}{SC}")
    assert not rest
    a.e("s_waitcnt vmcnt(0)")
    lds_signal(a, T, 2, lambda: flag_set(a, T, S_FP), base=SYNC2)
    stamp(a, 7, ST)
    stamp_flush(a, P_WS, ST)
    a.e("s_endpgm")
    a.label(Lload)
    srd(a, S_SRDA, P_X, 2048*1024*2)
    srd(a, S_SRDB, P_W1, 1024*3584*2)
    vA, vB = loader_setup(a, c1, 2)
    ND = c1.NDMA
    if S0EARLY:
        a.e(f"s_mov_b32 s{S_SOFFA}, 128"); a.e(f"s_mov_b32 s{S_SOFFB}, {64*7168}"); a.e(f"s_mov_b32 s{S_SLOT}, {c1.SLOT}")
        Lb = a.newlabel("Lb")
        if not WPA: a.e("s_bitcmp1_b32 s2, 0"); a.e(f"s_cbranch_scc0 {Lb}")
        a.e("s_waitcnt vmcnt(0)")
        a.label(Lb)
        loader_issue(a, c1, vA, vB)
    else:
        a.e("s_waitcnt vmcnt(0)")
        loader_issue(a, c1, vA, vB); loader_issue(a, c1, vA, vB)
    if W2MODE == 6:
        a.e(f"s_lshl_b32 s24, s2, 2"); a.e(f"s_add_u32 s24, s24, s{S_WAVE}"); a.e(f"s_mul_i32 s24, s24, 7168")
        a.e(f"s_add_u32 s24, s{P_W2}, s24"); a.e(f"s_addc_u32 s25, s{P_W2+1}, 0")
        for i in range(56 - 13*SPN): a.e(f"s_load_dwordx2 s[26:27], s[24:25], {128*(13*SPN + i) + 60}")
    elif W2MODE >= 4:
        a.e(f"""
        s_lshr_b32 s24, s2, 1
        s_lshl_b32 s24, s24, 2
        s_add_u32 s24, s24, s{S_WAVE}
        s_mul_i32 s24, s24, 896
        s_bitcmp1_b32 s2, 0
        s_cselect_b32 s25, 0, {2*458752 if W2MODE == 5 else 2*458752}
        s_add_u32 s24, s24, s25
        s_bitcmp1_b32 s2, 0
        s_cselect_b32 s26, s{P_W2}, s{P_W1 if W2MODE == 5 else P_W2}
        s_cselect_b32 s25, s{P_W2+1}, s{P_W1+1 if W2MODE == 5 else P_W2+1}
        s_add_u32 s24, s24, s26
        s_addc_u32 s25, s25, 0
        """)
        for i in range(7): a.e(f"s_load_dwordx2 s[26:27], s[24:25], {128*i + 60}")
        a.e("s_add_u32 s24, s24, 458752"); a.e("s_addc_u32 s25, s25, 0")
    if CPMODE == 1:
        a.e(f"""
        s_and_b32 s{S_U}, s2, 7
        s_lshl_b32 s{S_U}, s{S_U}, 1
        s_bfe_u32 s3, s2, 0x10003
        s_add_u32 s{S_U}, s{S_U}, s3
        s_and_b32 s3, s2, 0xf0
        s_add_u32 s{S_U}, s{S_U}, s3
        """)
    xcp = Asm(); xcp.nlabel = 3000
    cp_body2(xcp, VA(16, 256), S_WAVE, 3*c2.SLOT, SCL=SC, SC=SC, p_s=S_U, pre_loads=(lambda: xcp.mark("mid")) if PRECP else None)
    if PRECP:
        km = xcp.lines.index(";@mid")
        a.lines += xcp.lines[:km]; xcp.lines = xcp.lines[km+1:]
    a.e(f"s_waitcnt vmcnt({ND})")
    a.e("s_barrier")
    def wave0(emit):
        L = a.newlabel("Lw0")
        a.e(f"s_cmp_lg_u32 s{S_WAVE}, 0"); a.e(f"s_cbranch_scc1 {L}")
        a.e("s_mov_b64 exec, 1"); emit(); a.e("s_mov_b64 exec, -1")
        a.label(L)
    wave0(lambda: dbg_add(a, 13, 0))
    loader_issue(a, c1, vA, vB)
    a.e(f"s_mov_b32 s{S_CNT}, {c1.NK - 3}")
    def spf():
        if W2MODE == 6:
            for i in range(SPN): a.e(f"s_load_dwordx2 s[26:27], s[24:25], {128*i + 60}")
            a.e(f"s_add_u32 s24, s24, {128*SPN}"); a.e("s_addc_u32 s25, s25, 0")
            return
        for i in range(7): a.e(f"s_load_dwordx2 s[26:27], s[24:25], {128*i + 60}")
        a.e("s_add_u32 s24, s24, 458752"); a.e("s_addc_u32 s25, s25, 0")
    L = a.newlabel("Lld"); a.label(L)
    a.e(f"s_waitcnt vmcnt({ND})")
    a.e("s_barrier")
    loader_issue(a, c1, vA, vB)
    if W2MODE >= 4: spf()
    a.e(f"s_sub_u32 s{S_CNT}, s{S_CNT}, 1"); a.e(f"s_cmp_lg_u32 s{S_CNT}, 0"); a.e(f"s_cbranch_scc1 {L}")
    Lx = a.newlabel("Lxp")
    a.e(f"s_waitcnt vmcnt({ND})"); a.e("s_barrier")
    if W2MODE in (4, 5):
        a.e("s_bitcmp1_b32 s2, 0"); a.e(f"s_cbranch_scc0 {Lx}")
        spf(); spf()
        a.label(Lx)
    a.e(f"s_waitcnt vmcnt(0) lgkmcnt(0)"); a.e("s_barrier")
    map_g2(a)
    srd(a, S_SRDB, P_W2, 1024*3584*2)
    a.e(f"s_mov_b32 s{S_SRDA}, s{S_WS}"); a.e(f"s_mov_b32 s{S_SRDA+1}, s{S_WS+1}")
    a.e(f"s_mov_b32 s{S_SRDA+2}, {H_OFF + 2048*3584*2}")
    vA2, vB2 = loader_setup(a, c2, 2)
    a.e(f"s_and_b32 s{S_CNT}, s83, 7")
    a.e(f"s_mul_i32 s{S_CNT}, s{S_CNT}, 7")
    a.e(f"s_add_u32 s{S_CNT}, s{S_CNT}, 1")
    a.e(f"s_lshr_b32 s{T3}, s{S_CNT}, 1")
    Lp = a.newlabel("Lnp")
    a.e(f"s_cmp_lg_u32 s{S_WAVE}, 0"); a.e(f"s_cbranch_scc1 {Lp}")
    poll_dbg(a, 13, 0, 256, sa=T0, sb=T1)
    a.label(Lp)
    a.e("s_barrier")
    stamp(a, 3, ST)
    def kidx(s, dst, sh):
        if s < 3: return [f"s_add_u32 s{T0}, s{T3}, {s}", f"s_lshl_b32 s{dst}, s{T0}, {sh}"]
        return [f"s_cmp_gt_u32 s{T3}, {s-3}", f"s_cselect_b32 s{T0}, {s-3}, {s}", f"s_lshl_b32 s{dst}, s{T0}, {sh}"]
    gA = lambda s: issue(a, c2, vA2, S_SRDA, S_SOFFA, S_TMP+4, s % NS2, kidx(s, S_SOFFA, 11))
    gB = lambda s: issue(a, c2, vB2, S_SRDB, S_SOFFB, S_TMP+5, s % NS2, kidx(s, S_SOFFB, 17))
    for s in range(3): gB(s)
    LnoCP2 = a.newlabel("LnoCP")
    if CPMODE == 0:
        a.e("s_bitcmp1_b32 s2, 0")
        a.e(f"s_cbranch_scc1 {LnoCP2}")
    if EARLYA:
        ks_ = max(i for i, l in enumerate(xcp.lines) if l.startswith(";@sync"))
        p1 = Asm(); p1.lines = xcp.lines[:ks_+1]; p2 = Asm(); p2.lines = xcp.lines[ks_+1:]
        inline(a, p1, CBar(SYNC + 44), 13)
        Lne = a.newlabel("Lne"); Lea = a.newlabel("Lea"); Lw = a.newlabel("Lw")
        a.e(f"v_mov_b32 v13, {SYNC + 4}")
        a.e(f"ds_read_b32 v14, v13")
        a.e("s_waitcnt lgkmcnt(0)")
        a.e(f"v_readfirstlane_b32 s23, v14")
        a.e(f"s_cmp_ge_u32 s23, 4")
        a.e(f"s_cbranch_scc0 {Lne}")
        for s_ in range(3): gA(s_)
        a.label(Lne)
        inline(a, p2, None, 13)
        stamp(a, 2, ST)
        a.e(f"v_and_b32 v12, 7, v1"); a.e(f"v_lshlrev_b32 v12, 2, v12")
        a.e(f"s_cmp_ge_u32 s23, 4")
        a.e(f"s_cbranch_scc1 {Lea}")
        poll_lds(a, 13, 1, 4, T0)
        for s_ in range(3): gA(s_)
        a.e(f"buffer_load_dword v14, v12, s[{S_WS}:{S_WS+3}], s82 offen sc1")
        a.e(f"s_waitcnt vmcnt({2*c2.NA + 1})")
        a.e(f"s_branch {Lw}")
        a.label(Lea)
        a.e(f"buffer_load_dword v14, v12, s[{S_WS}:{S_WS+3}], s82 offen sc1")
        a.e(f"s_waitcnt vmcnt({2*c2.NA + 5})")
        a.label(Lw)
        stamp(a, 4, ST)
    else:
        inline(a, xcp, CBar(SYNC + 44), 13)
        CBar(SYNC + 48)(a, 13)
        a.label(LnoCP2)
        stamp(a, 2, ST)
        gB(3)
        poll_lds(a, 13, 1, 4, T0)
        stamp(a, 4, ST)
        for s in range(3): gA(s)
        a.e(f"v_and_b32 v13, 7, v1"); a.e(f"v_lshlrev_b32 v13, 2, v13")
        a.e(f"buffer_load_dword v14, v13, s[{S_WS}:{S_WS+3}], s82 offen sc1")
        a.e(f"s_waitcnt vmcnt({2*c2.NA + 1})")
    a.e("s_barrier")
    a.e("s_waitcnt vmcnt(0)")
    LB = a.newlabel("LslowH"); LJ = a.newlabel("LjoinH")
    a.e(f"v_cmp_ne_u32 vcc, 1, v14")
    if EARLYA: gB(3)
    a.e(f"s_cbranch_vccnz {LB}")
    gA(3)
    for s_ in range(4, NS2): gB(s_); gA(s_)
    for t in range(2):
        a.e("s_barrier"); gB(t + NS2); gA(t + NS2)
    a.e(f"s_branch {LJ}")
    a.label(LB)
    for s_ in range(4, NS2): gB(s_)
    for t in range(2):
        a.e("s_barrier"); gB(t + NS2)
    poll_flags(a, 13, 82, 8, sa=T0)
    for s_ in range(3, NS2 + 2): gA(s_)
    a.e("s_waitcnt vmcnt(0)")
    a.label(LJ)
    stamp(a, 5, ST)
    La = a.newlabel("Lna")
    if CPMODE == 0: a.e("s_bitcmp1_b32 s2, 0"); a.e(f"s_cbranch_scc1 {La}")
    wave0(lambda: dbg_add(a, 13, 128))
    a.label(La)
    ND2 = c2.NDMA
    x = Asm(); x.nlabel = 4000
    def poll_p(vt):
        Lq = x.newlabel("Lq")
        stamp(x, 6, ST)
        x.e(f"v_mov_b32 v{vt}, {SYNC2 + 8}")
        x.label(Lq)
        x.e("s_sleep 1")
        x.e(f"ds_read_b32 v{vt+1}, v{vt}")
        x.e("s_waitcnt lgkmcnt(0)")
        x.e(f"v_readfirstlane_b32 s7, v{vt+1}")
        x.e(f"s_cmp_ge_u32 s7, 4")
        x.e(f"s_cbranch_scc0 {Lq}")
        stamp(x, 1, ST and DBG == 1)
        x.e(f"s_lshr_b32 s5, s2, 4")
        x.e(f"s_lshl_b32 s5, s5, 7")
        x.e(f"s_add_u32 s5, s5, {FLAG_OFF + 8192}")
        poll_flags(x, vt, 5, 16)
        stamp(x, 2, ST and DBG == 1)
    fin_body3(x, VA(16, 256), S_WAVE, SCR2, 2, SC, SC, poll_p, p_off=POFF, pre_loads=lambda: x.mark("mid"))
    k = x.lines.index(";@mid")
    consts = [l for l in x.lines[:k] if not l.startswith(";@")]
    per = -(-len(consts) // 6)
    for t in range(2, c2.NK):
        rem = c2.NK - 1 - (t + 1)
        a.e(f"s_waitcnt vmcnt({ND2 * min(NS2 - 2, max(0, rem)) + (7 if t > c2.NK - 4 else 0)})")
        if t == c2.NK - 4:
            Lp = a.newlabel("Lnp")
            a.e(f"s_cmp_lg_u32 s{S_WAVE}, 0"); a.e(f"s_cbranch_scc1 {Lp}")
            poll_dbg(a, 13, 128, 128 if CPMODE == 0 else 256)
            a.label(Lp)
        a.e("s_barrier")
        if t + NS2 < c2.NK: gB(t + NS2); gA(t + NS2)
        if NS2 == 5 and t == 23:
            a.e(f"v_and_b32 v13, 15, v1"); a.e(f"v_lshlrev_b32 v13, 2, v13"); a.e(f"v_add_u32 v13, {SYNC2}, v13")
            a.e("v_mov_b32 v14, 0"); a.e("ds_write_b32 v13, v14"); a.e("s_waitcnt lgkmcnt(0)")
        if 4 <= t < 10: a.lines += consts[(t-4)*per:(t-3)*per]
        if t == c2.NK - 4:
            k2 = next(i for i in range(k, len(x.lines)) if x.lines[i].startswith(";@delay"))
            a.lines += [l for l in x.lines[k+1:k2] if not l.startswith(";@")]
    y = Asm(); y.lines = x.lines[k2+1:]
    if DBG == 1:
        kk = max(i for i, l in enumerate(y.lines) if "s_waitcnt vmcnt(6)" in l)
        z = Asm(); stamp(z, 3, True); y.lines[kk+1:kk+1] = z.lines
    inline(a, y, CBar(SYNC2 + 52), 13)
    if DBG == 1:
        stamp(a, 4, True); a.e("s_waitcnt vmcnt(0)")
    stamp(a, 7, ST)
    stamp_flush(a, P_WS, ST)
    a.label(Lend)
    a.e("s_endpgm")
    a.end_kernel(name, 256)
    a.launches.append(f"; @launch grid=(256,1,1) block=(512,1,1) lds={LDS_TOTAL if NS2 == 4 else 163840}")
    return a

if __name__ == "__main__":
    open("s6.s", "w").write(build(NAME).text(hdr))
    open("s6_st.s", "w").write(build(NAME, ST=True).text(hdr))
    open("s6_a_st.s", "w").write(build(NAME, ST=True, OVL=False).text(hdr))
```

```python
from asmlib import Asm

def bswz(RC, k):
    if RC % 16 == 12 or RC % 16 == 4:
        return ((k >> 3) & 1) << 1
    if RC % 16 == 0:
        return ((k & 3) << 1) | (((k >> 3) & 1) << 3)
    if RC % 16 == 8:
        return (((k >> 1) & 1) << 1) | (((k >> 3) & 1) << 2)
    raise ValueError(RC)

def check_b_conflicts(RC):
    for nb in range(RC // 2):
        for h in range(2):
            for half in range(2):
                banks = set()
                for l in range(32 * half, 32 * half + 32):
                    g, r, c = l >> 4, (l >> 2) & 3, l & 3
                    k = 8 * g + r + 4 * h
                    nc = 2 * nb + (c >> 1)
                    addr = k * RC * 16 + (nc ^ bswz(RC, k)) * 16 + (c & 1) * 8
                    for d in range(2):
                        b = (addr // 4 + d) % 64
                        assert b not in banks, (RC, nb, h, half)
                        banks.add(b)

class GemmCfg:
    def __init__(self, TM, TN, K, NSLOT, pitchA, pitchB):
        self.TM, self.TN, self.K, self.NSLOT = TM, TN, K, NSLOT
        self.pitchA, self.pitchB = pitchA, pitchB
        self.MB = TM // 32
        self.NB = TN // 32
        self.NK = K // 64
        self.RC = TN // 8
        self.A_BYTES = TM * 128
        self.B_BYTES = 64 * TN * 2
        self.SLOT = self.A_BYTES + self.B_BYTES
        self.NA = self.A_BYTES // 4096
        self.NBD = self.B_BYTES // 4096
        assert self.A_BYTES % 4096 == 0 and self.B_BYTES % 4096 == 0
        self.NDMA = self.NA + self.NBD
        check_b_conflicts(self.RC)
        self.flags = set()
        self.a_blocked = False
        self.a_off = 0
        self.stampf = lambda i: None

S_SRDA, S_SRDB = 8, 12
S_SOFFA, S_SOFFB = 16, 17
S_SLOT = 18
S_CNT = 19
S_TMP = 20
S_WAVE = 28
S_M0, S_N0 = 29, 30
S_K0 = 31

def loader_setup(a, c, vbase):
    vA = [vbase + j for j in range(c.NA)]
    vB = [vbase + c.NA + j for j in range(c.NBD)]
    t0, t1, t2 = vbase + c.NDMA, vbase + c.NDMA + 1, vbase + c.NDMA + 2
    if c.a_blocked:
        a.e(f"s_mul_i32 s{S_TMP}, s{S_WAVE}, {c.NA * 8}")
        a.e(f"s_add_u32 s{S_TMP}, s{S_TMP}, s{S_M0}")
        a.e(f"s_lshr_b32 s{S_TMP}, s{S_TMP}, 4")
        a.e(f"s_mul_i32 s{S_TMP}, s{S_TMP}, {c.pitchA}")
        a.e(f"s_lshl_b32 s{S_TMP+1}, s{S_K0}, 5")
        a.e(f"s_add_u32 s{S_TMP}, s{S_TMP}, s{S_TMP+1}")
        a.e(f"s_add_u32 s{S_TMP}, s{S_TMP}, {c.a_off}")
        a.e(f"v_lshrrev_b32 v{t0}, 3, v1")
        a.e(f"v_lshlrev_b32 v{t1}, 6, v{t0}")
        a.e(f"v_add_u32 v{t1}, s{S_TMP}, v{t1}")
        for j in range(c.NA):
            a.e(f"v_lshrrev_b32 v{t2}, 4, v1")
            if j & 1:
                a.e(f"v_add_u32 v{t2}, 4, v{t2}")
            a.e(f"v_xor_b32 v{t2}, v{t2}, v1")
            a.e(f"v_and_b32 v{vA[j]}, 4, v{t2}")
            a.e(f"v_lshlrev_b32 v{vA[j]}, 8, v{vA[j]}")
            a.e(f"v_and_b32 v{t2}, 3, v{t2}")
            a.e(f"v_lshlrev_b32 v{t2}, 4, v{t2}")
            a.e(f"v_add3_u32 v{vA[j]}, v{vA[j]}, v{t1}, v{t2}")
            off = (j >> 1) * c.pitchA + (j & 1) * 512 - (j % 4) * 1024
            if off:
                a.e(f"v_add_u32 v{vA[j]}, {off & 0xffffffff}, v{vA[j]}")
    else:
        a.e(f"s_mul_i32 s{S_TMP}, s{S_WAVE}, {c.NA * 8}")
        a.e(f"s_add_u32 s{S_TMP}, s{S_TMP}, s{S_M0}")
        a.e(f"s_mul_i32 s{S_TMP}, s{S_TMP}, {c.pitchA}")
        a.e(f"s_lshl_b32 s{S_TMP+1}, s{S_K0}, 1")
        a.e(f"s_add_u32 s{S_TMP}, s{S_TMP}, s{S_TMP+1}")
        a.e(f"s_mov_b32 s{S_TMP+2}, {c.pitchA}")
        a.e(f"v_lshrrev_b32 v{t0}, 3, v1")
        a.e(f"v_mul_lo_u32 v{t1}, v{t0}, s{S_TMP+2}")
        a.e(f"v_add_u32 v{t1}, s{S_TMP}, v{t1}")
        for j in range(c.NA):
            a.e(f"v_lshrrev_b32 v{t2}, 4, v1")
            if j & 1:
                a.e(f"v_add_u32 v{t2}, 4, v{t2}")
            a.e(f"v_xor_b32 v{t2}, v{t2}, v1")
            a.e(f"v_and_b32 v{t2}, 7, v{t2}")
            a.e(f"v_lshlrev_b32 v{t2}, 4, v{t2}")
            a.e(f"v_add_u32 v{vA[j]}, v{t1}, v{t2}")
            off = j * 8 * c.pitchA - (j % 4) * 1024
            if off:
                a.e(f"v_add_u32 v{vA[j]}, {off}, v{vA[j]}")
    a.e(f"s_lshl_b32 s{S_TMP}, s{S_WAVE}, 4")
    a.e(f"s_add_u32 s{S_TMP}, s{S_TMP}, s{S_K0}")
    a.e(f"s_mul_i32 s{S_TMP}, s{S_TMP}, {c.pitchB}")
    a.e(f"s_lshl_b32 s{S_TMP+1}, s{S_N0}, 1")
    a.e(f"s_add_u32 s{S_TMP}, s{S_TMP}, s{S_TMP+1}")
    a.e(f"s_mov_b32 s{S_TMP+2}, {c.pitchB}")
    magic = -(-65536 // c.RC)
    for j in range(c.NBD):
        a.e(f"v_add_u32 v{t0}, {64*j}, v1")
        a.e(f"v_mul_u32_u24 v{t1}, {magic}, v{t0}")
        a.e(f"v_lshrrev_b32 v{t1}, 16, v{t1}")
        a.e(f"v_mul_u32_u24 v{t2}, {c.RC}, v{t1}")
        a.e(f"v_sub_u32 v{t0}, v{t0}, v{t2}")
        if c.RC % 16 in (4, 12):
            a.e(f"v_lshrrev_b32 v{t2}, 2, v{t1}")
            a.e(f"v_and_b32 v{t2}, 2, v{t2}")
        elif c.RC % 16 == 0:
            a.e(f"v_and_b32 v{t2}, 3, v{t1}")
            a.e(f"v_lshlrev_b32 v{t2}, 1, v{t2}")
            a.e(f"v_and_b32 v{vB[j]}, 8, v{t1}")
            a.e(f"v_or_b32 v{t2}, v{t2}, v{vB[j]}")
        else:
            a.e(f"v_and_b32 v{t2}, 2, v{t1}")
            a.e(f"v_lshrrev_b32 v{vB[j]}, 1, v{t1}")
            a.e(f"v_and_b32 v{vB[j]}, 4, v{vB[j]}")
            a.e(f"v_or_b32 v{t2}, v{t2}, v{vB[j]}")
        a.e(f"v_xor_b32 v{t0}, v{t0}, v{t2}")
        a.e(f"v_lshlrev_b32 v{t0}, 4, v{t0}")
        a.e(f"v_mul_lo_u32 v{t1}, v{t1}, s{S_TMP+2}")
        a.e(f"v_add3_u32 v{vB[j]}, v{t0}, v{t1}, s{S_TMP}")
        if j % 4:
            a.e(f"v_subrev_u32 v{vB[j]}, {(j % 4) * 1024}, v{vB[j]}")
    a.e(f"s_mul_i32 s{S_TMP+4}, s{S_WAVE}, {c.NA * 1024}")
    a.e(f"s_mul_i32 s{S_TMP+5}, s{S_WAVE}, {c.NBD * 1024}")
    a.e(f"s_add_u32 s{S_TMP+5}, s{S_TMP+5}, {c.A_BYTES}")
    a.e(f"s_mov_b32 s{S_SOFFA}, 0")
    a.e(f"s_mov_b32 s{S_SOFFB}, 0")
    a.e(f"s_mov_b32 s{S_SLOT}, 0")
    return vA, vB

def loader_issue(a, c, vA, vB):
    nodma = "nodma" in c.flags
    for grp, (vs, srd, soff, sreg) in enumerate(((vA, S_SRDA, S_SOFFA, S_TMP+4), (vB, S_SRDB, S_SOFFB, S_TMP+5))):
        for j, v in enumerate(vs):
            if j % 4 == 0:
                if j == 0:
                    a.e(f"s_add_u32 m0, s{S_SLOT}, s{sreg}")
                else:
                    a.e(f"s_add_u32 m0, m0, 4096")
                a.e("s_nop 0")
            if not nodma:
                a.e(f"buffer_load_dwordx4 v{v}, s[{srd}:{srd+3}], s{soff} offen offset:{(j%4)*1024} lds")
    a.e(f"s_add_u32 s{S_SOFFA}, s{S_SOFFA}, {2048 if c.a_blocked else 128}")
    a.e(f"s_add_u32 s{S_SOFFB}, s{S_SOFFB}, {64 * c.pitchB}")
    a.e(f"s_add_u32 s{S_SLOT}, s{S_SLOT}, {c.SLOT}")
    a.e(f"s_cmp_eq_u32 s{S_SLOT}, {c.SLOT * c.NSLOT}")
    a.e(f"s_cselect_b32 s{S_SLOT}, 0, s{S_SLOT}")

def loader_main(a, c, vbase=4):
    vA, vB = loader_setup(a, c, vbase)
    NS, NK, ND = c.NSLOT, c.NK, c.NDMA
    assert NK > NS
    c.stampf(1)
    for s in range(NS):
        loader_issue(a, c, vA, vB)
    c.stampf(2)
    a.e(f"s_waitcnt vmcnt({min(63, ND * (NS - 1))})")
    a.e("s_barrier")
    c.stampf(3)
    nloop = NK - NS
    a.e(f"s_mov_b32 s{S_CNT}, {nloop}")
    L = a.newlabel("Lld")
    a.label(L)
    a.e(f"s_waitcnt vmcnt({min(63, ND * (NS - 2))})")
    a.e("s_barrier")
    if "dma3" in c.flags: c.flags.add("nodma")
    loader_issue(a, c, vA, vB)
    a.e(f"s_sub_u32 s{S_CNT}, s{S_CNT}, 1")
    a.e(f"s_cmp_lg_u32 s{S_CNT}, 0")
    a.e(f"s_cbranch_scc1 {L}")
    for i in range(NS - 1):
        a.e(f"s_waitcnt vmcnt({min(63, ND * (NS - 2 - i))})")
        a.e("s_barrier")

class ConsRegs:
    def __init__(self, c, base):
        self.acc = base
        n = base + c.MB * c.NB * 4
        self.fa = [n, n + c.MB * 4]; n += 2 * c.MB * 4
        self.fb = [n, n + c.NB * 4]; n += 2 * c.NB * 4
        self.aA = [n, n + 1]; n += 2
        self.nBaddr = {12: 2, 4: 2, 0: min(c.NB, 8), 8: min(c.NB, 4)}[c.RC % 16]
        self.odd7 = (c.NB == 7)
        if self.odd7: self.nBaddr = 3
        self.aB = [n + i for i in range(self.nBaddr)]; n += self.nBaddr
        self.end = (n + 3) // 4 * 4
    def accreg(self, c, mb, nb):
        return self.acc + (mb * c.NB + nb) * 4

def consumer_setup(a, c, R, t0, t1):
    a.e(f"s_and_b32 s{S_TMP}, s{S_WAVE}, 1")
    a.e(f"s_mul_i32 s{S_TMP}, s{S_TMP}, {c.TM // 2 * 128}")
    a.e(f"v_and_b32 v{t0}, 15, v1")
    a.e(f"v_lshlrev_b32 v{R.aA[0]}, 7, v{t0}")
    a.e(f"v_lshrrev_b32 v{t0}, 1, v{t0}")
    a.e(f"v_lshrrev_b32 v{t1}, 4, v1")
    a.e(f"v_xor_b32 v{t0}, v{t0}, v{t1}")
    a.e(f"v_lshlrev_b32 v{t0}, 4, v{t0}")
    a.e(f"v_add3_u32 v{R.aA[0]}, v{R.aA[0]}, v{t0}, s{S_TMP}")
    a.e(f"v_xor_b32 v{R.aA[1]}, 64, v{R.aA[0]}")
    a.e(f"s_lshr_b32 s{S_TMP}, s{S_WAVE}, 1")
    a.e(f"s_mul_i32 s{S_TMP+1}, s{S_TMP}, {c.NB}")
    a.e(f"v_lshrrev_b32 v{t0}, 4, v1")
    a.e(f"v_lshlrev_b32 v{t0}, 3, v{t0}")
    a.e(f"v_bfe_u32 v{t1}, v1, 2, 2")
    a.e(f"v_add_u32 v{t0}, v{t0}, v{t1}")
    base = R.aB[-1]
    for i in range(R.nBaddr):
        d = R.aB[i]
        if c.RC % 16 in (4, 12):
            a.e(f"v_lshrrev_b32 v{t1}, 2, v{t0}")
            a.e(f"v_and_b32 v{t1}, 2, v{t1}")
        elif c.RC % 16 == 0:
            a.e(f"v_and_b32 v{t1}, 3, v{t0}")
            a.e(f"v_lshlrev_b32 v{t1}, 1, v{t1}")
            a.e(f"v_and_b32 v{d}, 8, v{t0}")
            a.e(f"v_or_b32 v{t1}, v{t1}, v{d}")
        else:
            a.e(f"v_and_b32 v{t1}, 2, v{t0}")
            a.e(f"v_lshrrev_b32 v{d}, 1, v{t0}")
            a.e(f"v_and_b32 v{d}, 4, v{d}")
            a.e(f"v_or_b32 v{t1}, v{t1}, v{d}")
        if R.odd7:
            if i < 2:
                a.e(f"s_lshl_b32 s{S_TMP+2}, s{S_TMP}, 3")
                a.e(f"s_add_u32 s{S_TMP+2}, s{S_TMP+2}, {i}")
            else:
                a.e(f"s_add_u32 s{S_TMP+2}, s{S_TMP}, 6")
        else:
            a.e(f"s_add_u32 s{S_TMP+2}, s{S_TMP+1}, {i}")
        a.e(f"s_lshl_b32 s{S_TMP+2}, s{S_TMP+2}, 1")
        a.e(f"v_xor_b32 v{t1}, s{S_TMP+2}, v{t1}")
        a.e(f"v_bfe_u32 v{d}, v1, 1, 1")
        a.e(f"v_or_b32 v{t1}, v{t1}, v{d}")
        a.e(f"v_lshlrev_b32 v{t1}, 4, v{t1}")
        a.e(f"v_mul_u32_u24 v{d}, {c.RC * 16}, v{t0}")
        a.e(f"v_add_u32 v{d}, v{d}, v{t1}")
        a.e(f"v_and_b32 v{t1}, 1, v1")
        a.e(f"v_lshlrev_b32 v{t1}, 3, v{t1}")
        a.e(f"v_add_u32 v{d}, v{d}, v{t1}")
        a.e(f"v_add_u32 v{d}, {c.A_BYTES}, v{d}")
    a.e(f"s_mov_b32 s{S_SLOT}, 0")

def frag_reads(c, R, ks, dst):
    out = []
    rb = []
    for i in range(c.NB):
        ai = i % R.nBaddr
        off = (i - ai) * 32 + ks * 32 * c.RC * 16
        if R.odd7:
            ai = 2 if i == 6 else i % 2
            off = (0 if i == 6 else (i - ai) * 32) + ks * 32 * c.RC * 16
        f = R.fb[dst] + i * 4
        rb.append([f"ds_read_b64_tr_b16 v[{f}:{f+1}], v{R.aB[ai]} offset:{off}",
                   f"ds_read_b64_tr_b16 v[{f+2}:{f+3}], v{R.aB[ai]} offset:{off + 4 * c.RC * 16}"])
    ra = []
    for m in range(c.MB):
        f = R.fa[dst] + m * 4
        ra.append(f"ds_read_b128 v[{f}:{f+3}], v{R.aA[ks]} offset:{m * 2048}")
    if getattr(c, "mbmajor", False):
        out += [ra[0]]
        for x in rb: out += x
        out += ra[1:]
        return out
    out += rb[0] + ra
    for x in rb[1:]:
        out += x
    return out

def mfmas(c, R, src, last=False):
    out = []
    order = [(nb, mb) for nb in range(c.NB) for mb in range(c.MB)]
    if getattr(c, "mbmajor", False) and not last: order = [(nb, mb) for mb in range(c.MB) for nb in range(c.NB)]
    if getattr(c, "snake", False):
        order = [(nb, (mb if nb % 2 == 0 else c.MB - 1 - mb)) for nb in range(c.NB) for mb in range(c.MB)]
    for nb, mb in order:
        if True:
            d = R.accreg(c, mb, nb)
            fa = R.fa[src] + mb * 4; fb = R.fb[src] + nb * 4
            out.append(f"v_mfma_f32_16x16x32_bf16 v[{d}:{d+3}], v[{fb}:{fb+3}], v[{fa}:{fa+3}], v[{d}:{d+3}]")
    return out

def interleave(a, c, mf, others, tail=()):
    if "nomfma" in c.flags: mf = ["s_nop 0"] * 0
    if "noread" in c.flags: others = [o for o in others if not o.startswith("ds_read")]
    tail = dict(tail)
    oi = 0
    for i, m in enumerate(mf):
        a.e(m)
        if oi < len(others):
            a.e(others[oi]); oi += 1
            k = 1
            while k < getattr(c, "rpg", 1) and oi < len(others) and others[oi].startswith("ds_read"):
                a.e(others[oi]); oi += 1; k += 1
        if i in tail:
            while oi < len(others):
                a.e(others[oi]); oi += 1
            for t in tail.pop(i): a.e(t)
    while oi < len(others):
        a.e(others[oi]); oi += 1
    for k in sorted(tail):
        for t in tail[k]: a.e(t)

def consumer_main(a, c, R):
    nm = c.MB * c.NB
    adv = [f"s_add_u32 s{S_SLOT}, s{S_SLOT}, {c.SLOT}",
           f"s_cmp_eq_u32 s{S_SLOT}, {c.SLOT * c.NSLOT}",
           f"s_cselect_b32 s{S_TMP}, {-c.SLOT * (c.NSLOT - 1) & 0xffffffff}, {c.SLOT}" ,
           f"s_cselect_b32 s{S_SLOT}, 0, s{S_SLOT}"]
    adv[2] = f"s_cselect_b32 s{S_TMP}, s{S_TMP+6}, s{S_TMP+7}"
    a.e(f"s_mov_b32 s{S_TMP+6}, {-c.SLOT * (c.NSLOT - 1) & 0xffffffff}")
    a.e(f"s_mov_b32 s{S_TMP+7}, {c.SLOT}")
    upd = [f"v_add_u32 v{r}, s{S_TMP}, v{r}" for r in R.aA + R.aB]
    a.e("s_barrier")
    c.stampf(2)
    for r in frag_reads(c, R, 0, 0):
        if "noread" not in c.flags: a.e(r)
    if "read1" in c.flags:
        for r in frag_reads(c, R, 1, 1): a.e(r)
        c.flags.add("noread")
    a.e(f"s_mov_b32 s{S_CNT}, {c.NK - 1}")
    a.e("s_waitcnt lgkmcnt(0)")
    L = a.newlabel("Lcons")
    a.lines.append(".p2align 6")
    a.label(L)
    barpos = nm - 3
    interleave(a, c, mfmas(c, R, 0), frag_reads(c, R, 1, 1) + adv + upd,
               tail=[(barpos, ["s_waitcnt lgkmcnt(0)", "s_barrier"])])
    interleave(a, c, mfmas(c, R, 1), frag_reads(c, R, 0, 0) + [f"s_sub_u32 s{S_CNT}, s{S_CNT}, 1", f"s_cmp_lg_u32 s{S_CNT}, 0"],
               tail=[(nm - 1, ["s_waitcnt lgkmcnt(0)"])])
    a.e(f"s_cbranch_scc1 {L}")
    c.stampf(3)
    interleave(a, c, mfmas(c, R, 0), frag_reads(c, R, 1, 1), tail=[(nm - 1, ["s_waitcnt lgkmcnt(0)"])])
    interleave(a, c, mfmas(c, R, 1), [])
```

```python
import sys, math
from asmlib import *
import gemmgen
gemmgen.S_TMP = 70
from gemmgen import *
from fft2 import *
from gen_g1 import gelu_pairs
from gen_s5 import (S_TMP, FLAG_OFF, SCR, SYNC, LDS_TOTAL, T0, T1, T2, T3, S_FH, S_FP, S_KI, lds_signal, dbg_add, flag_set, poll_dbg,
                    poll_flags, poll_lds, CBar, consumer_loop, map_g1, map_g2, NAME, hdr)
S_U = 68

def inline(a, x, cb, vt):
    for l in x.lines:
        s = l.strip()
        if s.startswith(";@sync"): cb(a, vt)
        elif s.startswith(";@condwait"): a.e("s_waitcnt vmcnt(0)")
        elif s.startswith(";@"): pass
        else: a.lines.append(l)

class CBarS:
    def __init__(self, sreg): self.n = 0; self.s = sreg
    def __call__(self, a, vt):
        self.n += 1
        L = a.newlabel("Lcb")
        a.e("s_waitcnt lgkmcnt(0)")
        a.e(f"v_mov_b32 v{vt}, s{self.s}")
        a.e(f"v_mov_b32 v{vt+1}, 1")
        a.e("s_mov_b64 exec, 1")
        a.e(f"ds_add_u32 v{vt}, v{vt+1}")
        a.label(L)
        a.e(f"ds_read_b32 v{vt+1}, v{vt}")
        a.e("s_waitcnt lgkmcnt(0)")
        a.e(f"v_readfirstlane_b32 s7, v{vt+1}")
        a.e(f"s_cmp_ge_u32 s7, {4*self.n}")
        a.e(f"s_cbranch_scc0 {L}")
        a.e("s_mov_b64 exec, -1")

def issue(a, c, vs, srd_, soff, sreg, slot, pre=()):
    for p in pre: a.e(p)
    for j, v in enumerate(vs):
        if j % 4 == 0:
            a.e(f"s_add_u32 m0, s{sreg}, {slot * c.SLOT + (j // 4) * 4096}")
        a.e(f"buffer_load_dwordx4 v{v}, s[{srd_}:{srd_+3}], s{soff} offen offset:{(j%4)*1024} lds")

def build(name, ST=False, DBG=0, W1D=16, W2D=13, L2PF=0, EPRIO=0, PRECP=True, POFF=P_OFF, S0EARLY=False, W2MODE=0, NS2=5, RPG1=1, RPG2=2, PD2=0, SPN=4, CPMODE=0, WPA=0, EARLYA=False, OVL=True, ORD=0, CPRIO=0, NODRAIN=False, ARR=4):
    assert not EARLYA or CPMODE == 1
    a = Asm()
    SC = " sc1"
    SYNC2 = SYNC if NS2 == 4 else 3*32768
    SCR2 = SCR if NS2 == 4 else 3*32768 + 16384
    c1 = GemmCfg(128, 224, 1024, 3, 2048, 7168)
    c2 = GemmCfg(128, 128, 1792, NS2, 112*1024, 2048)
    c2.a_blocked = True; c2.a_off = H_OFF
    c1.rpg = RPG1; c2.rpg = RPG2
    c1.mbmajor = c2.mbmajor = (ORD == 1); c1.snake = c2.snake = (ORD == 2)
    a.begin_kernel(name)
    Lend = a.newlabel("Lend"); Lload = a.newlabel("Lload"); LnoRF = a.newlabel("LnoRF")
    a.e(f"s_cmp_ge_u32 s2, 256")
    a.e(f"s_cbranch_scc1 {Lend}")
    load_ptrs(a)
    a.e("v_lshrrev_b32 v2, 6, v0")
    a.e("v_and_b32 v1, 63, v0")
    a.e(f"v_readfirstlane_b32 s{S_CNT}, v2")
    a.e(f"""
    v_and_b32 v2, 15, v1
    v_lshlrev_b32 v2, 2, v2
    v_add_u32 v2, {SYNC}, v2
    v_mov_b32 v3, 0
    ds_write_b32 v2, v3
    s_and_b32 s{S_WAVE}, s{S_CNT}, 3
    s_lshr_b32 s69, s{S_CNT}, 2
    s_and_b32 s{S_U}, s2, 0xfe
    s_xor_b32 s3, s69, 1
    s_add_u32 s{S_U}, s{S_U}, s3
    """)
    map_g1(a)
    a.e(f"""
    s_lshr_b32 s3, s{S_M0}, 6
    s_lshr_b32 s4, s83, 3
    s_add_u32 s3, s3, s4
    s_lshl_b32 s3, s3, 7
    s_add_u32 s82, s3, {FLAG_OFF}
    s_and_b32 s5, s83, 7
    s_lshl_b32 s6, s5, 2
    s_add_u32 s{S_FH}, s82, s6
    s_lshl_b32 s5, s5, 1
    s_add_u32 s5, s5, s4
    s_lshl_b32 s5, s5, 2
    s_add_u32 s5, s5, s{S_M0}
    s_add_u32 s{S_FP}, s5, {FLAG_OFF + 8192}
    s_waitcnt lgkmcnt(0)
    """)
    stamp_init(a, ST); stamp(a, 0, ST)
    srd(a, S_WS, P_WS, WS_USED)
    BT = 242
    def early_loads():
        a.e(f"""
    v_mov_b32 v2, 0
    s_mov_b64 exec, 1
    buffer_store_dword v2, v2, s[{S_WS}:{S_WS+3}], s{S_FH} offen sc1
    buffer_store_dword v2, v2, s[{S_WS}:{S_WS+3}], s{S_FP} offen sc1
    s_mov_b64 exec, -1
    """)
        srd(a, S_R1, P_B1, 3584*2)
        a.e(f"""
    s_lshr_b32 s3, s{S_WAVE}, 1
    s_lshl_b32 s4, s3, 7
    s_add_u32 s4, s4, s{S_N0}
    s_lshl_b32 s4, s4, 1
    s_lshl_b32 s5, s3, 4
    s_add_u32 s5, s5, s{S_N0}
    s_add_u32 s5, s5, 96
    s_lshl_b32 s5, s5, 1
    v_lshrrev_b32 v2, 4, v1
    v_lshlrev_b32 v2, 3, v2
    """)
        for nb in range(7):
            if nb < 6: a.e(f"buffer_load_dwordx2 v[{BT+2*nb}:{BT+2*nb+1}], v2, s[{S_R1}:{S_R1+3}], s4 offen offset:{32*nb}")
            else: a.e(f"buffer_load_dwordx2 v[{BT+2*nb}:{BT+2*nb+1}], v2, s[{S_R1}:{S_R1+3}], s5 offen")
    if NODRAIN:
        Lel = a.newlabel("Lel")
        a.e("s_cmp_lg_u32 s69, 0"); a.e(f"s_cbranch_scc1 {Lel}")
        early_loads()
        a.label(Lel)
    a.e("s_barrier")
    if S0EARLY:
        Ls0 = a.newlabel("Ls0")
        a.e("s_cmp_eq_u32 s69, 0"); a.e(f"s_cbranch_scc1 {Ls0}")
        srd(a, S_SRDA, P_X, 2048*1024*2)
        srd(a, S_SRDB, P_W1, 1024*3584*2)
        vA, vB = loader_setup(a, c1, 2)
        loader_issue(a, c1, vA, vB)
        a.label(Ls0)
    LwpA = a.newlabel("LwpA")
    a.e("s_bitcmp1_b32 s2, 0")
    a.e(f"s_cbranch_scc0 {LwpA if WPA else LnoRF}")
    if W2MODE == 1:
        srd(a, 8, P_W2, 7 << 20) if False else None
        a.e(f"s_lshr_b32 s24, s2, 1"); a.e(f"s_lshl_b32 s24, s24, 3"); a.e(f"s_lshl_b32 s25, s69, 2"); a.e(f"s_add_u32 s24, s24, s25"); a.e(f"s_add_u32 s24, s24, s{S_WAVE}")
        a.e(f"s_mul_i32 s24, s24, 7168")
        a.e(f"s_add_u32 s24, s{P_W2}, s24"); a.e(f"s_addc_u32 s25, s{P_W2+1}, 0")
        a.e("v_min_u32 v254, 55, v1"); a.e("v_lshlrev_b32 v254, 7, v254")
        W2LD = "global_load_dword v255, v254, s[24:25]"
    cbB = CBarS(24)
    V = VA(2, 250)
    xw = Asm(); xw.nlabel = 1500
    Lg1 = a.newlabel("Lgrp1"); Lgd = a.newlabel("Lgrpd")
    a.e("s_cmp_lg_u32 s69, 0")
    a.e(f"s_cbranch_scc1 {Lg1}")
    for g in range(2):
        if g == 1: a.label(Lg1)
        V = VA(2, 250); cb = CBar(SYNC + 32 + 4*g)
        base = 45056 + g*32768
        xw = Asm(); xw.nlabel = 1500 + 100*g
        Vw = VA(196, 242)
        wprep_body(xw, Vw, S_WAVE, base + 16384, SC=SC, mid=lambda: xw.mark("mid"), u=S_U)
        k = xw.lines.index(";@mid")
        def p1():
            a.lines += xw.lines[:k]; return 40
        def p2():
            a.lines += xw.lines[k+1:]
            if W2MODE == 1: a.e(W2LD)
            return 0
        rfx_body(a, VA(2, 196), S_WAVE, base, SC=SC, bar=lambda vt: cb(a, vt), pf=None if WPA else p1, pf2=None if WPA else p2, u=S_U)
        if g == 0: a.e(f"s_branch {Lgd}")
    if WPA:
        a.e(f"s_branch {Lgd}")
        a.label(LwpA)
        a.e(f"s_lshl_b32 s23, s69, 2"); a.e(f"s_add_u32 s23, s23, s{S_WAVE}")
        wprep_body(a, VA(20, 84), S_WAVE, 2*c1.SLOT, SC=SC, u=S_U, ldsw=23)
    a.label(Lgd)
    a.e("s_waitcnt lgkmcnt(0)")
    a.e("s_barrier")
    a.label(LnoRF)
    stamp(a, 1, ST)
    a.e(f"s_cmp_lg_u32 s69, 0")
    a.e(f"s_cbranch_scc1 {Lload}")
    BT = 242
    if CPRIO: a.e(f's_setprio {CPRIO}')
    if not NODRAIN: early_loads()
    a.e(f"""
    s_lshr_b32 s24, s2, 1
    s_lshl_b32 s24, s24, 2
    s_add_u32 s24, s24, s{S_WAVE}
    s_mul_i32 s25, s24, 896
    s_bitcmp1_b32 s2, 0
    s_cselect_b32 s8, s{P_W2}, s{P_W1}
    s_cselect_b32 s9, s{P_W2+1}, s{P_W1+1}
    s_mov_b32 s27, {0x70000000 if W2MODE >= 1 else 0}
    s_cselect_b32 s26, s27, {3*458752}
    s_add_u32 s25, s25, s26
    s_mov_b32 s10, {7 << 20}
    s_mov_b32 s11, 0x20000
    v_lshlrev_b32 v240, 7, v1
    v_mov_b32 v241, 0x7fffff00
    v_cmp_gt_u32 vcc, 7, v1
    v_cndmask_b32 v240, v241, v240, vcc
    """)
    pfl = ["buffer_load_dword v241, v240, s[8:11], s25 offen", f"s_add_u32 s25, s25, 458752"]
    if L2PF:
        PFA, PFB = 238, 239
        srd(a, 12, P_X, 4 << 20); srd(a, S_R2, P_W1, 7 << 20)
        a.e(f"""
        s_lshr_b32 s3, s2, 3
        s_lshl_b32 s3, s3, 2
        s_add_u32 s3, s3, s{S_WAVE}
        s_and_b32 s4, s2, 1
        s_lshl_b32 s4, s4, 10
        s_lshl_b32 s5, s3, 3
        s_add_u32 s4, s4, s5
        v_add_u32 v{PFA}, s4, v1
        v_lshlrev_b32 v{PFA}, 11, v{PFA}
        v_cmp_gt_u32 vcc, 8, v1
        v_cndmask_b32 v{PFA}, v241, v{PFA}, vcc
        s_lshr_b32 s4, s3, 1
        s_mul_i32 s4, s4, 7168
        s_bfe_u32 s5, s2, 0x20001
        s_mul_i32 s5, s5, 1792
        s_add_u32 s4, s4, s5
        s_and_b32 s5, s3, 1
        s_mul_i32 s5, s5, 896
        s_add_u32 s4, s4, s5
        v_lshlrev_b32 v{PFB}, 7, v1
        v_add_u32 v{PFB}, s4, v{PFB}
        v_cmp_gt_u32 vcc, 7, v1
        v_cndmask_b32 v{PFB}, v241, v{PFB}, vcc
        s_mov_b32 s26, {128*3}
        s_mov_b32 s27, {458752*3}
        """)
        l2 = [f"buffer_load_dword v241, v{PFA}, s[12:15], s26 offen", "s_add_u32 s26, s26, 128",
              f"buffer_load_dword v241, v{PFB}, s[{S_R2}:{S_R2+3}], s27 offen", "s_add_u32 s27, s27, 458752"]
    R = ConsRegs(c1, 8); T = R.end
    consumer_setup(a, c1, R, T, T+1)
    if NODRAIN:
        Lnd = a.newlabel("Lnd")
        a.e("s_bitcmp1_b32 s2, 0"); a.e(f"s_cbranch_scc1 {Lnd}")
        a.e("s_waitcnt vmcnt(0)")
        a.label(Lnd)
        W1D = 19; W2D = 99
    else: a.e("s_waitcnt vmcnt(0)")
    if L2PF:
        for i in range(L2PF - 3):
            for l in l2: a.e(l)
        pfl0 = pfl; pfl = pfl + l2
    Lsk = a.newlabel("Lskpf")
    for i in range(W1D - 3):
        if i == W2D:
            a.e("s_bitcmp1_b32 s2, 0"); a.e(f"s_cbranch_scc1 {Lsk}")
        for l in pfl[:2]: a.e(l)
    a.label(Lsk)
    for nb in range(c1.NB):
        for mb in range(c1.MB):
            d = R.accreg(c1, mb, nb)
            a.e(f"v_lshlrev_b32 v{d}, 16, v{BT+2*nb}")
            a.e(f"v_and_b32 v{d+1}, 0xffff0000, v{BT+2*nb}")
            a.e(f"v_lshlrev_b32 v{d+2}, 16, v{BT+2*nb+1}")
            a.e(f"v_and_b32 v{d+3}, 0xffff0000, v{BT+2*nb+1}")
    c1.stampf = lambda i: stamp(a, 2 + i, ST)
    last1 = consumer_loop(a, c1, R, split=ARR if NODRAIN else 0, npf=0, pfl=pfl, defer=OVL, allpf=(W2MODE < 4 and W1D < 16 or W2MODE == 0 and W2D < 13 or W2MODE == 0))
    if OVL:
        for l in last1[:8]: a.e(l)
    if EPRIO: a.e('s_setprio 3')
    if W2MODE == 2:
        a.e(f"""
        s_lshr_b32 s25, s24, 8
        s_mul_i32 s25, s25, {1792*2048}
        s_and_b32 s26, s24, 255
        s_mul_i32 s26, s26, 7168
        s_add_u32 s25, s25, s26
        s_and_b32 s26, s2, 1
        s_mul_i32 s26, s26, {896*2048}
        s_add_u32 s25, s25, s26
        s_mov_b32 s8, s{P_W2}
        s_mov_b32 s9, s{P_W2+1}
        v_min_u32 v240, 55, v1
        v_lshlrev_b32 v240, 7, v240
        buffer_load_dword v241, v240, s[8:11], s25 offen
        """)
    if W2MODE == 3:
        L3 = a.newlabel("Lw3")
        a.e("s_bitcmp1_b32 s2, 0"); a.e(f"s_cbranch_scc1 {L3}")
        a.e(f"""
        s_mul_i32 s25, s24, 14336
        s_mov_b32 s8, s{P_W2}
        s_mov_b32 s9, s{P_W2+1}
        v_min_u32 v240, 55, v1
        v_lshlrev_b32 v240, 7, v240
        buffer_load_dword v241, v240, s[8:11], s25 offen
        s_add_u32 s25, s25, 7168
        buffer_load_dword v241, v240, s[8:11], s25 offen
        """)
        a.label(L3)
    kA, kB, one = T, T+2, T+4
    A_ = 2*math.sqrt(2/math.pi)*math.log2(math.e)
    a.e(f"v_mov_b32 v{kA}, {f32(-A_)}"); a.e(f"v_mov_b32 v{kA+1}, {f32(-A_)}")
    a.e(f"v_mov_b32 v{kB}, {f32(-A_*0.044715)}"); a.e(f"v_mov_b32 v{kB+1}, {f32(-A_*0.044715)}")
    a.e(f"v_mov_b32 v{one}, 1.0"); a.e(f"v_mov_b32 v{one+1}, 1.0")
    a.e(f"""
    s_lshr_b32 s3, s{S_WAVE}, 1
    s_and_b32 s4, s{S_WAVE}, 1
    s_lshl_b32 s4, s4, 2
    s_lshr_b32 s5, s{S_M0}, 4
    s_add_u32 s4, s4, s5
    s_mul_i32 s4, s4, 112
    s_lshr_b32 s5, s{S_N0}, 5
    s_add_u32 s4, s4, s5
    s_lshl_b32 s4, s4, 10
    s_add_u32 s4, s4, {H_OFF}
    s_lshl_b32 s6, s3, 12
    s_add_u32 s6, s6, s4
    s_lshl_b32 s7, s3, 5
    s_add_u32 s7, s7, s4
    s_add_u32 s7, s7, 3072
    v_and_b32 v4, 15, v1
    v_lshlrev_b32 v4, 6, v4
    v_lshrrev_b32 v5, 4, v1
    v_lshlrev_b32 v3, 3, v5
    v_add3_u32 v3, v3, v4, s7
    v_and_b32 v2, 1, v5
    v_lshlrev_b32 v2, 5, v2
    v_lshrrev_b32 v5, 1, v5
    v_lshlrev_b32 v5, 4, v5
    v_add3_u32 v2, v2, v5, v4
    v_add_u32 v2, s6, v2
    """)
    if OVL:
        tmp = R.fa[0]; pk_ = R.fb[0]; npk = 7
        rest = list(last1[8:])
        for mb in range(4): a.e(f"s_mov_b32 s{20+mb}, {mb*112*1024}")
        order = [(mb, p) for p in range(0, c1.NB, 2) for mb in range(c1.MB)]
    else:
        tmp = R.fa[0]; pk_ = tmp + 32; npk = 8; rest = []
        for mb in range(4): a.e(f"s_mov_b32 s{20+mb}, {mb*112*1024}")
        order = [(mb, p) for mb in range(c1.MB) for p in range(0, c1.NB, 2)]
    for idx, (mb, p) in enumerate(order):
        e = Asm()
        nbs = [p, p+1] if p+1 < c1.NB else [p]
        regs = []
        for nb in nbs:
            d = R.accreg(c1, mb, nb); regs += [d, d+2]
        gelu_pairs(e, regs, tmp, kA, kB, one)
        q = pk_ + 4*(idx % npk)
        for i, r in enumerate(regs):
            e.e(f"v_cvt_pk_bf16_f32 v{q+i}, v{r}, v{r+1}")
        if len(nbs) == 2:
            e.e(f"v_permlane16_swap_b32 v{q}, v{q+2}")
            e.e(f"v_permlane16_swap_b32 v{q+1}, v{q+3}")
            e.e(f"buffer_store_dwordx4 v[{q}:{q+3}], v2, s[{S_WS}:{S_WS+3}], s{20+mb} offen offset:{512*p}{SC}")
        else:
            e.e(f"buffer_store_dwordx2 v[{q}:{q+1}], v3, s[{S_WS}:{S_WS+3}], s{20+mb} offen{SC}")
        for k, l in enumerate(e.lines):
            a.lines.append(l)
            if rest and k % 4 == 3: a.e(rest.pop(0))
    assert not rest
    if EPRIO: a.e('s_setprio 0')
    stamp(a, 4, ST)
    LnoCP = a.newlabel("LnoCP"); Lcpd = a.newlabel("Lcpd")
    a.e("s_bitcmp1_b32 s2, 0")
    a.e(f"s_cbranch_scc1 {LnoCP}")
    x = Asm(); x.nlabel = 2000
    if CPMODE == 1: a.lines = a.lines[:-2]
    def sigh():
        x.e("s_waitcnt vmcnt(0)")
        lds_signal(x, 250, 1, lambda: flag_set(x, 250, S_FH))
    cp_body2(x, VA(2, 248), S_WAVE, SCR, SCL=SC, SC=SC, p_s=S_U)
    kd = next(i for i, l in enumerate(x.lines) if l.startswith(";@delay"))
    rest = x.lines[kd+1:]; x.lines = x.lines[:kd]; sigh(); x.lines += rest
    if CPMODE == 0:
        inline(a, x, CBar(SYNC + 40), 250)
        a.e(f"s_branch {Lcpd}")
    a.label(LnoCP)
    a.e("s_waitcnt vmcnt(0)")
    lds_signal(a, 250, 1, lambda: flag_set(a, 250, S_FH))
    a.label(Lcpd)
    map_g2(a)
    R = ConsRegs(c2, 8); T = R.end
    consumer_setup(a, c2, R, T, T+1)
    for i in range(c2.MB*c2.NB*4): a.e(f"v_mov_b32 v{R.acc+i}, 0")
    a.e("s_waitcnt vmcnt(0)")
    c2.stampf = lambda i: stamp(a, 5 + i, ST)
    if PD2:
        PFA, PFB = 238, 239
        srd(a, 8, P_W2, 7 << 20)
        a.e(f"""
        s_lshr_b32 s3, s2, 3
        s_lshl_b32 s3, s3, 2
        s_add_u32 s3, s3, s{S_WAVE}
        s_and_b32 s4, s2, 1
        s_lshl_b32 s4, s4, 6
        s_lshr_b32 s5, s3, 1
        s_add_u32 s4, s4, s5
        s_mul_i32 s4, s4, {112*1024}
        s_lshl_b32 s5, s{S_K0}, 5
        s_add_u32 s4, s4, s5
        s_and_b32 s5, s3, 1
        s_lshl_b32 s5, s5, 10
        s_add_u32 s4, s4, s5
        s_add_u32 s4, s4, {H_OFF}
        v_lshlrev_b32 v{PFB}, 7, v1
        v_add_u32 v{PFA}, s4, v{PFB}
        v_mov_b32 v241, 0x7fffff00
        v_cmp_gt_u32 vcc, 8, v1
        v_cndmask_b32 v{PFA}, v241, v{PFA}, vcc
        s_lshr_b32 s4, s3, 1
        s_add_u32 s4, s4, s{S_K0}
        s_lshl_b32 s4, s4, 11
        s_bfe_u32 s5, s2, 0x10001
        s_lshl_b32 s5, s5, 10
        s_add_u32 s4, s4, s5
        s_and_b32 s5, s3, 1
        s_lshl_b32 s5, s5, 9
        s_add_u32 s4, s4, s5
        v_add_u32 v{PFB}, s4, v{PFB}
        v_cmp_gt_u32 vcc, 4, v1
        v_cndmask_b32 v{PFB}, v241, v{PFB}, vcc
        s_mov_b32 s26, {2048*PD2}
        s_mov_b32 s27, {131072*PD2}
        """)
        p2l = [f"buffer_load_dword v241, v{PFA}, s[{S_WS}:{S_WS+3}], s26 offen", "s_add_u32 s26, s26, 2048",
               f"buffer_load_dword v241, v{PFB}, s[8:11], s27 offen", "s_add_u32 s27, s27, 131072"]
        consumer_loop(a, c2, R, pfl=p2l, pfafter=3)
    else:
        last2 = consumer_loop(a, c2, R, defer=OVL)
        if OVL:
            for l in last2[:8]: a.e(l)
    a.e(f"""
    s_and_b32 s4, s{S_WAVE}, 1
    s_lshl_b32 s4, s4, 2
    s_lshr_b32 s5, s{S_M0}, 4
    s_add_u32 s4, s4, s5
    s_lshl_b32 s4, s4, 5
    s_lshr_b32 s5, s{S_N0}, 5
    s_add_u32 s4, s4, s5
    s_and_b32 s5, s{S_WAVE}, 2
    s_add_u32 s4, s4, s5
    s_lshl_b32 s4, s4, 10
    s_lshr_b32 s5, s83, 3
    s_lshl_b32 s5, s5, 22
    s_add_u32 s4, s4, s5
    s_add_u32 s4, s4, {POFF}
    v_and_b32 v4, 15, v1
    v_lshlrev_b32 v4, 6, v4
    v_lshrrev_b32 v5, 4, v1
    v_and_b32 v2, 1, v5
    v_lshlrev_b32 v2, 5, v2
    v_lshrrev_b32 v5, 1, v5
    v_lshlrev_b32 v5, 4, v5
    v_add3_u32 v2, v2, v5, v4
    v_add_u32 v2, s4, v2
    """)
    pk_ = T + 8
    for mb in range(4): a.e(f"s_mov_b32 s{20+mb}, {mb*32*1024}")
    rest = []
    if OVL:
        rest = list(last2[8:])
    for idx, (mb, p) in enumerate([(mb, p) for p in range(0, c2.NB, 2) for mb in range(c2.MB)]):
        q = pk_ + 4*idx
        for i, nb in enumerate((p, p+1)):
            d = R.accreg(c2, mb, nb)
            if rest: a.e(rest.pop(0))
            a.e(f"v_cvt_pk_bf16_f32 v{q+2*i}, v{d}, v{d+1}")
            a.e(f"v_cvt_pk_bf16_f32 v{q+2*i+1}, v{d+2}, v{d+3}")
        a.e(f"v_permlane16_swap_b32 v{q}, v{q+2}")
        a.e(f"v_permlane16_swap_b32 v{q+1}, v{q+3}")
        a.e(f"buffer_store_dwordx4 v[{q}:{q+3}], v2, s[{S_WS}:{S_WS+3}], s{20+mb} offen offset:{512*p}{SC}")
    assert not rest
    a.e("s_waitcnt vmcnt(0)")
    lds_signal(a, T, 2, lambda: flag_set(a, T, S_FP), base=SYNC2)
    stamp(a, 7, ST)
    stamp_flush(a, P_WS, ST)
    a.e("s_endpgm")
    a.label(Lload)
    srd(a, S_SRDA, P_X, 2048*1024*2)
    srd(a, S_SRDB, P_W1, 1024*3584*2)
    vA, vB = loader_setup(a, c1, 2)
    ND = c1.NDMA
    if S0EARLY:
        a.e(f"s_mov_b32 s{S_SOFFA}, 128"); a.e(f"s_mov_b32 s{S_SOFFB}, {64*7168}"); a.e(f"s_mov_b32 s{S_SLOT}, {c1.SLOT}")
        Lb = a.newlabel("Lb")
        if not WPA: a.e("s_bitcmp1_b32 s2, 0"); a.e(f"s_cbranch_scc0 {Lb}")
        a.e("s_waitcnt vmcnt(0)")
        a.label(Lb)
        loader_issue(a, c1, vA, vB)
    else:
        if not NODRAIN: a.e("s_waitcnt vmcnt(0)")
        loader_issue(a, c1, vA, vB); loader_issue(a, c1, vA, vB)
    if W2MODE == 6:
        a.e(f"s_lshl_b32 s24, s2, 2"); a.e(f"s_add_u32 s24, s24, s{S_WAVE}"); a.e(f"s_mul_i32 s24, s24, 7168")
        a.e(f"s_add_u32 s24, s{P_W2}, s24"); a.e(f"s_addc_u32 s25, s{P_W2+1}, 0")
        for i in range(56 - 13*SPN): a.e(f"s_load_dwordx2 s[26:27], s[24:25], {128*(13*SPN + i) + 60}")
    elif W2MODE >= 4:
        a.e(f"""
        s_lshr_b32 s24, s2, 1
        s_lshl_b32 s24, s24, 2
        s_add_u32 s24, s24, s{S_WAVE}
        s_mul_i32 s24, s24, 896
        s_bitcmp1_b32 s2, 0
        s_cselect_b32 s25, 0, {2*458752 if W2MODE == 5 else 2*458752}
        s_add_u32 s24, s24, s25
        s_bitcmp1_b32 s2, 0
        s_cselect_b32 s26, s{P_W2}, s{P_W1 if W2MODE == 5 else P_W2}
        s_cselect_b32 s25, s{P_W2+1}, s{P_W1+1 if W2MODE == 5 else P_W2+1}
        s_add_u32 s24, s24, s26
        s_addc_u32 s25, s25, 0
        """)
        for i in range(7): a.e(f"s_load_dwordx2 s[26:27], s[24:25], {128*i + 60}")
        a.e("s_add_u32 s24, s24, 458752"); a.e("s_addc_u32 s25, s25, 0")
    if CPMODE == 1:
        a.e(f"""
        s_and_b32 s{S_U}, s2, 7
        s_lshl_b32 s{S_U}, s{S_U}, 1
        s_bfe_u32 s3, s2, 0x10003
        s_add_u32 s{S_U}, s{S_U}, s3
        s_and_b32 s3, s2, 0xf0
        s_add_u32 s{S_U}, s{S_U}, s3
        """)
    xcp = Asm(); xcp.nlabel = 3000
    cp_body2(xcp, VA(16, 256), S_WAVE, 3*c2.SLOT, SCL=SC, SC=SC, p_s=S_U, pre_loads=(lambda: xcp.mark("mid")) if PRECP else None)
    if PRECP:
        km = xcp.lines.index(";@mid")
        a.lines += xcp.lines[:km]; xcp.lines = xcp.lines[km+1:]
    a.e(f"s_waitcnt vmcnt({ND})")
    a.e("s_barrier")
    def wave0(emit):
        L = a.newlabel("Lw0")
        a.e(f"s_cmp_lg_u32 s{S_WAVE}, 0"); a.e(f"s_cbranch_scc1 {L}")
        a.e("s_mov_b64 exec, 1"); emit(); a.e("s_mov_b64 exec, -1")
        a.label(L)
    if not NODRAIN: wave0(lambda: dbg_add(a, 13, 0))
    loader_issue(a, c1, vA, vB)
    def spf(): pass
    for cnt in ((ARR, 1, c1.NK - 4 - ARR) if NODRAIN else (c1.NK - 3,)):
        a.e(f"s_mov_b32 s{S_CNT}, {cnt}")
        L = a.newlabel("Lld"); a.label(L)
        a.e(f"s_waitcnt vmcnt({0 if (cnt == 1 and NODRAIN) else ND})")
        a.e("s_barrier")
        loader_issue(a, c1, vA, vB)
        a.e(f"s_sub_u32 s{S_CNT}, s{S_CNT}, 1"); a.e(f"s_cmp_lg_u32 s{S_CNT}, 0"); a.e(f"s_cbranch_scc1 {L}")
        if cnt == 1 and NODRAIN: wave0(lambda: dbg_add(a, 13, 0))
    Lx = a.newlabel("Lxp")
    a.e(f"s_waitcnt vmcnt({ND})"); a.e("s_barrier")
    if W2MODE in (4, 5):
        a.e("s_bitcmp1_b32 s2, 0"); a.e(f"s_cbranch_scc0 {Lx}")
        spf(); spf()
        a.label(Lx)
    a.e(f"s_waitcnt vmcnt(0) lgkmcnt(0)"); a.e("s_barrier")
    map_g2(a)
    srd(a, S_SRDB, P_W2, 1024*3584*2)
    a.e(f"s_mov_b32 s{S_SRDA}, s{S_WS}"); a.e(f"s_mov_b32 s{S_SRDA+1}, s{S_WS+1}")
    a.e(f"s_mov_b32 s{S_SRDA+2}, {H_OFF + 2048*3584*2}")
    vA2, vB2 = loader_setup(a, c2, 2)
    a.e(f"s_and_b32 s{S_CNT}, s83, 7")
    a.e(f"s_mul_i32 s{S_CNT}, s{S_CNT}, 7")
    a.e(f"s_add_u32 s{S_CNT}, s{S_CNT}, 1")
    a.e(f"s_lshr_b32 s{T3}, s{S_CNT}, 1")
    Lp = a.newlabel("Lnp")
    a.e(f"s_cmp_lg_u32 s{S_WAVE}, 0"); a.e(f"s_cbranch_scc1 {Lp}")
    poll_dbg(a, 13, 0, 256, sa=T0, sb=T1)
    a.label(Lp)
    a.e("s_barrier")
    stamp(a, 3, ST)
    def kidx(s, dst, sh):
        if s < 3: return [f"s_add_u32 s{T0}, s{T3}, {s}", f"s_lshl_b32 s{dst}, s{T0}, {sh}"]
        return [f"s_cmp_gt_u32 s{T3}, {s-3}", f"s_cselect_b32 s{T0}, {s-3}, {s}", f"s_lshl_b32 s{dst}, s{T0}, {sh}"]
    gA = lambda s: issue(a, c2, vA2, S_SRDA, S_SOFFA, S_TMP+4, s % NS2, kidx(s, S_SOFFA, 11))
    gB = lambda s: issue(a, c2, vB2, S_SRDB, S_SOFFB, S_TMP+5, s % NS2, kidx(s, S_SOFFB, 17))
    for s in range(3): gB(s)
    LnoCP2 = a.newlabel("LnoCP")
    if CPMODE == 0:
        a.e("s_bitcmp1_b32 s2, 0")
        a.e(f"s_cbranch_scc1 {LnoCP2}")
    if EARLYA:
        ks_ = max(i for i, l in enumerate(xcp.lines) if l.startswith(";@sync"))
        p1 = Asm(); p1.lines = xcp.lines[:ks_+1]; p2 = Asm(); p2.lines = xcp.lines[ks_+1:]
        inline(a, p1, CBar(SYNC + 44), 13)
        Lne = a.newlabel("Lne"); Lea = a.newlabel("Lea"); Lw = a.newlabel("Lw")
        a.e(f"v_mov_b32 v13, {SYNC + 4}")
        a.e(f"ds_read_b32 v14, v13")
        a.e("s_waitcnt lgkmcnt(0)")
        a.e(f"v_readfirstlane_b32 s23, v14")
        a.e(f"s_cmp_ge_u32 s23, 4")
        a.e(f"s_cbranch_scc0 {Lne}")
        for s_ in range(3): gA(s_)
        a.label(Lne)
        inline(a, p2, None, 13)
        stamp(a, 2, ST)
        a.e(f"v_and_b32 v12, 7, v1"); a.e(f"v_lshlrev_b32 v12, 2, v12")
        a.e(f"s_cmp_ge_u32 s23, 4")
        a.e(f"s_cbranch_scc1 {Lea}")
        poll_lds(a, 13, 1, 4, T0)
        for s_ in range(3): gA(s_)
        a.e(f"buffer_load_dword v14, v12, s[{S_WS}:{S_WS+3}], s82 offen sc1")
        a.e(f"s_waitcnt vmcnt({2*c2.NA + 1})")
        a.e(f"s_branch {Lw}")
        a.label(Lea)
        a.e(f"buffer_load_dword v14, v12, s[{S_WS}:{S_WS+3}], s82 offen sc1")
        a.e(f"s_waitcnt vmcnt({2*c2.NA + 5})")
        a.label(Lw)
        stamp(a, 4, ST)
    else:
        inline(a, xcp, CBar(SYNC + 44), 13)
        CBar(SYNC + 48)(a, 13)
        a.label(LnoCP2)
        stamp(a, 2, ST)
        gB(3)
        poll_lds(a, 13, 1, 4, T0)
        stamp(a, 4, ST)
        for s in range(3): gA(s)
        a.e(f"v_and_b32 v13, 7, v1"); a.e(f"v_lshlrev_b32 v13, 2, v13")
        a.e(f"buffer_load_dword v14, v13, s[{S_WS}:{S_WS+3}], s82 offen sc1")
        a.e(f"s_waitcnt vmcnt({2*c2.NA + 1})")
    a.e("s_barrier")
    a.e("s_waitcnt vmcnt(0)")
    LB = a.newlabel("LslowH"); LJ = a.newlabel("LjoinH")
    a.e(f"v_cmp_ne_u32 vcc, 1, v14")
    if EARLYA: gB(3)
    a.e(f"s_cbranch_vccnz {LB}")
    gA(3)
    for s_ in range(4, NS2): gB(s_); gA(s_)
    for t in range(2):
        a.e("s_barrier"); gB(t + NS2); gA(t + NS2)
    a.e(f"s_branch {LJ}")
    a.label(LB)
    for s_ in range(4, NS2): gB(s_)
    for t in range(2):
        a.e("s_barrier"); gB(t + NS2)
    poll_flags(a, 13, 82, 8, sa=T0)
    for s_ in range(3, NS2 + 2): gA(s_)
    a.e("s_waitcnt vmcnt(0)")
    a.label(LJ)
    stamp(a, 5, ST)
    La = a.newlabel("Lna")
    if CPMODE == 0: a.e("s_bitcmp1_b32 s2, 0"); a.e(f"s_cbranch_scc1 {La}")
    wave0(lambda: dbg_add(a, 13, 128))
    a.label(La)
    ND2 = c2.NDMA
    x = Asm(); x.nlabel = 4000
    def poll_p(vt):
        Lq = x.newlabel("Lq")
        stamp(x, 6, ST)
        x.e(f"v_mov_b32 v{vt}, {SYNC2 + 8}")
        x.label(Lq)
        x.e("s_sleep 1")
        x.e(f"ds_read_b32 v{vt+1}, v{vt}")
        x.e("s_waitcnt lgkmcnt(0)")
        x.e(f"v_readfirstlane_b32 s7, v{vt+1}")
        x.e(f"s_cmp_ge_u32 s7, 4")
        x.e(f"s_cbranch_scc0 {Lq}")
        stamp(x, 1, ST and DBG == 1)
        x.e(f"s_lshr_b32 s5, s2, 4")
        x.e(f"s_lshl_b32 s5, s5, 7")
        x.e(f"s_add_u32 s5, s5, {FLAG_OFF + 8192}")
        poll_flags(x, vt, 5, 16)
        stamp(x, 2, ST and DBG == 1)
    fin_body3(x, VA(16, 256), S_WAVE, SCR2, 2, SC, SC, poll_p, p_off=POFF, pre_loads=lambda: x.mark("mid"))
    k = x.lines.index(";@mid")
    consts = [l for l in x.lines[:k] if not l.startswith(";@")]
    per = -(-len(consts) // 6)
    for t in range(2, c2.NK):
        rem = c2.NK - 1 - (t + 1)
        a.e(f"s_waitcnt vmcnt({ND2 * min(NS2 - 2, max(0, rem)) + (7 if t > c2.NK - 4 else 0)})")
        if t == c2.NK - 4:
            Lp = a.newlabel("Lnp")
            a.e(f"s_cmp_lg_u32 s{S_WAVE}, 0"); a.e(f"s_cbranch_scc1 {Lp}")
            poll_dbg(a, 13, 128, 128 if CPMODE == 0 else 256)
            a.label(Lp)
        a.e("s_barrier")
        if t + NS2 < c2.NK: gB(t + NS2); gA(t + NS2)
        if NS2 == 5 and t == 23:
            a.e(f"v_and_b32 v13, 15, v1"); a.e(f"v_lshlrev_b32 v13, 2, v13"); a.e(f"v_add_u32 v13, {SYNC2}, v13")
            a.e("v_mov_b32 v14, 0"); a.e("ds_write_b32 v13, v14"); a.e("s_waitcnt lgkmcnt(0)")
        if 4 <= t < 10: a.lines += consts[(t-4)*per:(t-3)*per]
        if t == c2.NK - 4:
            k2 = next(i for i in range(k, len(x.lines)) if x.lines[i].startswith(";@delay"))
            a.lines += [l for l in x.lines[k+1:k2] if not l.startswith(";@")]
    y = Asm(); y.lines = x.lines[k2+1:]
    if DBG == 1:
        kk = max(i for i, l in enumerate(y.lines) if "s_waitcnt vmcnt(6)" in l)
        z = Asm(); stamp(z, 3, True); y.lines[kk+1:kk+1] = z.lines
    inline(a, y, CBar(SYNC2 + 52), 13)
    if DBG == 1:
        stamp(a, 4, True); a.e("s_waitcnt vmcnt(0)")
    stamp(a, 7, ST)
    stamp_flush(a, P_WS, ST)
    a.label(Lend)
    a.e("s_endpgm")
    a.end_kernel(name, 256)
    a.launches.append(f"; @launch grid=(256,1,1) block=(512,1,1) lds={LDS_TOTAL if NS2 == 4 else 163840}")
    return a

if __name__ == "__main__":
    open("s6.s", "w").write(build(NAME).text(hdr))
    open("s6_st.s", "w").write(build(NAME, ST=True).text(hdr))
    open("s6_a_st.s", "w").write(build(NAME, ST=True, NODRAIN=False).text(hdr))
    open("s6_b_st.s", "w").write(build(NAME, ST=True, ARR=6).text(hdr))
```
